```python
import torch

def _softmax(x, axis=-1):
    return torch.softmax(x, dim=axis)

def _gelu(x):
    return torch.nn.functional.gelu(x, approximate='tanh')

def _silu(x):
    return torch.nn.functional.silu(x)

def _sigmoid(x):
    return torch.sigmoid(x)

def _layernorm(x, axis=-1, eps=1e-05):
    m = x.mean(dim=axis, keepdim=True)
    v = x.var(dim=axis, keepdim=True, unbiased=False)
    return (x - m) / torch.sqrt(v + eps)

def _scatter_add(tgt, idx, src, axis=0):
    return tgt.clone().index_add_(axis, idx, src)

def _segment_sum(src, seg, n):
    out = torch.zeros((n,) + src.shape[1:], dtype=src.dtype)
    return out.index_add_(0, seg, src)

def _pad(x, pw):
    flat = tuple((v for pair in reversed(pw) for v in pair))
    return torch.nn.functional.pad(x, flat)
kernel_name = 'adaLN_cond__ssm_conv_h3__glu_gated_swiglu__prompt'

def setup_inputs():

    _w = lambda a: (lambda t: t.to(torch.bfloat16) if t.is_floating_point() else t)(torch.as_tensor(a))

    def _A_setup():
        B, S, D = (1, 2048, 1024)
        ks = 4
        return {'q': _w((lambda *s: torch.randn(*s, dtype=torch.bfloat16) * 0.05)(B, S, D)), 'k': _w((lambda *s: torch.randn(*s, dtype=torch.bfloat16) * 0.8)(B, S, D)), 'v': _w((lambda *s: torch.randn(*s, dtype=torch.bfloat16) * 0.8)(B, S, D)), 'shift_k': _w((lambda *s: torch.randn(*s, dtype=torch.bfloat16) * 0.8)(D, ks) * 0.5), 'ssm_k': _w((lambda *s: torch.randn(*s, dtype=torch.bfloat16) * 0.8)(D, S) * (1.0 / S ** 0.5)), 'ssm_D': _w((lambda *s: torch.randn(*s, dtype=torch.bfloat16) * 0.8)(D))}
    _A_in = _A_setup()

    def _B_setup():
        B, S, D, F = (1, 2048, 1024, 3584)
        return {'x': _w((lambda *s: torch.randn(*s, dtype=torch.bfloat16) * 0.05)(B, S, D)), 'w1': _w((lambda *s: torch.randn(*s, dtype=torch.bfloat16) * 0.8)(D, F) * (2.0 / D) ** 0.5), 'w3': _w((lambda *s: torch.randn(*s, dtype=torch.bfloat16) * 0.8)(D, F) * (2.0 / D) ** 0.5), 'w2': _w((lambda *s: torch.randn(*s, dtype=torch.bfloat16) * 0.8)(F, D) * (2.0 / F) ** 0.5)}
    _B_in = _B_setup()
    return {'A_q': _A_in['q'], 'A_k': _A_in['k'], 'A_v': _A_in['v'], 'A_shift_k': _A_in['shift_k'], 'A_ssm_k': _A_in['ssm_k'], 'A_ssm_D': _A_in['ssm_D'], 'B_x': _B_in['x'], 'B_w1': _B_in['w1'], 'B_w3': _B_in['w3'], 'B_w2': _B_in['w2'], 'c': _w((lambda *s: torch.randn(*s, dtype=torch.bfloat16) * 0.2)(1, 1024) * 8.0), 'w_mod': _w((lambda *s: torch.randn(*s, dtype=torch.bfloat16) * 0.2)(1024, 6 * 1024) * 1024 ** (-0.5) * 8.0)}

def reference(A_q, A_k, A_v, A_shift_k, A_ssm_k, A_ssm_D, B_x, B_w1, B_w3, B_w2, c, w_mod):

    def _A_ref(q, k, v, shift_k, ssm_k, ssm_D):
        B, S, D = q.shape
        ks = shift_k.shape[-1]
        k_pad = _pad(k, ((0, 0), (ks - 1, 0), (0, 0)))
        k_shift = torch.zeros_like(k)
        for t in range(ks):
            k_shift = k_shift + k_pad[:, t:t + S, :] * shift_k[:, ks - 1 - t][None, None, :]
        kv = k_shift * v
        L = 2 * S
        kv_pad = _pad(kv, ((0, 0), (0, S), (0, 0)))
        kf_pad = _pad(ssm_k, ((0, 0), (0, S)))
        kv_f = (lambda x, axes=(-2, -1): torch.fft.rfft2(x.float(), dim=axes))(kv_pad[:, None, :, :], axes=(1, 2))
        kf_f = (lambda x, axes=(-2, -1): torch.fft.rfft2(x.float(), dim=axes))(kf_pad[:, None, :], axes=(1, 2))
        kf_f = (lambda x, *d: x.permute(*d))(kf_f, 1, 2, 0)
        y_f = kv_f * kf_f[None, :, :, :]
        y = (lambda x, s, axes=(-2, -1): torch.fft.irfft2(x, s=s, dim=axes).to(torch.bfloat16))(y_f, (1, L), axes=(1, 2))[:, 0, :S, :]
        y = y + kv * ssm_D[None, None, :]
        return q * y

    def _B_ref(x, w1, w3, w2):
        gate = torch.einsum('bsd,df->bsf', x, w1)
        up = torch.einsum('bsd,df->bsf', x, w3)
        h = _silu(gate) * up
        out = torch.einsum('bsf,fd->bsd', h, w2)
        return out
    x = A_q
    mod = (_silu(c) @ w_mod).reshape(c.shape[0], 6, 1, -1)
    sa, ca, ga, sb, cb, gb = (mod[:, 0].clone(), mod[:, 1].clone(), mod[:, 2].clone(), mod[:, 3].clone(), mod[:, 4].clone(), mod[:, 5].clone())
    h = _layernorm(x, axis=-1) * (1 + ca) + sa
    x = x + ga * _A_ref(h, A_k, A_v, A_shift_k, A_ssm_k, A_ssm_D)
    h = _layernorm(x, axis=-1) * (1 + cb) + sb
    x = x + gb * _B_ref(h, B_w1, B_w3, B_w2)
    return x
```

```python
from gen import *

MASK = "s40"


def rnd2(A, a, b, t):
    A(f"v_cvt_pk_bf16_f32 v{t}, v{a}, v{b}")
    A(f"v_lshlrev_b32 v{a}, 16, v{t}")
    A(f"v_and_b32 v{b}, {MASK}, v{t}")


def unpack2(A, d, src):
    A(f"v_lshlrev_b32 v{d}, 16, v{src}")
    A(f"v_and_b32 v{d+1}, {MASK}, v{src}")


def wave_sum_multi(A, regs, sdst):
    steps = ["quad_perm:[1,0,3,2] row_mask:0xf bank_mask:0xf", "quad_perm:[2,3,0,1] row_mask:0xf bank_mask:0xf",
             "row_half_mirror row_mask:0xf bank_mask:0xf", "row_mirror row_mask:0xf bank_mask:0xf"]
    pad = max(0, 3 - len(regs))
    for st in steps:
        if pad: A(f"s_nop {pad - 1}")
        for r in regs:
            A(f"v_add_f32_dpp v{r}, v{r}, v{r} {st}")
    for st in ("row_bcast:15 row_mask:0xa bank_mask:0xf", "row_bcast:31 row_mask:0xc bank_mask:0xf"):
        if pad: A(f"s_nop {pad - 1}")
        for r in regs:
            A(f"v_add_f32_dpp v{r}, v{r}, v{r} {st}")
    A("s_nop 1")
    for i, r in enumerate(regs):
        A(f"v_readlane_b32 s{sdst + i}, v{r}, 63")


def gen_ln(A, name="ln_kernel"):
    A.begin_kernel(name)
    Lend = A.newlabel("Lend")
    A("s_cmp_ge_u32 s2, 256"); A(f"s_cbranch_scc1 {Lend}")
    A(f"s_load_dwordx2 s[32:33], s[0:1], {KA['q']}")
    A(f"s_load_dwordx2 s[34:35], s[0:1], {KA['ws']}")
    A("v_lshrrev_b32 v1, 6, v0"); A("v_and_b32 v2, 63, v0"); A("s_nop 0"); A("v_readfirstlane_b32 s16, v1")
    A(f"s_mov_b32 {MASK}, 0xffff0000")
    A("s_waitcnt lgkmcnt(0)")
    srd(A, 4, 32, 33, 4 << 20)
    srd_off(A, 8, 34, 35, WS_YP, 4 << 20)
    srd_off(A, 12, 34, 35, WS_MOD, 6144 * 4)
    srd_off(A, 20, 34, 35, WS_X1, 4 << 20)
    srd_off(A, 24, 34, 35, WS_H2, 4 << 20)
    A("s_lshl_b32 s17, s2, 3"); A("s_lshl_b32 s18, s16, 1"); A("s_add_u32 s17, s17, s18")
    A("s_lshl_b32 s17, s17, 11")
    A("v_lshlrev_b32 v3, 4, v2")
    A("v_add_u32 v4, s17, v3")
    XP, YP = 8, 24
    for r in range(2):
        for h in range(2):
            A(f"buffer_load_dwordx4 v[{XP + r*8 + h*4}:{XP + r*8 + h*4 + 3}], v4, s[4:7], 0 offen offset:{r * 2048 + h * 1024}")
    for r in range(2):
        for h in range(2):
            A(f"buffer_load_dwordx4 v[{YP + r*8 + h*4}:{YP + r*8 + h*4 + 3}], v4, s[8:11], 0 offen offset:{r * 2048 + h * 1024}")
    MV = 40
    A("v_lshlrev_b32 v5, 5, v2")
    for vec in range(5):
        A(f"s_mov_b32 s18, {vec * 4096}")
        for h in range(2):
            for q in range(2):
                r = MV + vec * 16 + h * 8 + q * 4
                A(f"buffer_load_dwordx4 v[{r}:{r+3}], v5, s[12:15], s18 offen offset:{h * 2048 + q * 16}")
    X = 120
    D = 152
    T = 184
    ST = 200
    A("s_waitcnt vmcnt(24)")
    for r in range(2):
        for i in range(8):
            unpack2(A, X + r * 16 + 2 * i, XP + r * 8 + i)

    def layernorm(src, dst):
        for r in range(2):
            A(f"v_pk_add_f32 v[{T + 2*r}:{T + 2*r + 1}], v[{src + r*16}:{src + r*16 + 1}], v[{src + r*16 + 2}:{src + r*16 + 3}]")
        for i in range(2, 8):
            for r in range(2):
                A(f"v_pk_add_f32 v[{T + 2*r}:{T + 2*r + 1}], v[{T + 2*r}:{T + 2*r + 1}], v[{src + r*16 + 2*i}:{src + r*16 + 2*i + 1}]")
        for r in range(2):
            A(f"v_add_f32 v{T + 2*r}, v{T + 2*r}, v{T + 2*r + 1}")
        wave_sum_multi(A, [T, T + 2], 44)
        A("s_nop 1")
        for r in range(2):
            A(f"v_mov_b32 v{ST + 2*r}, s{44 + r}")
            A(f"v_mul_f32 v{ST + 2*r}, 0x3a800000, v{ST + 2*r}")
        for r in range(2):
            for i in range(8):
                A(f"v_pk_add_f32 v[{dst + r*16 + 2*i}:{dst + r*16 + 2*i + 1}], v[{src + r*16 + 2*i}:{src + r*16 + 2*i + 1}], v[{ST + 2*r}:{ST + 2*r + 1}] op_sel_hi:[1,0] neg_lo:[0,1] neg_hi:[0,1]")
        for r in range(2):
            A(f"v_pk_mul_f32 v[{T + 2*r}:{T + 2*r + 1}], v[{dst + r*16}:{dst + r*16 + 1}], v[{dst + r*16}:{dst + r*16 + 1}]")
        for i in range(1, 8):
            for r in range(2):
                A(f"v_pk_fma_f32 v[{T + 2*r}:{T + 2*r + 1}], v[{dst + r*16 + 2*i}:{dst + r*16 + 2*i + 1}], v[{dst + r*16 + 2*i}:{dst + r*16 + 2*i + 1}], v[{T + 2*r}:{T + 2*r + 1}]")
        for r in range(2):
            A(f"v_add_f32 v{T + 2*r}, v{T + 2*r}, v{T + 2*r + 1}")
        wave_sum_multi(A, [T, T + 2], 44)
        A("s_nop 1")
        for r in range(2):
            A(f"v_mov_b32 v{ST + 4 + r}, s{44 + r}")
            A(f"v_mul_f32 v{ST + 4 + r}, 0x3a800000, v{ST + 4 + r}")
        rnd2(A, ST + 4, ST + 5, T)
        rnd2(A, ST, ST + 2, T)
        A(f"v_add_f32 v{ST + 4}, 0x3727c5ac, v{ST + 4}")
        A(f"v_add_f32 v{ST + 5}, 0x3727c5ac, v{ST + 5}")
        rnd2(A, ST + 4, ST + 5, T)
        A(f"v_sqrt_f32 v{ST + 4}, v{ST + 4}")
        A(f"v_sqrt_f32 v{ST + 5}, v{ST + 5}")
        A("s_nop 0")
        rnd2(A, ST + 4, ST + 5, T)
        A(f"v_rcp_f32 v{ST + 6}, v{ST + 4}")
        A(f"v_rcp_f32 v{ST + 8}, v{ST + 5}")
        A("s_nop 0")
        for r in range(2):
            for i in range(8):
                d = dst + r * 16 + 2 * i
                s_ = src + r * 16 + 2 * i
                A(f"v_pk_add_f32 v[{d}:{d+1}], v[{s_}:{s_+1}], v[{ST + 2*r}:{ST + 2*r + 1}] op_sel_hi:[1,0] neg_lo:[0,1] neg_hi:[0,1]")
                rnd2(A, d, d + 1, T + (i & 3))
                A(f"v_pk_mul_f32 v[{d}:{d+1}], v[{d}:{d+1}], v[{ST + 6 + 2*r}:{ST + 7 + 2*r}] op_sel_hi:[1,0]")
                rnd2(A, d, d + 1, T + 4 + (i & 3))

    layernorm(X, D)
    A("s_waitcnt vmcnt(0)")
    SA, CA, GA, SB, CB = [MV + 16 * i for i in range(5)]
    for base in (CA, CB):
        for i in range(8):
            r = base + 2 * i
            A(f"v_pk_add_f32 v[{r}:{r+1}], v[{r}:{r+1}], 1.0 op_sel_hi:[1,0]")
            rnd2(A, r, r + 1, T + (i & 3))
    for r in range(2):
        for i in range(8):
            d = D + r * 16 + 2 * i
            x = X + r * 16 + 2 * i
            t = T + (i & 3)
            u = T + 8 + 2 * (i & 3)
            A(f"v_pk_mul_f32 v[{d}:{d+1}], v[{d}:{d+1}], v[{CA + 2*i}:{CA + 2*i + 1}]")
            rnd2(A, d, d + 1, t)
            A(f"v_pk_add_f32 v[{d}:{d+1}], v[{d}:{d+1}], v[{SA + 2*i}:{SA + 2*i + 1}]")
            rnd2(A, d, d + 1, t)
            unpack2(A, u, YP + r * 8 + i)
            A(f"v_pk_mul_f32 v[{d}:{d+1}], v[{d}:{d+1}], v[{u}:{u+1}]")
            rnd2(A, d, d + 1, t)
            A(f"v_pk_mul_f32 v[{d}:{d+1}], v[{d}:{d+1}], v[{GA + 2*i}:{GA + 2*i + 1}]")
            rnd2(A, d, d + 1, t)
            A(f"v_pk_add_f32 v[{x}:{x+1}], v[{x}:{x+1}], v[{d}:{d+1}]")
            A(f"v_cvt_pk_bf16_f32 v{XP + r*8 + i}, v{x}, v{x+1}")
            unpack2(A, x, XP + r * 8 + i)
    for r in range(2):
        for h in range(2):
            A(f"buffer_store_dwordx4 v[{XP + r*8 + h*4}:{XP + r*8 + h*4 + 3}], v4, s[20:23], 0 offen offset:{r * 2048 + h * 1024}")
    layernorm(X, D)
    for r in range(2):
        for i in range(8):
            d = D + r * 16 + 2 * i
            t = T + (i & 3)
            A(f"v_pk_mul_f32 v[{d}:{d+1}], v[{d}:{d+1}], v[{CB + 2*i}:{CB + 2*i + 1}]")
            rnd2(A, d, d + 1, t)
            A(f"v_pk_add_f32 v[{d}:{d+1}], v[{d}:{d+1}], v[{SB + 2*i}:{SB + 2*i + 1}]")
            A(f"v_cvt_pk_bf16_f32 v{YP + r*8 + i}, v{d}, v{d+1}")
    PADK = 16
    A("v_lshrrev_b32 v5, 2, v2")
    A(f"v_mul_u32_u24 v5, {512 + PADK}, v5")
    A("v_and_b32 v6, 1, v2"); A("v_lshl_add_u32 v5, v6, 8, v5")
    A("v_bfe_u32 v6, v2, 1, 1"); A("v_lshl_add_u32 v5, v6, 3, v5")
    A("s_lshl_b32 s18, s16, 5")
    A("v_add_u32 v5, s18, v5")
    for r in range(2):
        for h in range(2):
            for e in range(2):
                src = YP + r * 8 + h * 4 + e * 2
                A(f"ds_write_b64 v5, v[{src}:{src+1}] offset:{h * 16 * (512 + PADK) + e * 128 + r * 16}")
    A("s_waitcnt lgkmcnt(0)")
    A("s_barrier")
    A("v_lshrrev_b32 v5, 5, v0")
    A(f"v_mul_u32_u24 v6, {PADK}, v5")
    A("v_lshl_add_u32 v6, v0, 4, v6")
    A("v_lshlrev_b32 v7, 10, v5")
    A("v_bfe_u32 v5, v0, 3, 2"); A("v_lshl_add_u32 v7, v5, 8, v7")
    A("v_and_b32 v5, 7, v0"); A("v_lshl_add_u32 v7, v5, 4, v7")
    A("s_lshr_b32 s18, s2, 1"); A("s_lshl_b32 s18, s18, 15")
    A("s_and_b32 s19, s2, 1"); A("s_lshl_b32 s19, s19, 7"); A("s_add_u32 s18, s18, s19")
    A("v_add_u32 v7, s18, v7")
    for j in range(4):
        A(f"ds_read_b128 v[{40 + 4*j}:{43 + 4*j}], v6 offset:{j * 8 * (512 + PADK)}")
    for j in range(4):
        A(f"s_waitcnt lgkmcnt({3 - j})")
        A(f"s_mov_b32 s19, {j * 8192}")
        A(f"buffer_store_dwordx4 v[{40 + 4*j}:{43 + 4*j}], v7, s[24:27], s19 offen")
    A.label(Lend); A("s_endpgm")
    A.end_kernel(name, 212, 0, 48, 256, 256, 32 * (512 + PADK))


def gen_conv(A, name="conv_kernel", prefetch=(1, 1, 1)):
    CSZ = 4416
    TCH = 4 * CSZ
    RKV = 4 * TCH
    RCH = 8192
    SIL = RKV + 4 * RCH
    GRED = SIL + 4096
    LDS = GRED + 8192
    OUTS = 4096 + 32
    A.begin_kernel(name)
    Lend = A.newlabel("Lend")
    A("s_cmp_ge_u32 s2, 256"); A(f"s_cbranch_scc1 {Lend}")
    A(f"s_load_dwordx4 s[44:47], s[0:1], {KA['k']}")
    A(f"s_load_dwordx4 s[48:51], s[0:1], {KA['shift']}")
    A(f"s_load_dwordx2 s[52:53], s[0:1], {KA['ssmD']}")
    A(f"s_load_dwordx4 s[56:59], s[0:1], {KA['w1']}")
    A(f"s_load_dwordx4 s[60:63], s[0:1], {KA['w2']}")
    A(f"s_load_dwordx2 s[64:65], s[0:1], {KA['wmod']}")
    A(f"s_load_dwordx2 s[66:67], s[0:1], {KA['ws']}")
    A("v_lshrrev_b32 v1, 6, v0"); A("v_and_b32 v2, 63, v0"); A("s_nop 0"); A("v_readfirstlane_b32 s16, v1")
    A(f"s_mov_b32 {MASK}, 0xffff0000")
    A("s_and_b32 s17, s2, 7"); A("s_lshl_b32 s17, s17, 7"); A("s_lshr_b32 s18, s2, 3"); A("s_lshl_b32 s18, s18, 2")
    A("s_add_u32 s17, s17, s18")
    A("s_waitcnt lgkmcnt(0)")
    srd(A, 4, 44, 45, 4 << 20)
    srd(A, 8, 46, 47, 4 << 20)
    A("s_add_u32 s18, s17, s16"); A("s_lshl_b32 s18, s18, 12")
    A("s_add_u32 s12, s50, s18"); A("s_addc_u32 s13, s51, 0"); A("s_and_b32 s13, s13, 0xffff")
    A("s_mov_b32 s14, 4096"); A("s_mov_b32 s15, 0x00020000")
    A("s_lshl_b32 s18, s17, 3")
    A("s_add_u32 s20, s48, s18"); A("s_addc_u32 s21, s49, 0")
    A("s_load_dwordx8 s[68:75], s[20:21], 0")
    A("s_lshl_b32 s18, s17, 1")
    A("s_add_u32 s20, s52, s18"); A("s_addc_u32 s21, s53, 0")
    A("s_load_dwordx2 s[76:77], s[20:21], 0")
    KR, VR = 8, 30
    A("v_lshlrev_b32 v3, 14, v0")
    A("s_lshl_b32 s18, s17, 1")
    A("v_add_u32 v3, s18, v3")
    for i in range(-3, 8):
        if i == 0:
            vo = 3
        else:
            A(f"v_add_u32 v4, {i * 2048 & 0xffffffff}, v3") if i > 0 else A(f"v_subrev_u32 v4, {-i * 2048}, v3")
            vo = 4
        r = KR + 2 * (i + 3)
        A(f"buffer_load_dwordx2 v[{r}:{r+1}], v{vo}, s[4:7], 0 offen")
        if i >= 0:
            r = VR + 2 * i
            A(f"buffer_load_dwordx2 v[{r}:{r+1}], v{vo}, s[8:11], 0 offen")
    ER = 48
    A("v_lshlrev_b32 v5, 4, v2")
    for j in range(4):
        for e in range(3):
            r = ER + j * 12 + e * 4
            A(f"buffer_load_dwordx4 v[{r}:{r+3}], v5, s[12:15], 0 offen offset:{j * 1024 + e * 4}")
    A("v_mov_b32 v6, 0")
    A("buffer_load_dwordx2 v[96:97], v6, s[12:15], 0 offen")
    n_crit_after = 0
    GV = 128
    Lpf = A.newlabel("Lpf"); Laux = A.newlabel("Laux")
    A("s_cmp_ge_u32 s2, 96"); A(f"s_cbranch_scc1 {Lpf}")
    srd(A, 24, 62, 63, 2048)
    srd(A, 28, 64, 65, 1024 * 12288)
    A("v_lshlrev_b32 v6, 3, v0")
    A("buffer_load_dwordx2 v[46:47], v6, s[24:27], 0 offen")
    A("v_lshrrev_b32 v6, 3, v0"); A("v_mul_u32_u24 v6, 12288, v6")
    A("v_and_b32 v7, 7, v0"); A("v_lshl_add_u32 v6, v7, 4, v6")
    A("s_lshl_b32 s18, s2, 7"); A("v_add_u32 v6, s18, v6")
    for j in range(32):
        A(f"s_mov_b32 s18, {j * 32 * 12288}")
        A(f"buffer_load_dwordx4 v[{GV + 4*j}:{GV + 4*j + 3}], v6, s[28:31], s18 offen")
    A("s_waitcnt vmcnt(32)")
    A(f"s_branch {Laux}")
    A.label(Lpf)
    A("s_sub_u32 s18, s2, 96"); A(f"s_mul_i32 s18, s18, {12 * 4096}")
    A("v_lshlrev_b32 v6, 4, v0"); A("v_add_u32 v6, s18, v6")
    npf = 0
    for bi, lo in enumerate((56, 58, 60)):
        if not prefetch[bi]: continue
        srd(A, 24, lo, lo + 1, 7340032)
        for j in range(12):
            A(f"s_mov_b32 s18, {j * 4096}")
            A(f"buffer_load_dwordx4 v[{GV + 4 * (npf % 32)}:{GV + 4 * (npf % 32) + 3}], v6, s[24:27], s18 offen")
            npf += 1
    A(f"s_waitcnt vmcnt({npf})")
    A.label(Laux)
    A("s_waitcnt lgkmcnt(0)")
    A(f"s_mul_i32 s18, s16, {TCH}")
    A("v_add_u32 v6, s18, v5")
    W = 100
    for j in range(4):
        e0, e1, e2 = ER + j * 12, ER + j * 12 + 4, ER + j * 12 + 8
        off = 128 + j * 1024
        for q in range(4):
            A(f"v_alignbit_b32 v{W + q}, v{e1 + q}, v{e0 + q}, 16")
            A(f"v_alignbit_b32 v{W + 4 + q}, v{e2 + q}, v{e1 + q}, 16")
        A(f"ds_write_b128 v6, v[{e0}:{e0+3}] offset:{off}")
        A(f"ds_write_b128 v6, v[{W}:{W+3}] offset:{off + CSZ}")
        A(f"ds_write_b128 v6, v[{e1}:{e1+3}] offset:{off + 2 * CSZ}")
        A(f"ds_write_b128 v6, v[{W+4}:{W+7}] offset:{off + 3 * CSZ}")
        A("s_nop 1")
    Z = 108
    for i in range(16): A(f"v_mov_b32 v{Z + i}, 0")
    A("v_cmp_eq_u32 vcc, 7, v2")
    A("v_lshlrev_b32 v100, 16, v96")
    A("v_alignbit_b32 v101, v97, v96, 16")
    A(f"v_cndmask_b32 v{Z + 7}, 0, v100, vcc")
    A(f"v_cndmask_b32 v{Z + 11}, 0, v96, vcc")
    A(f"v_cndmask_b32 v{Z + 14}, 0, v100, vcc")
    A(f"v_cndmask_b32 v{Z + 15}, 0, v101, vcc")
    A("v_cmp_gt_u32 vcc, 8, v2")
    A("s_and_saveexec_b64 s[22:23], vcc")
    for c in range(4):
        A(f"ds_write_b128 v6, v[{Z + 4*c}:{Z + 4*c + 3}] offset:{c * CSZ}")
    A("s_mov_b64 exec, s[22:23]")
    A(f"s_mul_i32 s18, s16, {RCH}"); A(f"s_add_u32 s18, s18, {RKV + 5120}")
    A("v_add_u32 v7, s18, v5")
    for j in range(3):
        A(f"ds_write_b128 v7, v[{Z}:{Z+3}] offset:{j * 1024}")
    for c in range(4):
        for j in range(4):
            src = 68 + 2 * c + (j >> 1)
            dst = 80 + (j * 2 + (c >> 1)) * 2 + (c & 1)
            if j & 1: A(f"s_and_b32 s{dst}, s{src}, 0xffff0000")
            else: A(f"s_lshl_b32 s{dst}, s{src}, 16")
    KF = 48
    A("s_nop 1")
    for i in range(11):
        for pc in range(2):
            unpack2(A, KF + i * 4 + pc * 2, KR + 2 * i + pc)
    KV = 8
    KVF = 92 + 16
    KVF = 96
    P, Q = 6, 4
    P, Q, TT = 92, 94, 7
    for i in range(8):
        for pc in range(2):
            d = KVF + i * 4 + pc * 2
            def kk(row): return KF + row * 4 + pc * 2
            def ww(j): return 80 + (j * 2 + pc) * 2
            A(f"v_pk_mul_f32 v[{d}:{d+1}], v[{kk(i)}:{kk(i)+1}], s[{ww(3)}:{ww(3)+1}]")
            rnd2(A, d, d + 1, TT)
            for j in (2, 1, 0):
                A(f"v_pk_mul_f32 v[{P}:{P+1}], v[{kk(i + 3 - j)}:{kk(i + 3 - j)+1}], s[{ww(j)}:{ww(j)+1}]")
                rnd2(A, P, P + 1, TT)
                A(f"v_pk_add_f32 v[{d}:{d+1}], v[{d}:{d+1}], v[{P}:{P+1}]")
                rnd2(A, d, d + 1, TT)
            unpack2(A, Q, VR + 2 * i + pc)
            A(f"v_pk_mul_f32 v[{d}:{d+1}], v[{d}:{d+1}], v[{Q}:{Q+1}]")
    A("v_lshlrev_b32 v3, 3, v0"); A("v_sub_u32 v3, 2040, v3")
    A("v_lshrrev_b32 v4, 6, v3"); A("v_mul_u32_u24 v4, 160, v4")
    A("v_and_b32 v3, 63, v3"); A("v_lshl_add_u32 v4, v3, 1, v4")
    for c in range(4):
        for j in range(4):
            A(f"v_cvt_pk_bf16_f32 v{8 + c*4 + j}, v{KVF + (7 - 2*j) * 4 + c}, v{KVF + (6 - 2*j) * 4 + c}")
        A(f"ds_write_b128 v4, v[{8 + c*4}:{11 + c*4}] offset:{RKV + c * RCH}" if RKV + c * RCH < 65536 else
          f"v_add_u32 v3, {RKV + c * RCH}, v4\n    ds_write_b128 v3, v[{8 + c*4}:{11 + c*4}]")
    Lns = A.newlabel("Lns")
    A("s_cmp_ge_u32 s2, 96"); A(f"s_cbranch_scc1 {Lns}")
    unpack2(A, 48, 46); unpack2(A, 50, 47)
    for i in range(4):
        A(f"v_mul_f32 v{52 + i}, 0xbfb8aa3b, v{48 + i}")
    for i in range(4): A(f"v_exp_f32 v{52 + i}, v{52 + i}")
    A("s_nop 0")
    for i in range(4): A(f"v_add_f32 v{52 + i}, 1.0, v{52 + i}")
    for i in range(4): A(f"v_rcp_f32 v{52 + i}, v{52 + i}")
    A("s_nop 0")
    for i in range(4): A(f"v_mul_f32 v{52 + i}, v{52 + i}, v{48 + i}")
    rnd2(A, 52, 53, 56); rnd2(A, 54, 55, 56)
    A("v_lshlrev_b32 v48, 2, v0"); A("v_and_b32 v49, 31, v48"); A("v_lshlrev_b32 v49, 7, v49")
    A("v_lshrrev_b32 v48, 5, v48"); A("v_lshl_add_u32 v49, v48, 2, v49")
    A(f"v_add_u32 v49, {SIL}, v49")
    for i in range(4): A(f"ds_write_b32 v49, v{52 + i} offset:{i * 128}")
    A.label(Lns)
    vTB, vKB = 3, 4
    A("v_and_b32 v6, 15, v2"); A("v_lshrrev_b32 v7, 4, v2")
    A("v_add_u32 v1, 1, v6"); A("v_and_b32 v1, 3, v1")
    A(f"v_mul_u32_u24 v{vTB}, {CSZ - 2}, v1")
    A(f"v_lshl_add_u32 v{vTB}, v6, 1, v{vTB}")
    A(f"v_lshl_add_u32 v{vTB}, v7, 4, v{vTB}")
    A(f"s_mul_i32 s18, s16, {TCH}"); A(f"s_add_u32 s18, s18, 2")
    A(f"v_add_u32 v{vTB}, s18, v{vTB}")
    A("v_sub_u32 v1, 15, v6"); A(f"v_mul_u32_u24 v{vKB}, 160, v1")
    A(f"v_lshl_add_u32 v{vKB}, v7, 4, v{vKB}")
    A(f"s_mul_i32 s18, s16, {RCH}"); A(f"s_add_u32 s18, s18, {RKV}")
    A(f"v_add_u32 v{vKB}, s18, v{vKB}")
    ACC = 8
    for i in range(32): A(f"v_mov_b32 v{ACC + i}, 0")
    A("s_waitcnt lgkmcnt(0)")
    A("s_barrier")
    NR = 10
    def tf(stream, tau): return stream * NR * 4 + ((tau + 2) % NR) * 4
    KVA = 2 * NR * 4
    def kf(p, which, kb): return KVA + p * 16 + (which * 2 + kb) * 4
    NAG = KVA + 32
    def rd_t(stream, tau):
        r = tf(stream, tau)
        off = 32 * (tau + 2)
        return [f"ds_read_b64 a[{r}:{r+1}], v{vTB} offset:{off}", f"ds_read_b64 a[{r+2}:{r+3}], v{vTB} offset:{off + 8}"]
    def rd_kv(p, j):
        res = []
        for which in range(2):
            dm = j + 16 * which
            for kb in range(2):
                r = kf(p, which, kb)
                res.append(f"ds_read_b128 a[{r}:{r+3}], v{vKB} offset:{160 * dm + 64 * (1 - kb)}")
        return res
    def reads_for(j, first=False):
        res = rd_kv(j & 1, j)
        for st in range(2):
            d = j + 16 * st
            for tau in range(4 * d - (2 if first else 0), 4 * d + 4):
                res += rd_t(st, tau)
        return res
    for x in reads_for(0, True): A(x)
    for j in range(16):
        A("s_waitcnt lgkmcnt(0)")
        mf = []
        p = j & 1
        for kb in range(2):
            for mb in range(4):
                t_lo = tf(0, 4 * j + mb - 2 * kb); t_hi = tf(1, 4 * (j + 16) + mb - 2 * kb)
                a1 = ACC + (mb * 2 + 1) * 4; a0 = ACC + (mb * 2) * 4
                k0 = kf(p, 0, kb); k1 = kf(p, 1, kb)
                mf.append(f"v_mfma_f32_16x16x32_bf16 v[{a1}:{a1+3}], a[{t_lo}:{t_lo+3}], a[{k0}:{k0+3}], v[{a1}:{a1+3}]")
                mf.append(f"v_mfma_f32_16x16x32_bf16 v[{a0}:{a0+3}], a[{t_lo}:{t_lo+3}], a[{k1}:{k1+3}], v[{a0}:{a0+3}]")
                mf.append(f"v_mfma_f32_16x16x32_bf16 v[{a1}:{a1+3}], a[{t_hi}:{t_hi+3}], a[{k1}:{k1+3}], v[{a1}:{a1+3}]")
        side = {}
        if j < 15:
            for i, x in enumerate(reads_for(j + 1)):
                side.setdefault(i, []).append(x)
        for x in interleave(mf, side): A(x)
    A("s_nop 7"); A("s_nop 7")
    A("s_barrier")
    A("v_mul_u32_u24 v1, 24, v7")
    A(f"v_sub_u32 v5, v{vKB}, v1"); A("v_add_u32 v5, 24, v5")
    KVR = 48
    for mb in range(4):
        for nb in range(2):
            r = KVR + (mb * 2 + nb) * 2
            A(f"ds_read_b64 v[{r}:{r+1}], v5 offset:{2560 * (1 - nb) + 32 * (3 - mb)}")
    A("s_lshr_b32 s18, s16, 1"); A("s_cmp_eq_u32 s18, 0"); A("s_cselect_b32 s78, s76, s77")
    A("s_and_b32 s18, s16, 1"); A("s_cmp_eq_u32 s18, 0")
    A("s_lshl_b32 s19, s78, 16"); A("s_and_b32 s78, s78, 0xffff0000"); A("s_cmp_eq_u32 s18, 0"); A("s_cselect_b32 s78, s19, s78")
    A("s_mov_b32 s79, s78")
    A("v_lshlrev_b32 v1, 7, v6"); A("v_lshl_add_u32 v1, v7, 3, v1")
    A(f"s_mul_i32 s18, s16, {OUTS}"); A("v_add_u32 v1, s18, v1")
    A("s_waitcnt lgkmcnt(0)")
    for mb in range(4):
        for nb in range(2):
            a_ = ACC + (mb * 2 + nb) * 4
            r = KVR + (mb * 2 + nb) * 2
            u = 64 + ((mb * 2 + nb) & 1) * 8
            rnd2(A, a_, a_ + 1, u + 4); rnd2(A, a_ + 2, a_ + 3, u + 5)
            A(f"v_and_b32 v{u}, {MASK}, v{r+1}"); A(f"v_lshlrev_b32 v{u+1}, 16, v{r+1}")
            A(f"v_and_b32 v{u+2}, {MASK}, v{r}"); A(f"v_lshlrev_b32 v{u+3}, 16, v{r}")
            A(f"v_pk_mul_f32 v[{u}:{u+1}], v[{u}:{u+1}], s[78:79]")
            A(f"v_pk_mul_f32 v[{u+2}:{u+3}], v[{u+2}:{u+3}], s[78:79]")
            rnd2(A, u, u + 1, u + 4); rnd2(A, u + 2, u + 3, u + 5)
            A(f"v_pk_add_f32 v[{a_}:{a_+1}], v[{a_}:{a_+1}], v[{u}:{u+1}]")
            A(f"v_pk_add_f32 v[{a_+2}:{a_+3}], v[{a_+2}:{a_+3}], v[{u+2}:{u+3}]")
            A(f"v_cvt_pk_bf16_f32 v{u+6}, v{a_}, v{a_+1}")
            A(f"v_cvt_pk_bf16_f32 v{u+7}, v{a_+2}, v{a_+3}")
            A(f"ds_write_b64 v1, v[{u+6}:{u+7}] offset:{2048 * nb + 32 * mb}")
    A("s_waitcnt lgkmcnt(0)")
    A("s_barrier")
    srd_off(A, 4, 66, 67, WS_YP, 4 << 20)
    A("v_lshlrev_b32 v1, 3, v0")
    for j in range(2):
        for c in range(4):
            r = 48 + (j * 4 + c) * 2
            A(f"ds_read_b64 v[{r}:{r+1}], v1 offset:{c * OUTS + j * 2048}")
    A("v_lshlrev_b32 v5, 13, v0")
    A("s_lshl_b32 s18, s17, 1"); A("v_add_u32 v5, s18, v5")
    A("s_mov_b32 s18, 0x05040100"); A("s_mov_b32 s19, 0x07060302")
    A("s_waitcnt lgkmcnt(0)")
    for j in range(2):
        b = 48 + j * 8
        o = 64 + j * 8
        for rr in range(4):
            sel = "s18" if rr % 2 == 0 else "s19"
            dw = rr >> 1
            A(f"v_perm_b32 v{o + 2*rr}, v{b + 2 + dw}, v{b + dw}, {sel}")
            A(f"v_perm_b32 v{o + 2*rr + 1}, v{b + 6 + dw}, v{b + 4 + dw}, {sel}")
        for rr in range(4):
            A(f"s_mov_b32 s20, {j * 1024 * 2048 + (rr >> 1) * 4096}")
            A(f"buffer_store_dwordx2 v[{o + 2*rr}:{o + 2*rr + 1}], v5, s[4:7], s20 offen offset:{(rr & 1) * 2048}")
    A("s_cmp_ge_u32 s2, 96"); A(f"s_cbranch_scc1 {Lend}")
    A("v_lshrrev_b32 v1, 3, v0"); A("v_lshlrev_b32 v1, 7, v1"); A(f"v_add_u32 v1, {SIL}, v1")
    SV = 80
    for q in range(8):
        A(f"ds_read_b128 v[{SV + 4*q}:{SV + 4*q + 3}], v1 offset:{16 * q}")
    GA_ = 112
    for i in range(8): A(f"v_mov_b32 v{GA_ + i}, 0")
    A("s_waitcnt vmcnt(0) lgkmcnt(0)")
    for j in range(32):
        sj = SV + j
        base = sj & ~1
        sel = "op_sel:[0,0,0] op_sel_hi:[1,0,1]" if sj % 2 == 0 else "op_sel:[0,1,0] op_sel_hi:[1,1,1]"
        for q in range(4):
            u = 120 + 2 * q
            unpack2(A, u, GV + 4 * j + q)
        for q in range(4):
            u = 120 + 2 * q
            A(f"v_pk_fma_f32 v[{GA_ + 2*q}:{GA_ + 2*q + 1}], v[{u}:{u+1}], v[{base}:{base+1}], v[{GA_ + 2*q}:{GA_ + 2*q + 1}] {sel}")
    A("v_lshlrev_b32 v1, 5, v0"); A(f"v_add_u32 v1, {GRED}, v1")
    A(f"ds_write_b128 v1, v[{GA_}:{GA_+3}]")
    A(f"ds_write_b128 v1, v[{GA_+4}:{GA_+7}] offset:16")
    A("s_waitcnt lgkmcnt(0)")
    A("s_barrier")
    A("s_cmp_lg_u32 s16, 0"); A(f"s_cbranch_scc1 {Lend}")
    A("v_lshlrev_b32 v1, 2, v2"); A(f"v_add_u32 v1, {GRED}, v1")
    for rg in range(32):
        A(f"ds_read_b32 v{80 + rg}, v1 offset:{rg * 256}")
    A("s_waitcnt lgkmcnt(0)")
    for st in (16, 8, 4, 2, 1):
        for i in range(st):
            A(f"v_add_f32 v{80 + i}, v{80 + i}, v{80 + i + st}")
    A("v_cvt_pk_bf16_f32 v81, v80, v80")
    A("v_lshlrev_b32 v81, 16, v81")
    srd_off(A, 8, 66, 67, WS_MOD, 6144 * 4)
    A("s_lshl_b32 s18, s2, 8")
    A("v_lshlrev_b32 v1, 2, v2"); A("v_add_u32 v1, s18, v1")
    A("buffer_store_dword v81, v1, s[8:11], 0 offen")
    A.label(Lend); A("s_endpgm")
    A.end_kernel(name, 256, NAG, 100, 256, 256, LDS)
```

```python
import sys, math

NAME = "adaLN_cond__ssm_conv_h3__glu_gated_swiglu__prompt"

WS_MOD = 0
WS_YP = 1 << 20
WS_X1 = WS_YP + (4 << 20)
WS_H2 = WS_X1 + (4 << 20)
WS_HH = WS_H2 + (4 << 20)
WS_END = WS_HH + 2048 * 3584 * 2

KA = dict(q=0, k=8, v=16, shift=24, ssmk=32, ssmD=40, bx=48, w1=56, w3=64, w2=72, c=80, wmod=88, out=96, dbg=104, ws=112)


class Asm:
    def __init__(self):
        self.lines = []
        self.launch = []
        self.kd = []
        self.uid = 0

    def __call__(self, s):
        self.lines.append("    " + s)

    def label(self, l):
        self.lines.append(l + ":")

    def newlabel(self, p="L"):
        self.uid += 1
        return f"{p}_{self.uid}"

    def begin_kernel(self, name):
        self.lines.append(f".globl {name}")
        self.lines.append(".p2align 8")
        self.lines.append(f".type {name},@function")
        self.lines.append(f"{name}:")

    def end_kernel(self, name, nvgpr, nagpr, nsgpr, grid, block, lds):
        acc_off = (nvgpr + 3) // 4 * 4
        nfv = acc_off + nagpr if nagpr else nvgpr
        self.kd.append(f""".p2align 6
.amdhsa_kernel {name}
  .amdhsa_next_free_vgpr {nfv}
  .amdhsa_next_free_sgpr {nsgpr}
  .amdhsa_accum_offset {acc_off}
  .amdhsa_group_segment_fixed_size 0
  .amdhsa_kernarg_size 120
  .amdhsa_user_sgpr_count 2
  .amdhsa_user_sgpr_kernarg_segment_ptr 1
  .amdhsa_system_sgpr_workgroup_id_x 1
  .amdhsa_float_denorm_mode_32 3
.end_amdhsa_kernel""")
        self.launch.append(f"; @launch kernel={name} grid=({grid},1,1) block=({block},1,1) lds={lds}")

    def text(self):
        out = list(self.launch)
        out.append('.amdgcn_target "amdgcn-amd-amdhsa--gfx950"')
        out.append(".text")
        out += self.lines
        out.append('.section .rodata,"a"')
        out += self.kd
        return "\n".join(out) + "\n"


def srd(A, d, lo, hi, nbytes):
    A(f"s_mov_b32 s{d}, s{lo}")
    A(f"s_and_b32 s{d+1}, s{hi}, 0xffff")
    A(f"s_mov_b32 s{d+2}, {nbytes}")
    A(f"s_mov_b32 s{d+3}, 0x00020000")


def srd_off(A, d, lo, hi, off, nbytes):
    A(f"s_add_u32 s{d}, s{lo}, {off}")
    A(f"s_addc_u32 s{d+1}, s{hi}, 0")
    A(f"s_and_b32 s{d+1}, s{d+1}, 0xffff")
    A(f"s_mov_b32 s{d+2}, {nbytes}")
    A(f"s_mov_b32 s{d+3}, 0x00020000")


def interleave(main, side_at):
    out = []
    for i, m in enumerate(main):
        out.append(m)
        out += side_at.get(i, [])
    return out


def gen_gemm(A, cfg):
    name = cfg['name']
    MT, WM, WN = cfg['MT'], cfg['WM'], cfg['WN']
    NSUB, NW = cfg['NSUB'], cfg['NW']
    K, RSG = cfg['K'], cfg['RSG']
    KS, R, PD, LAG = cfg['KS'], cfg['R'], cfg['PD'], cfg['LAG']
    fs, fbits = cfg['fs'], cfg['fbits']
    fm = (1 << fbits) - 1
    KBT = K // 32
    S = KBT
    T = S // KS
    RS = NW * 2
    CPR = RS // 16
    WT_BYTES = 32 * RS
    assert WT_BYTES % 1024 == 0
    ipt = WT_BYTES // 1024
    ACT_BYTES = MT * 64
    SUB_BYTES = ACT_BYTES + NSUB * WT_BYTES
    SLOT = KS * SUB_BYTES
    LDS = R * SLOT
    assert LDS <= 163840, LDS
    NWAVE = 4
    assert WM * WN == NWAVE
    MBW = MT // 16 // WM
    FBW = NW // 16 // WN
    nA = MT // 16 // NWAVE
    assert (NSUB * ipt) % NWAVE == 0
    nW = NSUB * ipt // NWAVE
    wps = NWAVE // NSUB
    assert ipt % nW == 0 or True
    n_dma = KS * (nA + nW)
    NCLS = min(1 << fbits, FBW)
    for b in range(NW // 16):
        for k0 in (0, 8, 16, 24):
            segs = set(((k * RS + 32 * (b ^ ((k >> fs) & fm))) // 32) % 8 for k in range(k0, k0 + 8))
            assert len(segs) == 8, (b, k0, segs)
    assert fs + fbits <= 4
    NACC = NSUB * FBW * MBW * 4
    def acc(sub, fb, mb):
        return ((sub * FBW + fb) * MBW + mb) * 4
    vn = [NACC]
    def valloc(n=1):
        r = vn[0]; vn[0] += n; return r
    vLane = valloc()
    if vn[0] % 2: valloc()
    ubase = vn[0]
    vT0 = valloc(); vT1 = valloc(); vT2 = valloc(); vT3 = valloc()
    vWoff = valloc(nW); vAoff = valloc(nA)
    vX0 = valloc(); vW0 = valloc(NCLS)
    vXc = valloc(); vWc = valloc(NCLS)
    loop_end = vn[0]
    vn[0] = ubase
    vE = valloc(8)
    vE2 = valloc(cfg.get('etemps', 16))
    NV = max(vn[0], loop_end)
    assert NV <= 256, NV
    NSET = cfg.get("NSET", PD + 1)
    SETSZ = (NSUB * FBW + MBW) * 4
    def wfrag(p, sub, fb): return p * SETSZ + (sub * FBW + fb) * 4
    def xfrag(p, mb): return p * SETSZ + (NSUB * FBW + mb) * 4
    NA_ = NSET * SETSZ
    assert NA_ <= 256
    sW, sX, sO = 4, 8, 12
    sWave, sKW, sKX, sCnt, sWB, sAB, sRd, sWr, sT0, sT1, sMT, sNT, sWM, sWN, sKXe, sTK = range(16, 32)
    sP = 32
    sE = 48

    A.begin_kernel(name)
    Lend = A.newlabel("Lend")
    A(f"s_cmp_ge_u32 s2, 256")
    A(f"s_cbranch_scc1 {Lend}")
    wk = cfg['wptr']
    if cfg.get('stamp'): A("s_memtime s[56:57]"); A("s_memrealtime s[64:65]")
    A(f"s_load_dwordx2 s[{sP}:{sP+1}], s[0:1], {wk[0]}")
    A(f"s_load_dwordx2 s[{sP+2}:{sP+3}], s[0:1], {wk[-1]}")
    A(f"s_load_dwordx2 s[{sP+4}:{sP+5}], s[0:1], {KA['ws']}")
    A(f"s_load_dwordx2 s[{sP+6}:{sP+7}], s[0:1], {KA['out']}")
    A(f"v_lshrrev_b32 v{vT0}, 6, v0")
    A(f"v_and_b32 v{vLane}, 63, v0")
    A(f"s_nop 0")
    A(f"v_readfirstlane_b32 s{sWave}, v{vT0}")
    xm_bits, = (cfg['xm_bits'],)
    qm_bits = cfg['qm_bits']
    A(f"s_and_b32 s{sT0}, s2, 7")
    A(f"s_lshr_b32 s{sT1}, s2, 3")
    A(f"s_and_b32 s{sMT}, s{sT0}, {(1 << xm_bits) - 1}")
    A(f"s_lshl_b32 s{sMT}, s{sMT}, {qm_bits}")
    A(f"s_and_b32 s{sTK}, s{sT1}, {(1 << qm_bits) - 1}")
    A(f"s_add_u32 s{sMT}, s{sMT}, s{sTK}")
    A(f"s_lshr_b32 s{sNT}, s{sT0}, {xm_bits}")
    A(f"s_lshl_b32 s{sNT}, s{sNT}, {5 - qm_bits}")
    A(f"s_lshr_b32 s{sTK}, s{sT1}, {qm_bits}")
    A(f"s_add_u32 s{sNT}, s{sNT}, s{sTK}")
    A(f"s_lshr_b32 s{sWM}, s{sWave}, {int(math.log2(WN))}")
    A(f"s_and_b32 s{sWN}, s{sWave}, {WN - 1}")
    A(f"s_waitcnt lgkmcnt(0)")
    if NSUB == 2:
        A(f"s_cmp_ge_u32 s{sWave}, {wps}")
        A(f"s_cselect_b32 s{sT0}, s{sP+2}, s{sP}")
        A(f"s_cselect_b32 s{sT1}, s{sP+3}, s{sP+1}")
        srd(A, sW, sT0, sT1, K * RSG)
    else:
        srd(A, sW, sP, sP + 1, K * RSG)
    srd_off(A, sX, sP + 4, sP + 5, cfg['act_off'], 2048 * K * 2)
    A(f"s_and_b32 s{sT0}, s{sWave}, {wps - 1}")
    A(f"s_mul_i32 s{sT0}, s{sT0}, {nW * 64}")
    A(f"s_mul_i32 s{sT1}, s{sNT}, {RS}")
    magic = (65536 + CPR - 1) // CPR
    for Q in range(ipt * 64):
        assert (Q * magic) >> 16 == Q // CPR
    for j in range(nW):
        A(f"v_add_u32 v{vT0}, s{sT0}, v{vLane}")
        if j: A(f"v_add_u32 v{vT0}, {j * 64}, v{vT0}")
        A(f"v_mul_u32_u24 v{vT1}, {magic}, v{vT0}")
        A(f"v_lshrrev_b32 v{vT1}, 16, v{vT1}")
        A(f"v_mul_u32_u24 v{vT2}, {CPR}, v{vT1}")
        A(f"v_sub_u32 v{vT2}, v{vT0}, v{vT2}")
        A(f"v_lshrrev_b32 v{vT3}, {fs}, v{vT1}")
        A(f"v_and_b32 v{vT3}, {fm}, v{vT3}")
        A(f"v_lshlrev_b32 v{vT3}, 1, v{vT3}")
        A(f"v_xor_b32 v{vT2}, v{vT2}, v{vT3}")
        A(f"v_lshlrev_b32 v{vT2}, 4, v{vT2}")
        A(f"v_mul_u32_u24 v{vT1}, {RSG}, v{vT1}")
        A(f"v_add3_u32 v{vWoff + j}, v{vT1}, v{vT2}, s{sT1}")
    A(f"s_mul_i32 s{sT0}, s{sMT}, {MT // 16}")
    A(f"s_mul_i32 s{sT1}, s{sWave}, {nA}")
    A(f"s_add_u32 s{sT0}, s{sT0}, s{sT1}")
    A(f"s_mul_i32 s{sT0}, s{sT0}, {KBT * 1024}")
    A(f"v_lshlrev_b32 v{vT0}, 4, v{vLane}")
    for j in range(nA):
        A(f"v_add_u32 v{vAoff + j}, s{sT0}, v{vT0}")
        if j: A(f"v_add_u32 v{vAoff + j}, {j * KBT * 1024}, v{vAoff + j}")
    A(f"s_mul_i32 s{sWB}, s{sWave}, {nW * 1024}")
    A(f"s_add_u32 s{sWB}, s{sWB}, {ACT_BYTES}")
    A(f"s_mul_i32 s{sAB}, s{sWave}, {nA * 1024}")
    A(f"s_mul_i32 s{sT0}, s{sWM}, {MBW * 1024}")
    A(f"v_lshl_add_u32 v{vX0}, v{vLane}, 4, s{sT0}")
    A(f"v_lshrrev_b32 v{vT0}, 2, v{vLane}")
    A(f"v_and_b32 v{vT1}, 3, v{vLane}")
    A(f"v_mul_u32_u24 v{vT2}, {RS}, v{vT0}")
    A(f"v_lshl_add_u32 v{vT2}, v{vT1}, 3, v{vT2}")
    A(f"v_add_u32 v{vT2}, {ACT_BYTES}, v{vT2}")
    A(f"v_lshrrev_b32 v{vT3}, {fs}, v{vT0}")
    A(f"v_and_b32 v{vT3}, {fm}, v{vT3}")
    A(f"s_mul_i32 s{sT0}, s{sWN}, {FBW}")
    for c in range(NCLS):
        A(f"s_add_u32 s{sT1}, s{sT0}, {c}")
        A(f"v_xor_b32 v{vT1}, s{sT1}, v{vT3}")
        A(f"v_lshl_add_u32 v{vW0 + c}, v{vT1}, 5, v{vT2}")

    def dma_instrs(u, slot_s, slot_const, kW_s, kX_s):
        res = []
        for j in range(nA):
            cst = slot_const + u * SUB_BYTES + j * 1024
            if slot_s is None:
                m0 = [f"s_add_u32 m0, s{sAB}, {cst}"]
            else:
                m0 = [f"s_add_u32 s{sTK}, s{sAB}, s{slot_s}", f"s_add_u32 m0, s{sTK}, {cst}"]
            res.append((m0, f"buffer_load_dwordx4 v{vAoff + j}, s[{sX}:{sX+3}], s{kX_s} offen lds"))
        for j in range(nW):
            cst = slot_const + u * SUB_BYTES + j * 1024
            if slot_s is None:
                m0 = [f"s_add_u32 m0, s{sWB}, {cst}"]
            else:
                m0 = [f"s_add_u32 s{sTK}, s{sWB}, s{slot_s}", f"s_add_u32 m0, s{sTK}, {cst}"]
            res.append((m0, f"buffer_load_dwordx4 v{vWoff + j}, s[{sW}:{sW+3}], s{kW_s} offen lds"))
        return res

    def ds_reads(p, u, vX, vW, extra=0):
        res = []
        for mb in range(MBW):
            r = xfrag(p, mb)
            res.append(f"ds_read_b128 a[{r}:{r+3}], v{vX} offset:{extra + u * SUB_BYTES + mb * 1024}")
        for sub in range(NSUB):
            for fb in range(FBW):
                cls = fb % NCLS
                r = wfrag(p, sub, fb)
                off = extra + u * SUB_BYTES + sub * WT_BYTES + 32 * (fb - cls)
                assert off + 16 * RS < 65536
                res.append(f"ds_read_b64_tr_b16 a[{r}:{r+1}], v{vW + cls} offset:{off}")
                res.append(f"ds_read_b64_tr_b16 a[{r+2}:{r+3}], v{vW + cls} offset:{off + 16 * RS}")
        return res

    t0 = (PD - 1) // KS
    assert t0 <= LAG
    n_pro = t0 + R - LAG
    for st in range(n_pro):
        for u in range(KS):
            A(f"s_mov_b32 s{sT0}, {(st * KS + u) * 32 * RSG}")
            A(f"s_mov_b32 s{sT1}, {(st * KS + u) * 1024}")
            for m0, d in dma_instrs(u, None, (st % R) * SLOT, sT0, sT1):
                for x in m0: A(x)
                A("s_nop 0")
                A(d)
    A(f"s_mov_b32 s{sKW}, {n_pro * KS * 32 * RSG}")
    A(f"s_mov_b32 s{sKX}, {n_pro * KS * 1024}")
    for i in range(NACC):
        A(f"v_mov_b32 v{i}, 0")
    nst = t0 + 1
    A(f"s_waitcnt vmcnt({n_dma * (n_pro - nst)})")
    A("s_barrier")
    for s in range(PD):
        st, u = s // KS, s % KS
        if st == 0:
            for x in ds_reads(s % NSET, u, vX0, vW0): A(x)
        else:
            A(f"v_add_u32 v{vXc}, {st * SLOT}, v{vX0}")
            for c in range(NCLS): A(f"v_add_u32 v{vWc + c}, {st * SLOT}, v{vW0 + c}")
            for x in ds_reads(s % NSET, u, vXc, vWc): A(x)
    A(f"s_mov_b32 s{sRd}, {t0 * SLOT}")
    A(f"v_add_u32 v{vXc}, {t0 * SLOT}, v{vX0}")
    for c in range(NCLS): A(f"v_add_u32 v{vWc + c}, {t0 * SLOT}, v{vW0 + c}")
    UN = KS * NSET // math.gcd(KS, NSET)
    assert S % UN == 0, (S, UN)
    A(f"s_mov_b32 s{sCnt}, {S // UN}")
    if cfg.get('stamp'): A("s_waitcnt lgkmcnt(0)"); A("s_memtime s[58:59]"); A("s_waitcnt lgkmcnt(0)")
    Lloop = A.newlabel("Lloop")
    A.label(Lloop)
    nDS = MBW + 2 * NSUB * FBW
    for s in range(UN):
        p = s % NSET
        pr = (s + PD) % NSET
        ph = (s + PD) % KS
        pre = []
        if ph == 0:
            lg = 0 if LAG == 0 else min(15, nDS * (PD - 1))
            pre.append(f"s_waitcnt vmcnt({n_dma * (R - LAG - 2)}) lgkmcnt({lg})")
            pre.append("s_barrier")
            if LAG == 0:
                pre.append(f"s_mov_b32 s{sWr}, s{sRd}")
            else:
                pre.append(f"s_sub_u32 s{sWr}, s{sRd}, {SLOT}")
                pre.append(f"s_cmp_eq_u32 s{sRd}, 0")
                pre.append(f"s_cselect_b32 s{sWr}, {(R - 1) * SLOT}, s{sWr}")
            pre.append(f"s_add_u32 s{sRd}, s{sRd}, {SLOT}")
            pre.append(f"s_cmp_eq_u32 s{sRd}, {R * SLOT}")
            pre.append(f"s_cselect_b32 s{sRd}, 0, s{sRd}")
            pre.append(f"v_add_u32 v{vXc}, s{sRd}, v{vX0}")
            for c in range(NCLS): pre.append(f"v_add_u32 v{vWc + c}, s{sRd}, v{vW0 + c}")
        else:
            pre.append(f"s_waitcnt lgkmcnt({min(15, nDS * (PD - 1))})")
        pre2 = []
        if ph:
            pre2.append(f"s_add_u32 s{sT0}, s{sKW}, {ph * 32 * RSG}")
            pre2.append(f"s_add_u32 s{sT1}, s{sKX}, {ph * 1024}")
        else:
            pre2.append(f"s_mov_b32 s{sT0}, s{sKW}")
            pre2.append(f"s_mov_b32 s{sT1}, s{sKX}")
        pre2.append(f"s_cmp_ge_u32 s{sT1}, {KBT * 1024}")
        pre2.append(f"s_cselect_b32 s{sT1}, 0x40000000, s{sT1}")
        if ph == KS - 1:
            pre2.append(f"s_add_u32 s{sKW}, s{sKW}, {KS * 32 * RSG}")
            pre2.append(f"s_add_u32 s{sKX}, s{sKX}, {KS * 1024}")
        mf = []
        for sub in range(NSUB):
            for fb in range(FBW):
                for mb in range(MBW):
                    a_ = acc(sub, fb, mb); w = wfrag(p, sub, fb); x = xfrag(p, mb)
                    mf.append(f"v_mfma_f32_16x16x32_bf16 v[{a_}:{a_+3}], a[{w}:{w+3}], a[{x}:{x+3}], v[{a_}:{a_+3}]")
        M = len(mf)
        ds = ds_reads(pr, ph, vXc, vWc)
        dm = dma_instrs(ph, sWr, 0, sT0, sT1)
        if cfg.get('no_ds'): ds = []
        if cfg.get('no_dma'): dm = []
        if cfg.get('no_dma_a'): dm = dm[nA:] + dm[nA:nA + nA]
        if cfg.get('no_dma_w'): dm = (dm[:nA] * 16)[:nA + nW]
        if cfg.get('no_mfma'): mf = ["s_nop 0"] * M
        if cfg.get('no_bar'): pre = [x for x in pre if x != "s_barrier"]
        side = {}
        def put(g, ins):
            side.setdefault(min(g, M - 1), []).extend(ins)
        dsr = cfg.get('ds_rate', 1)
        for i, d in enumerate(ds):
            put(i // dsr, [d])
        put(0, pre2)
        g0 = cfg.get('dma_g0', 2)
        span = max(1, (M - g0 - 2) // max(1, len(dm)))
        for i, (m0, d) in enumerate(dm):
            g = g0 + i * span
            put(g, m0)
            if g + 1 <= M - 1:
                put(g + 1, [d])
            else:
                put(g, ["s_nop 0", d])
        for x in pre: A(x)
        for x in interleave(mf, side): A(x)
    A(f"s_sub_u32 s{sCnt}, s{sCnt}, 1")
    A(f"s_cmp_lg_u32 s{sCnt}, 0")
    A(f"s_cbranch_scc1 {Lloop}")
    A("s_waitcnt vmcnt(0) lgkmcnt(0)")
    A("s_nop 7")
    A("s_nop 7")
    env = dict(locals())
    if cfg.get('stamp'): A("s_memtime s[60:61]"); A("s_waitcnt lgkmcnt(0)")
    cfg['epilogue'](A, env)
    if cfg.get('stamp'):
        A("s_waitcnt vmcnt(0)")
        A("s_memtime s[62:63]")
        A("s_memrealtime s[66:67]")
        A(f"s_load_dwordx2 s[{sP}:{sP+1}], s[0:1], {KA['dbg']}")
        A("s_waitcnt lgkmcnt(0)")
        srd(A, sO, sP, sP + 1, 256)
        A("s_sub_u32 s58, s58, s56"); A("s_sub_u32 s60, s60, s56"); A("s_sub_u32 s62, s62, s56")
        A("v_mov_b32 v0, s58"); A("v_mov_b32 v1, s60"); A("v_mov_b32 v2, s62"); A("s_sub_u32 s66, s66, s64"); A("v_mov_b32 v3, s66")
        A(f"s_and_b32 s{sT0}, s2, 63")
        A(f"s_add_u32 s{sT0}, s{sT0}, s{sWave}")
        A(f"s_cmp_lg_u32 s{sT0}, 0")
        A(f"s_cbranch_scc1 {Lend}")
        A(f"s_lshr_b32 s{sT0}, s2, 6")
        A(f"s_lshl_b32 s{sT0}, s{sT0}, 4")
        A(f"v_mov_b32 v4, s{sT0}")
        A(f"buffer_store_dwordx4 v[0:3], v4, s[{sO}:{sO+3}], 0 offen")
    A.label(Lend)
    A("s_endpgm")
    A.end_kernel(name, NV, NA_, 72, 256, 256, LDS)


def epi_gemm1(A, e):
    g = e
    acc, FBW, MBW = g['acc'], g['FBW'], g['MBW']
    sO, sP, sT0, sT1, sMT, sNT, sWM, sWN, vLane, vE, vE2, sE = [g[k] for k in
        "sO sP sT0 sT1 sMT sNT sWM sWN vLane vE vE2 sE".split()]
    faithful = g['cfg'].get('faithful', True)
    srd_off(A, sO, sP + 4, sP + 5, WS_HH, 2048 * 3584 * 2)
    A(f"s_mul_i32 s{sT0}, s{sNT}, 14")
    A(f"s_mul_i32 s{sT1}, s{sWN}, 7")
    A(f"s_add_u32 s{sT0}, s{sT0}, s{sT1}")
    A(f"s_lshl_b32 s{sT1}, s{sMT}, 3")
    A(f"s_lshl_b32 s{sE}, s{sWM}, 2")
    A(f"s_add_u32 s{sT1}, s{sT1}, s{sE}")
    A(f"s_mul_i32 s{sT1}, s{sT1}, {112 * 1024}")
    A(f"s_mov_b32 s{sE+2}, 0xbfb8aa3b")
    A(f"s_mov_b32 s{sE+3}, 0xbfb8aa3b")
    A(f"s_mov_b32 s{sE+4}, 0xffff0000")
    for fb in range(FBW):
        A(f"s_add_u32 s{sE}, s{sT0}, {fb}")
        A(f"s_lshr_b32 s{sE+1}, s{sE}, 1")
        A(f"s_lshl_b32 s{sE+1}, s{sE+1}, 10")
        A(f"s_and_b32 s{sE}, s{sE}, 1")
        A(f"s_lshl_b32 s{sE}, s{sE}, 3")
        A(f"s_add_u32 s{sE}, s{sE}, s{sE+1}")
        A(f"s_add_u32 s{sE}, s{sE}, s{sT1}")
        A(f"v_lshl_add_u32 v{vE}, v{vLane}, 4, s{sE}")
        for mb in range(MBW):
            G = acc(0, fb, mb); U = acc(1, fb, mb)
            t = vE2 + (mb % 2) * 8
            if faithful:
                for h in range(2):
                    A(f"v_cvt_pk_bf16_f32 v{t}, v{G+2*h}, v{G+2*h+1}")
                    A(f"v_cvt_pk_bf16_f32 v{t+1}, v{U+2*h}, v{U+2*h+1}")
                    A(f"v_lshlrev_b32 v{G+2*h}, 16, v{t}")
                    A(f"v_and_b32 v{G+2*h+1}, s{sE+4}, v{t}")
                    A(f"v_lshlrev_b32 v{U+2*h}, 16, v{t+1}")
                    A(f"v_and_b32 v{U+2*h+1}, s{sE+4}, v{t+1}")
            for h in range(2):
                A(f"v_pk_mul_f32 v[{t+2*h}:{t+2*h+1}], v[{G+2*h}:{G+2*h+1}], s[{sE+2}:{sE+3}]")
            for i in range(4):
                A(f"v_exp_f32 v{t+i}, v{t+i}")
            for h in range(2):
                A(f"v_pk_add_f32 v[{t+2*h}:{t+2*h+1}], v[{t+2*h}:{t+2*h+1}], 1.0 op_sel_hi:[1,0]")
            for i in range(4):
                A(f"v_rcp_f32 v{t+i}, v{t+i}")
            for h in range(2):
                A(f"v_pk_mul_f32 v[{t+2*h}:{t+2*h+1}], v[{t+2*h}:{t+2*h+1}], v[{G+2*h}:{G+2*h+1}]")
            if faithful:
                for h in range(2):
                    A(f"v_cvt_pk_bf16_f32 v{t+4+h}, v{t+2*h}, v{t+2*h+1}")
                for h in range(2):
                    A(f"v_lshlrev_b32 v{t+2*h}, 16, v{t+4+h}")
                    A(f"v_and_b32 v{t+2*h+1}, s{sE+4}, v{t+4+h}")
            for h in range(2):
                A(f"v_pk_mul_f32 v[{t+2*h}:{t+2*h+1}], v[{t+2*h}:{t+2*h+1}], v[{U+2*h}:{U+2*h+1}]")
            A(f"v_cvt_pk_bf16_f32 v{t+6}, v{t}, v{t+1}")
            A(f"v_cvt_pk_bf16_f32 v{t+7}, v{t+2}, v{t+3}")
            A(f"s_mov_b32 s{sE+5}, {mb * 112 * 1024}")
            A(f"buffer_store_dwordx2 v[{t+6}:{t+7}], v{vE}, s[{sO}:{sO+3}], s{sE+5} offen")


def epi_gemm2(A, e):
    g = e
    acc, FBW, MBW, MT, NW = g['acc'], g['FBW'], g['MBW'], g['MT'], g['NW']
    sO, sP, sT0, sT1, sMT, sNT, sWM, sWN, vLane, vE, vE2, sE, sX, sW = [g[k] for k in
        "sO sP sT0 sT1 sMT sNT sWM sWN vLane vE vE2 sE sX sW".split()]
    srd(A, sO, sP + 6, sP + 7, 2048 * 1024 * 2)
    srd_off(A, sX, sP + 4, sP + 5, WS_X1, 2048 * 1024 * 2)
    srd_off(A, sW, sP + 4, sP + 5, WS_MOD, 6144 * 4)
    A(f"s_mul_i32 s{sT0}, s{sNT}, {NW}")
    A(f"s_mul_i32 s{sE}, s{sWN}, {FBW * 16}")
    A(f"s_add_u32 s{sT0}, s{sT0}, s{sE}")
    A(f"s_mul_i32 s{sT1}, s{sMT}, {MT}")
    A(f"s_mul_i32 s{sE}, s{sWM}, {MBW * 16}")
    A(f"s_add_u32 s{sT1}, s{sT1}, s{sE}")
    A(f"s_mov_b32 s{sE+4}, 0xffff0000")
    A(f"v_lshrrev_b32 v{vE}, 4, v{vLane}")
    A(f"v_lshlrev_b32 v{vE}, 2, v{vE}")
    A(f"v_add_u32 v{vE}, s{sT0}, v{vE}")
    A(f"v_and_b32 v{vE+1}, 15, v{vLane}")
    A(f"v_add_u32 v{vE+1}, s{sT1}, v{vE+1}")
    A(f"v_lshlrev_b32 v{vE+1}, 11, v{vE+1}")
    A(f"v_lshl_add_u32 v{vE+1}, v{vE}, 1, v{vE+1}")
    A(f"v_lshlrev_b32 v{vE}, 2, v{vE}")
    A(f"v_add_u32 v{vE}, {5 * 4096}, v{vE}")
    gbr = vE2
    xr = vE2 + FBW * 4
    for fb in range(FBW):
        A(f"buffer_load_dwordx4 v[{gbr+4*fb}:{gbr+4*fb+3}], v{vE}, s[{sW}:{sW+3}], 0 offen offset:{fb * 64}")
    for fb in range(FBW):
        for mb in range(MBW):
            r = xr + (fb * MBW + mb) * 2
            A(f"s_mov_b32 s{sE}, {mb * 16 * 2048}")
            A(f"buffer_load_dwordx2 v[{r}:{r+1}], v{vE+1}, s[{sX}:{sX+3}], s{sE} offen offset:{fb * 32}")
    A("s_waitcnt vmcnt(0)")
    t = vE + 2
    for fb in range(FBW):
        for mb in range(MBW):
            a_ = acc(0, fb, mb)
            r = xr + (fb * MBW + mb) * 2
            for h in range(2):
                A(f"v_cvt_pk_bf16_f32 v{t}, v{a_+2*h}, v{a_+2*h+1}")
                A(f"v_lshlrev_b32 v{a_+2*h}, 16, v{t}")
                A(f"v_and_b32 v{a_+2*h+1}, s{sE+4}, v{t}")
                A(f"v_pk_mul_f32 v[{a_+2*h}:{a_+2*h+1}], v[{a_+2*h}:{a_+2*h+1}], v[{gbr+4*fb+2*h}:{gbr+4*fb+2*h+1}]")
                A(f"v_cvt_pk_bf16_f32 v{t}, v{a_+2*h}, v{a_+2*h+1}")
                A(f"v_lshlrev_b32 v{a_+2*h}, 16, v{t}")
                A(f"v_and_b32 v{a_+2*h+1}, s{sE+4}, v{t}")
                A(f"v_lshlrev_b32 v{t}, 16, v{r+h}")
                A(f"v_and_b32 v{t+1}, s{sE+4}, v{r+h}")
                A(f"v_add_f32 v{a_+2*h}, v{a_+2*h}, v{t}")
                A(f"v_add_f32 v{a_+2*h+1}, v{a_+2*h+1}, v{t+1}")
                A(f"v_cvt_pk_bf16_f32 v{r+h}, v{a_+2*h}, v{a_+2*h+1}")
            A(f"s_mov_b32 s{sE}, {mb * 16 * 2048}")
            A(f"buffer_store_dwordx2 v[{r}:{r+1}], v{vE+1}, s[{sO}:{sO+3}], s{sE} offen offset:{fb * 32}")


def gen_prefetch(A, name="pf_kernel"):
    A.begin_kernel(name)
    Lend = A.newlabel("Lend")
    A("s_cmp_ge_u32 s2, 256"); A(f"s_cbranch_scc1 {Lend}")
    A(f"s_load_dwordx4 s[32:35], s[0:1], {KA['w1']}")
    A(f"s_load_dwordx2 s[36:37], s[0:1], {KA['w2']}")
    A("s_waitcnt lgkmcnt(0)")
    srd(A, 4, 32, 33, 7340032); srd(A, 8, 34, 35, 7340032); srd(A, 12, 36, 37, 7340032)
    A("s_mul_i32 s16, s2, 28672")
    A("v_lshlrev_b32 v1, 4, v0")
    A("v_add_u32 v1, s16, v1")
    r = 4
    for sr in (4, 8, 12):
        for j in range(7):
            A(f"s_mov_b32 s17, {j * 4096}")
            A(f"buffer_load_dwordx4 v[{r}:{r+3}], v1, s[{sr}:{sr+3}], s17 offen")
            r += 4
    A("s_waitcnt vmcnt(0)")
    A.label(Lend); A("s_endpgm")
    A.end_kernel(name, r, 0, 48, 256, 256, 0)


GEMM1 = dict(name="gemm1_kernel", MT=128, WM=2, WN=2, NSUB=2, NW=224, K=1024, RSG=7168, KS=1, R=4, PD=1, LAG=0,
             fs=2, fbits=1, wptr=[KA['w1'], KA['w3']], act_off=WS_H2, xm_bits=1, qm_bits=3, epilogue=epi_gemm1,
             etemps=16)
GEMM2 = dict(name="gemm2_kernel", MT=128, WM=2, WN=2, NSUB=1, NW=64, K=3584, RSG=2048, KS=2, R=6, PD=2, LAG=1,
             fs=1, fbits=2, wptr=[KA['w2']], act_off=WS_HH, xm_bits=2, qm_bits=2, epilogue=epi_gemm2,
             etemps=32, dma_g0=0, NSET=4)

if __name__ == "__main__":
    import importlib
    A = Asm()
    which = sys.argv[2].split(",") if len(sys.argv) > 2 else ["conv", "ln", "g1", "g2"]
    try:
        import gen_front
    except ImportError:
        gen_front = None
    opts = {}
    for kv in sys.argv[3:]:
        k_, v_ = kv.split("=")
        opts[k_] = int(v_)
    GEMM1.update(opts); GEMM2.update(opts)
    for w in which:
        if w == "conv": gen_front.gen_conv(A)
        if w == "ln": gen_front.gen_ln(A)
        if w == "g1": gen_gemm(A, GEMM1)
        if w == "g2": gen_gemm(A, GEMM2)
        if w == "pf": gen_prefetch(A)
        if w.startswith("nop"):
            A.begin_kernel(w + "_kernel"); A("s_endpgm"); A.end_kernel(w + "_kernel", 8, 0, 16, 256, 256, 0)
    open(sys.argv[1], "w").write(A.text())
```

```python
import sys, math
from gen import *
import gen
from gen_front import MASK, rnd2, unpack2, wave_sum_multi, stamp, STAMP
from gen_a import nonce_write, nonce_read, publish_flag, poll_flags, POLL_MAX

S_WAVE = 16
S_FLAG, S_MT, S_NONCE, S_NT = 88, 92, 93, 87


def lane_id(A, v):
    A(f"v_mbcnt_lo_u32_b32 v{v}, -1, 0")
    A(f"v_mbcnt_hi_u32_b32 v{v}, -1, v{v}")


def gemm_body(A, cfg):
    MT, WM, WN = cfg['MT'], cfg['WM'], cfg['WN']
    NSUB, NW = cfg['NSUB'], cfg['NW']
    K, RSG = cfg['K'], cfg['RSG']
    KS, R, PD, LAG = cfg['KS'], cfg['R'], cfg['PD'], cfg['LAG']
    fs, fbits = cfg['fs'], cfg['fbits']
    fm = (1 << fbits) - 1
    KBT = K // 32
    S = KBT
    T = S // KS
    RS = NW * 2
    CPR = RS // 16
    WT_BYTES = 32 * RS
    ipt = WT_BYTES // 1024
    ACT_BYTES = MT * 64
    SUB_BYTES = ACT_BYTES + NSUB * WT_BYTES
    SLOT = KS * SUB_BYTES
    LDS = R * SLOT
    assert LDS <= 163840, LDS
    NWAVE = 4
    MBW = MT // 16 // WM
    FBW = NW // 16 // WN
    nA = MT // 16 // NWAVE
    nW = NSUB * ipt // NWAVE
    wps = NWAVE // NSUB
    n_dma = KS * (nA + nW)
    NCLS = min(1 << fbits, FBW)
    for b in range(NW // 16):
        for k0 in (0, 8, 16, 24):
            segs = set(((k * RS + 32 * (b ^ ((k >> fs) & fm))) // 32) % 8 for k in range(k0, k0 + 8))
            assert len(segs) == 8, (b, k0, segs)
    NACC = NSUB * FBW * MBW * 4
    def acc(sub, fb, mb): return ((sub * FBW + fb) * MBW + mb) * 4
    vn = [NACC]
    def valloc(n=1):
        r = vn[0]; vn[0] += n; return r
    vLane = valloc()
    if vn[0] % 2: valloc()
    vPre = valloc(cfg.get('pre_regs', 0))
    ubase = vn[0]
    vT0 = valloc(); vT1 = valloc(); vT2 = valloc(); vT3 = valloc()
    vWoff = valloc(nW); vAoff = valloc(nA)
    vX0 = valloc(); vW0 = valloc(NCLS)
    vPF = valloc(); vPF2 = valloc()
    vB = [valloc(1 + NCLS), valloc(1 + NCLS)]
    loop_end = vn[0]
    vn[0] = ubase
    vE = valloc(8)
    vE2 = valloc(cfg.get('etemps', 16))
    NV = max(vn[0], loop_end)
    assert NV <= 256, NV
    NSET = cfg.get("NSET", PD + 1)
    SETSZ = (NSUB * FBW + MBW) * 4
    def wfrag(p, sub, fb): return p * SETSZ + (sub * FBW + fb) * 4
    def xfrag(p, mb): return p * SETSZ + (NSUB * FBW + mb) * 4
    NA_ = NSET * SETSZ
    sW, sX, sO = 4, 8, 12
    sWave = S_WAVE
    sKW, sKX, sCnt, sWB, sAB, sRd, sWr, sT0, sT1, sMT, sNT, sWM, sWN, sIss, sTK = range(17, 32)
    sP = 32
    sE = 48
    sRn = 56
    wk = cfg['wptr']
    A(f"s_load_dwordx2 s[{sP}:{sP+1}], s[0:1], {wk[0]}")
    A(f"s_load_dwordx2 s[{sP+2}:{sP+3}], s[0:1], {wk[-1]}")
    A(f"s_load_dwordx2 s[{sP+4}:{sP+5}], s[0:1], {KA['ws']}")
    A(f"s_load_dwordx2 s[{sP+6}:{sP+7}], s[0:1], {KA['out']}")
    lane_id(A, vLane)
    A(f"s_mov_b32 s{sMT}, s{S_MT}")
    A(f"s_mov_b32 s{sNT}, s{S_NT}")
    A(f"s_lshr_b32 s{sWM}, s{sWave}, {int(math.log2(WN))}")
    A(f"s_and_b32 s{sWN}, s{sWave}, {WN - 1}")
    A(f"s_and_b32 s{sT0}, s{sWave}, {wps - 1}")
    A(f"s_mul_i32 s{sT0}, s{sT0}, {nW * 64}")
    A(f"s_mul_i32 s{sT1}, s{sNT}, {RS}")
    magic = (65536 + CPR - 1) // CPR
    for Q in range(ipt * 64):
        assert (Q * magic) >> 16 == Q // CPR
    for j in range(nW):
        A(f"v_add_u32 v{vT0}, s{sT0}, v{vLane}")
        if j: A(f"v_add_u32 v{vT0}, {j * 64}, v{vT0}")
        A(f"v_mul_u32_u24 v{vT1}, {magic}, v{vT0}")
        A(f"v_lshrrev_b32 v{vT1}, 16, v{vT1}")
        A(f"v_mul_u32_u24 v{vT2}, {CPR}, v{vT1}")
        A(f"v_sub_u32 v{vT2}, v{vT0}, v{vT2}")
        A(f"v_lshrrev_b32 v{vT3}, {fs}, v{vT1}")
        A(f"v_and_b32 v{vT3}, {fm}, v{vT3}")
        A(f"v_lshlrev_b32 v{vT3}, 1, v{vT3}")
        A(f"v_xor_b32 v{vT2}, v{vT2}, v{vT3}")
        A(f"v_lshlrev_b32 v{vT2}, 4, v{vT2}")
        A(f"v_mul_u32_u24 v{vT1}, {RSG}, v{vT1}")
        A(f"v_add3_u32 v{vWoff + j}, v{vT1}, v{vT2}, s{sT1}")
    A(f"s_mul_i32 s{sT0}, s{sMT}, {MT // 16}")
    A(f"s_mul_i32 s{sT1}, s{sWave}, {nA}")
    A(f"s_add_u32 s{sT0}, s{sT0}, s{sT1}")
    A(f"s_mul_i32 s{sT0}, s{sT0}, {KBT * 1024}")
    A(f"v_lshlrev_b32 v{vT0}, 4, v{vLane}")
    for j in range(nA):
        A(f"v_add_u32 v{vAoff + j}, s{sT0}, v{vT0}")
        if j: A(f"v_add_u32 v{vAoff + j}, {j * KBT * 1024}, v{vAoff + j}")
    A(f"s_mul_i32 s{sWB}, s{sWave}, {nW * 1024}")
    A(f"s_add_u32 s{sWB}, s{sWB}, {ACT_BYTES}")
    A(f"s_mul_i32 s{sAB}, s{sWave}, {nA * 1024}")
    A(f"s_mul_i32 s{sT0}, s{sWM}, {MBW * 1024}")
    A(f"v_lshl_add_u32 v{vX0}, v{vLane}, 4, s{sT0}")
    A(f"v_lshrrev_b32 v{vT0}, 2, v{vLane}")
    A(f"v_and_b32 v{vT1}, 3, v{vLane}")
    A(f"v_mul_u32_u24 v{vT2}, {RS}, v{vT0}")
    A(f"v_lshl_add_u32 v{vT2}, v{vT1}, 3, v{vT2}")
    A(f"v_add_u32 v{vT2}, {ACT_BYTES}, v{vT2}")
    A(f"v_lshrrev_b32 v{vT3}, {fs}, v{vT0}")
    A(f"v_and_b32 v{vT3}, {fm}, v{vT3}")
    A(f"s_mul_i32 s{sT0}, s{sWN}, {FBW}")
    for c in range(NCLS):
        A(f"s_add_u32 s{sT1}, s{sT0}, {c}")
        A(f"v_xor_b32 v{vT1}, s{sT1}, v{vT3}")
        A(f"v_lshl_add_u32 v{vW0 + c}, v{vT1}, 5, v{vT2}")
    A(f"s_waitcnt lgkmcnt(0)")
    if NSUB == 2:
        A(f"s_cmp_ge_u32 s{sWave}, {wps}")
        A(f"s_cselect_b32 s{sT0}, s{sP+2}, s{sP}")
        A(f"s_cselect_b32 s{sT1}, s{sP+3}, s{sP+1}")
        srd(A, sW, sT0, sT1, K * RSG)
    else:
        srd(A, sW, sP, sP + 1, K * RSG)
    srd_off(A, sX, sP + 4, sP + 5, cfg['act_off'], 2048 * K * 2)
    rot = cfg.get('rot', 0)
    A(f"s_mul_i32 s{sT0}, s{sMT}, {rot}")
    if rot:
        for _ in range((15 * rot) // T):
            A(f"s_cmp_ge_u32 s{sT0}, {T}"); A(f"s_cselect_b32 s{sT1}, {T}, 0"); A(f"s_sub_u32 s{sT0}, s{sT0}, s{sT1}")
    A(f"s_mul_i32 s{sKX}, s{sT0}, {KS * 1024}")
    sK0 = 57
    A(f"s_mov_b32 s{sK0}, s{sKX}")

    sc = " sc1" if cfg.get('act_sc1') else ""
    def dma_a(u, slot_s, cst0, kX_s):
        res = []
        for j in range(nA):
            cst = cst0 + u * SUB_BYTES + j * 1024
            m0 = [f"s_add_u32 m0, s{sAB}, {cst}"] if slot_s is None else [f"s_add_u32 s{sTK}, s{sAB}, s{slot_s}", f"s_add_u32 m0, s{sTK}, {cst}"]
            res.append((m0, f"buffer_load_dwordx4 v{vAoff + j}, s[{sX}:{sX+3}], s{kX_s} offen{sc} lds"))
        return res
    def dma_w(u, slot_s, cst0, kW_s):
        res = []
        for j in range(nW):
            cst = cst0 + u * SUB_BYTES + j * 1024
            m0 = [f"s_add_u32 m0, s{sWB}, {cst}"] if slot_s is None else [f"s_add_u32 s{sTK}, s{sWB}, s{slot_s}", f"s_add_u32 m0, s{sTK}, {cst}"]
            res.append((m0, f"buffer_load_dwordx4 v{vWoff + j}, s[{sW}:{sW+3}], s{kW_s} offen lds"))
        return res
    def ds_reads(p, u, vX, vW):
        res = []
        for mb in range(MBW):
            r = xfrag(p, mb)
            res.append(f"ds_read_b128 a[{r}:{r+3}], v{vX} offset:{u * SUB_BYTES + mb * 1024}")
        for sub in range(NSUB):
            for fb in range(FBW):
                cls = fb % NCLS
                r = wfrag(p, sub, fb)
                off = u * SUB_BYTES + sub * WT_BYTES + 32 * (fb - cls)
                assert off + 16 * RS < 65536
                res.append(f"ds_read_b64_tr_b16 a[{r}:{r+1}], v{vW + cls} offset:{off}")
                res.append(f"ds_read_b64_tr_b16 a[{r+2}:{r+3}], v{vW + cls} offset:{off + 16 * RS}")
        return res
    def adv_k(sk):
        return [f"s_add_u32 s{sk}, s{sk}, {KS * 1024}", f"s_cmp_eq_u32 s{sk}, {KBT * 1024}", f"s_cselect_b32 s{sk}, 0, s{sk}"]
    WMUL = 32 * RSG // 1024
    t0 = (PD - 1) // KS
    assert t0 <= LAG
    n_pro = t0 + R - LAG
    if cfg.get('pre_barrier'): A("s_barrier")
    for st in range(n_pro):
        for u in range(KS):
            A(f"s_add_u32 s{sT1}, s{sKX}, {u * 1024}")
            A(f"s_mul_i32 s{sT0}, s{sT1}, {WMUL}")
            for m0, d in dma_w(u, None, (st % R) * SLOT, sT0):
                for x in m0: A(x)
                A("s_nop 0"); A(d)
        for x in adv_k(sKX): A(x)
    env = dict(locals())
    if cfg.get('hook_poll'): cfg['hook_poll'](A, env)
    A(f"s_mov_b32 s{sKX}, s{sK0}")
    for st in range(n_pro):
        for u in range(KS):
            A(f"s_add_u32 s{sT1}, s{sKX}, {u * 1024}")
            for m0, d in dma_a(u, None, (st % R) * SLOT, sT1):
                for x in m0: A(x)
                A("s_nop 0"); A(d)
        for x in adv_k(sKX): A(x)
    if cfg.get('hook_pre'): cfg['hook_pre'](A, env)
    pfD = cfg.get('pf_D', 0)
    npf = 0
    if pfD:
        npf = 2
        A(f"s_load_dwordx2 s[80:81], s[0:1], {KA['w2']}")
        A(f"s_and_b32 s{sT0}, s{sWave}, 1"); A(f"s_lshl_b32 s{sT1}, s2, 1"); A(f"s_add_u32 s{sT0}, s{sT0}, s{sT1}")
        A(f"s_lshl_b32 s{sT0}, s{sT0}, 10")
        A(f"v_lshl_add_u32 v{vPF}, v{vLane}, 4, s{sT0}")
        A(f"s_lshl_b32 s{sT1}, s2, 2"); A(f"s_add_u32 s{sT0}, s{sT1}, s{sWave}"); A(f"s_lshl_b32 s{sT0}, s{sT0}, 10")
        A(f"v_lshl_add_u32 v{vPF2}, v{vLane}, 4, s{sT0}")
        A(f"s_mov_b32 s84, {pfD * 32 * RSG}")
        A(f"s_mov_b32 s85, 0")
        A("s_waitcnt lgkmcnt(0)")
        srd(A, 60, 80, 81, 7340032)
    A(f"s_mov_b32 s{sIss}, {n_pro}")
    for i in range(NACC): A(f"v_mov_b32 v{i}, 0")
    A(f"s_waitcnt vmcnt(0)")
    A("s_barrier")
    stamp(A, cfg.get('stamp0', 2))
    for s in range(PD):
        st, u = s // KS, s % KS
        b = vB[st & 1]
        if u == 0:
            A(f"v_add_u32 v{b}, {st * SLOT}, v{vX0}")
            for c in range(NCLS): A(f"v_add_u32 v{b + 1 + c}, {st * SLOT}, v{vW0 + c}")
        for x in ds_reads(s % NSET, u, b, b + 1): A(x)
    A(f"s_mov_b32 s{sRd}, {t0 * SLOT}")
    b = vB[(t0 + 1) & 1]
    A(f"s_mov_b32 s{sRn}, {((t0 + 1) % R) * SLOT}")
    A(f"v_add_u32 v{b}, s{sRn}, v{vX0}")
    for c in range(NCLS): A(f"v_add_u32 v{b + 1 + c}, s{sRn}, v{vW0 + c}")
    UN = math.lcm(2 * KS, NSET)
    assert S % UN == 0, (S, UN)
    A(f"s_mov_b32 s{sCnt}, {S // UN}")
    Lloop = A.newlabel("Lloop")
    A.label(Lloop)
    nDS = MBW + 2 * NSUB * FBW
    for s in range(UN):
        p = s % NSET
        pr = (s + PD) % NSET
        ph = (s + PD) % KS
        stg = (s + PD) // KS
        b = vB[stg & 1]
        pre, g0s = [], []
        if ph == 0:
            lg = 0 if LAG == 0 else min(15, nDS * (PD - 1))
            pre.append(f"s_waitcnt vmcnt({n_dma * (R - LAG - 2) + npf}) lgkmcnt({lg})")
            pre.append("s_barrier")
            if LAG == 0:
                g0s.append(f"s_mov_b32 s{sWr}, s{sRd}")
            else:
                g0s += [f"s_sub_u32 s{sWr}, s{sRd}, {SLOT}", f"s_cmp_eq_u32 s{sRd}, 0", f"s_cselect_b32 s{sWr}, {(R - 1) * SLOT}, s{sWr}"]
            g0s.append(f"s_mov_b32 s{sRd}, s{sRn}")
            g0s += [f"s_add_u32 s{sRn}, s{sRn}, {SLOT}", f"s_cmp_eq_u32 s{sRn}, {R * SLOT}", f"s_cselect_b32 s{sRn}, 0, s{sRn}"]
        else:
            pre.append(f"s_waitcnt lgkmcnt({min(15, nDS * (PD - 1))})")
        g0s.append(f"s_add_u32 s{sT1}, s{sKX}, {ph * 1024}" if ph else f"s_mov_b32 s{sT1}, s{sKX}")
        g0s.append(f"s_mul_i32 s{sT0}, s{sT1}, {WMUL}")
        g0s.append(f"s_cmp_ge_u32 s{sIss}, {T}")
        g0s.append(f"s_cselect_b32 s{sT1}, 0x40000000, s{sT1}")
        g0s.append(f"s_cselect_b32 s{sT0}, 0x40000000, s{sT0}")
        late = []
        if ph == KS - 1:
            late += adv_k(sKX) + [f"s_add_u32 s{sIss}, s{sIss}, 1"]
            bn = vB[(stg + 1) & 1]
            late.append(f"v_add_u32 v{bn}, s{sRn}, v{vX0}")
            for c in range(NCLS): late.append(f"v_add_u32 v{bn + 1 + c}, s{sRn}, v{vW0 + c}")
        mf = []
        for sub in range(NSUB):
            for fb in range(FBW):
                for mb in range(MBW):
                    a_ = acc(sub, fb, mb); w = wfrag(p, sub, fb); x = xfrag(p, mb)
                    mf.append(f"v_mfma_f32_16x16x32_bf16 v[{a_}:{a_+3}], a[{w}:{w+3}], a[{x}:{x+3}], v[{a_}:{a_+3}]")
        M = len(mf)
        ds = ds_reads(pr, ph, b, b + 1)
        dm = dma_a(ph, sWr, 0, sT1) + dma_w(ph, sWr, 0, sT0)
        side = {}
        def put(g, ins): side.setdefault(min(g, M - 1), []).extend(ins)
        dsr = cfg.get('ds_rate', 1)
        for i, d in enumerate(ds): put(i // dsr, [d])
        ng = min(3, M - 1)
        for i, x in enumerate(g0s): put(i * ng // len(g0s), [x])
        g0 = max(ng, cfg.get('dma_g0', 3))
        span = max(1, (M - g0 - 2) // max(1, len(dm)))
        for i, (m0, d) in enumerate(dm):
            g = g0 + i * span
            if g + 1 <= M - 1:
                put(g, m0); put(g + 1, [d])
            else:
                put(g, m0 + ["s_nop 0", d])
        if pfD and s % 2 == 0:
            put(M - 6, [f"buffer_load_dwordx4 a[{NA_}:{NA_+3}], v{vPF}, s[{sW}:{sW+3}], s84 offen", f"s_add_u32 s84, s84, {64 * RSG}"])
            put(M - 3, [f"buffer_load_dwordx4 a[{NA_+4}:{NA_+7}], v{vPF2}, s[60:63], s85 offen", f"s_add_u32 s85, s85, {1 << 20}"])
        put(M - 1, late)
        for x in pre: A(x)
        for x in interleave(mf, side): A(x)
    A(f"s_sub_u32 s{sCnt}, s{sCnt}, 1")
    A(f"s_cmp_lg_u32 s{sCnt}, 0")
    A(f"s_cbranch_scc1 {Lloop}")
    A("s_waitcnt vmcnt(0) lgkmcnt(0)")
    A("s_nop 7")
    A("s_nop 7")
    stamp(A, cfg.get('stamp0', 2) + 1)
    env = dict(locals())
    cfg['epilogue'](A, env)
    return NV, NA_ + 8, LDS


def epi1(A, g):
    acc, FBW, MBW = g['acc'], g['FBW'], g['MBW']
    sO, sP, sT0, sT1, sMT, sNT, sWM, sWN, vLane, vE, vE2, sE = [g[k] for k in
        "sO sP sT0 sT1 sMT sNT sWM sWN vLane vE vE2 sE".split()]
    faithful = g['cfg'].get('faithful', True)
    sc = " sc1" if g['cfg'].get('out_sc1') else ""
    srd_off(A, sO, sP + 4, sP + 5, WS_HH, 2048 * 3584 * 2)
    A(f"s_mul_i32 s{sT0}, s{sNT}, 14")
    A(f"s_mul_i32 s{sT1}, s{sWN}, 7")
    A(f"s_add_u32 s{sT0}, s{sT0}, s{sT1}")
    A(f"s_lshr_b32 s{sT0}, s{sT0}, 1")
    A(f"s_lshl_b32 s{sT0}, s{sT0}, 10")
    A(f"s_lshl_b32 s{sT1}, s{sMT}, 3")
    A(f"s_lshl_b32 s{sE}, s{sWM}, 2")
    A(f"s_add_u32 s{sT1}, s{sT1}, s{sE}")
    A(f"s_mul_i32 s{sT1}, s{sT1}, {112 * 1024}")
    A(f"s_add_u32 s{sT0}, s{sT0}, s{sT1}")
    A(f"v_lshl_add_u32 v{vE}, v{vLane}, 4, s{sT0}")
    A(f"s_mov_b32 s{sE+2}, 0xbfb8aa3b"); A(f"s_mov_b32 s{sE+3}, 0xbfb8aa3b")

    def compute(blocks):
        for fb, mb, t in blocks:
            G = acc(0, fb, mb); U = acc(1, fb, mb)
            if faithful:
                for h in range(2):
                    A(f"v_cvt_pk_bf16_f32 v{t+h}, v{G+2*h}, v{G+2*h+1}")
                    A(f"v_cvt_pk_bf16_f32 v{t+2+h}, v{U+2*h}, v{U+2*h+1}")
        for fb, mb, t in blocks:
            G = acc(0, fb, mb); U = acc(1, fb, mb)
            if faithful:
                for h in range(2):
                    A(f"v_lshlrev_b32 v{G+2*h}, 16, v{t+h}")
                    A(f"v_and_b32 v{G+2*h+1}, {MASK}, v{t+h}")
                    A(f"v_lshlrev_b32 v{U+2*h}, 16, v{t+2+h}")
                    A(f"v_and_b32 v{U+2*h+1}, {MASK}, v{t+2+h}")
        for fb, mb, t in blocks:
            G = acc(0, fb, mb)
            for h in range(2):
                A(f"v_pk_mul_f32 v[{t+2*h}:{t+2*h+1}], v[{G+2*h}:{G+2*h+1}], s[{sE+2}:{sE+3}]")
        for fb, mb, t in blocks:
            for i in range(4): A(f"v_exp_f32 v{t+i}, v{t+i}")
        for fb, mb, t in blocks:
            for h in range(2):
                A(f"v_pk_add_f32 v[{t+2*h}:{t+2*h+1}], v[{t+2*h}:{t+2*h+1}], 1.0 op_sel_hi:[1,0]")
        for fb, mb, t in blocks:
            for i in range(4): A(f"v_rcp_f32 v{t+i}, v{t+i}")
        for fb, mb, t in blocks:
            G = acc(0, fb, mb)
            for h in range(2):
                A(f"v_pk_mul_f32 v[{t+2*h}:{t+2*h+1}], v[{t+2*h}:{t+2*h+1}], v[{G+2*h}:{G+2*h+1}]")
        if faithful:
            for fb, mb, t in blocks:
                G = acc(0, fb, mb)
                for h in range(2):
                    A(f"v_cvt_pk_bf16_f32 v{G+h}, v{t+2*h}, v{t+2*h+1}")
            for fb, mb, t in blocks:
                G = acc(0, fb, mb)
                for h in range(2):
                    A(f"v_lshlrev_b32 v{t+2*h}, 16, v{G+h}")
                    A(f"v_and_b32 v{t+2*h+1}, {MASK}, v{G+h}")
        for fb, mb, t in blocks:
            U = acc(1, fb, mb)
            for h in range(2):
                A(f"v_pk_mul_f32 v[{t+2*h}:{t+2*h+1}], v[{t+2*h}:{t+2*h+1}], v[{U+2*h}:{U+2*h+1}]")

    def path(par):
        fbs = list(range(FBW))
        groups = []
        i = 0
        while i < FBW:
            if (par + i) % 2 == 0 and i + 1 < FBW:
                groups.append((i, i + 1)); i += 2
            else:
                groups.append((i,)); i += 1
        for grp in groups:
            kb = (par + grp[0]) >> 1
            for mb in range(MBW):
                blocks = [(fb, mb, vE2 + 4 * n + 8 * (mb & 1)) for n, fb in enumerate(grp)]
                compute(blocks)
                D = acc(0, grp[0], mb)
                for n, (fb, _, t) in enumerate(blocks):
                    A(f"v_cvt_pk_bf16_f32 v{D + 2*n}, v{t}, v{t+1}")
                    A(f"v_cvt_pk_bf16_f32 v{D + 2*n + 1}, v{t+2}, v{t+3}")
                A(f"s_mov_b32 s{sE+5}, {mb * 112 * 1024 + kb * 1024}")
                if len(grp) == 2:
                    A(f"buffer_store_dwordx4 v[{D}:{D+3}], v{vE}, s[{sO}:{sO+3}], s{sE+5} offen{sc}")
                else:
                    off = 8 * ((par + grp[0]) & 1)
                    A(f"buffer_store_dwordx2 v[{D}:{D+1}], v{vE}, s[{sO}:{sO+3}], s{sE+5} offen offset:{off}{sc}")
    L1 = A.newlabel("Lodd"); L2 = A.newlabel("Ljoin")
    A(f"s_cmp_lg_u32 s{sWN}, 0"); A(f"s_cbranch_scc1 {L1}")
    path(0)
    A(f"s_branch {L2}")
    A.label(L1)
    path(1)
    A.label(L2)


def pre2(A, g):
    FBW, MBW, MT, NW = g['FBW'], g['MBW'], g['MT'], g['NW']
    sP, sT0, sT1, sMT, sNT, sWM, sWN, vLane, sE, vPre, vT0, vT1 = [g[k] for k in
        "sP sT0 sT1 sMT sNT sWM sWN vLane sE vPre vT0 vT1".split()]
    srd_off(A, 60, sP + 4, sP + 5, WS_X1, 2048 * 1024 * 2)
    srd_off(A, 64, sP + 4, sP + 5, WS_MOD, 2 * 6144 * 4)
    A(f"s_mul_i32 s{sT0}, s{sNT}, {NW}")
    A(f"s_mul_i32 s{sE}, s{sWN}, {FBW * 16}")
    A(f"s_add_u32 s{sT0}, s{sT0}, s{sE}")
    A(f"s_mul_i32 s{sT1}, s{sMT}, {MT}")
    A(f"s_mul_i32 s{sE}, s{sWM}, {MBW * 16}")
    A(f"s_add_u32 s{sT1}, s{sT1}, s{sE}")
    vo = vPre
    A(f"v_lshrrev_b32 v{vT0}, 4, v{vLane}")
    A(f"v_lshlrev_b32 v{vT0}, 2, v{vT0}")
    A(f"v_add_u32 v{vT0}, s{sT0}, v{vT0}")
    A(f"v_and_b32 v{vo}, 15, v{vLane}")
    A(f"v_add_u32 v{vo}, s{sT1}, v{vo}")
    A(f"v_lshlrev_b32 v{vo}, 11, v{vo}")
    A(f"v_lshl_add_u32 v{vo}, v{vT0}, 1, v{vo}")
    A(f"v_lshlrev_b32 v{vT0}, 2, v{vT0}")
    A(f"v_add_u32 v{vT0}, {5 * 4096}, v{vT0}")
    gbr = vPre + 2; gb2 = gbr + FBW * 4; xr = gb2 + FBW * 4
    A(f"s_mov_b32 s{sE}, 24576")
    for fb in range(FBW):
        A(f"buffer_load_dwordx4 v[{gbr+4*fb}:{gbr+4*fb+3}], v{vT0}, s[64:67], 0 offen offset:{fb * 64}")
        A(f"buffer_load_dwordx4 v[{gb2+4*fb}:{gb2+4*fb+3}], v{vT0}, s[64:67], s{sE} offen offset:{fb * 64}")
    for fb in range(FBW):
        for mb in range(MBW):
            r = xr + (fb * MBW + mb) * 2
            A(f"s_mov_b32 s{sE}, {mb * 16 * 2048}")
            A(f"buffer_load_dwordx2 v[{r}:{r+1}], v{vo}, s[60:63], s{sE} offen offset:{fb * 32} sc1")


def epi2(A, g):
    acc, FBW, MBW = g['acc'], g['FBW'], g['MBW']
    sO, sP, sE, vE, vPre = [g[k] for k in "sO sP sE vE vPre".split()]
    srd(A, sO, sP + 6, sP + 7, 2048 * 1024 * 2)
    vo = vPre
    gbr = vPre + 2; gb2 = gbr + FBW * 4; xr = gb2 + FBW * 4
    t = vE
    for i in range(0, FBW * 4, 2):
        A(f"v_pk_add_f32 v[{gbr+i}:{gbr+i+1}], v[{gbr+i}:{gbr+i+1}], v[{gb2+i}:{gb2+i+1}]")
        rnd2(A, gbr + i, gbr + i + 1, t)
    for fb in range(FBW):
        for mb in range(MBW):
            a_ = acc(0, fb, mb)
            r = xr + (fb * MBW + mb) * 2
            for h in range(2):
                tt = t + 4 * h
                rnd2(A, a_ + 2*h, a_ + 2*h + 1, tt)
                A(f"v_pk_mul_f32 v[{a_+2*h}:{a_+2*h+1}], v[{a_+2*h}:{a_+2*h+1}], v[{gbr+4*fb+2*h}:{gbr+4*fb+2*h+1}]")
                rnd2(A, a_ + 2*h, a_ + 2*h + 1, tt)
                unpack2(A, tt + 2, r + h)
                A(f"v_pk_add_f32 v[{a_+2*h}:{a_+2*h+1}], v[{a_+2*h}:{a_+2*h+1}], v[{tt+2}:{tt+3}]")
                A(f"v_cvt_pk_bf16_f32 v{r+h}, v{a_+2*h}, v{a_+2*h+1}")
            A(f"s_mov_b32 s{sE}, {mb * 16 * 2048}")
            A(f"buffer_store_dwordx2 v[{r}:{r+1}], v{vo}, s[{sO}:{sO+3}], s{sE} offen offset:{fb * 32}")


def ln_part(A, LBUF, pfw):
    A(f"s_load_dwordx2 s[32:33], s[0:1], {KA['q']}")
    A(f"s_load_dwordx2 s[34:35], s[0:1], {KA['ws']}")
    A(f"s_load_dwordx4 s[36:39], s[0:1], {KA['w1']}")
    A("v_and_b32 v2, 63, v0")
    A("s_waitcnt lgkmcnt(0)")
    srd(A, 4, 32, 33, 4 << 20)
    srd_off(A, 8, 34, 35, WS_YP, 4 << 20)
    srd_off(A, 12, 34, 35, WS_MOD, 2 * 6144 * 4)
    srd_off(A, 20, 34, 35, WS_X1, 4 << 20)
    srd_off(A, 24, 34, 35, WS_H2, 4 << 20)
    A(f"s_lshl_b32 s17, s{S_MT}, 4"); A(f"s_add_u32 s17, s17, s{S_NT}")
    A("s_lshl_b32 s19, s17, 3"); A("s_lshl_b32 s18, s16, 1"); A("s_add_u32 s19, s19, s18")
    A("s_lshl_b32 s19, s19, 11")
    A("v_lshlrev_b32 v3, 4, v2")
    A("v_add_u32 v4, s19, v3")
    XP, YP = 8, 24
    for r in range(2):
        for h in range(2):
            A(f"buffer_load_dwordx4 v[{XP + r*8 + h*4}:{XP + r*8 + h*4 + 3}], v4, s[4:7], 0 offen offset:{r * 2048 + h * 1024}")
    for r in range(2):
        for h in range(2):
            A(f"buffer_load_dwordx4 v[{YP + r*8 + h*4}:{YP + r*8 + h*4 + 3}], v4, s[8:11], 0 offen offset:{r * 2048 + h * 1024}")
    MV = 40
    A("v_lshlrev_b32 v5, 5, v2")
    for part in range(2):
        for vec in range(5):
            A(f"s_mov_b32 s18, {vec * 4096 + part * 24576}")
            for h in range(2):
                for q in range(2):
                    r = (MV if part == 0 else 120) + vec * 16 + h * 8 + q * 4
                    A(f"buffer_load_dwordx4 v[{r}:{r+3}], v5, s[12:15], s18 offen offset:{h * 2048 + q * 16}")
    A("v_mov_b32 v6, 0")
    A("buffer_load_dword v223, v6, s[72:75], 0 offen sc1")
    npf = 0
    if pfw:
        A(f"s_mul_i32 s18, s2, {pfw * 4096}")
        A("v_lshlrev_b32 v6, 4, v0"); A("v_add_u32 v6, s18, v6")
        for bi in range(2):
            srd(A, 28, 36 + 2 * bi, 37 + 2 * bi, 7340032)
            for j in range(pfw):
                A(f"s_mov_b32 s18, {j * 4096}")
                A(f"buffer_load_dwordx4 a[{4 * npf}:{4 * npf + 3}], v6, s[28:31], s18 offen")
                npf += 1
    A(f"s_waitcnt vmcnt({npf + 1})")
    for i in range(0, 80, 2):
        A(f"v_pk_add_f32 v[{MV+i}:{MV+i+1}], v[{MV+i}:{MV+i+1}], v[{120+i}:{121+i}]")
        rnd2(A, MV + i, MV + i + 1, 200 + (i >> 1 & 3))
    X, D, T, ST = 120, 152, 184, 200
    for r in range(2):
        for i in range(8):
            unpack2(A, X + r * 16 + 2 * i, XP + r * 8 + i)

    def layernorm(src, dst):
        for r in range(2):
            A(f"v_pk_add_f32 v[{T + 2*r}:{T + 2*r + 1}], v[{src + r*16}:{src + r*16 + 1}], v[{src + r*16 + 2}:{src + r*16 + 3}]")
        for i in range(2, 8):
            for r in range(2):
                A(f"v_pk_add_f32 v[{T + 2*r}:{T + 2*r + 1}], v[{T + 2*r}:{T + 2*r + 1}], v[{src + r*16 + 2*i}:{src + r*16 + 2*i + 1}]")
        for r in range(2):
            A(f"v_add_f32 v{T + 2*r}, v{T + 2*r}, v{T + 2*r + 1}")
        wave_sum_multi(A, [T, T + 2], 44)
        A("s_nop 1")
        for r in range(2):
            A(f"v_mov_b32 v{ST + 2*r}, s{44 + r}")
            A(f"v_mul_f32 v{ST + 2*r}, 0x3a800000, v{ST + 2*r}")
        for r in range(2):
            for i in range(8):
                A(f"v_pk_add_f32 v[{dst + r*16 + 2*i}:{dst + r*16 + 2*i + 1}], v[{src + r*16 + 2*i}:{src + r*16 + 2*i + 1}], v[{ST + 2*r}:{ST + 2*r + 1}] op_sel_hi:[1,0] neg_lo:[0,1] neg_hi:[0,1]")
        for r in range(2):
            A(f"v_pk_mul_f32 v[{T + 2*r}:{T + 2*r + 1}], v[{dst + r*16}:{dst + r*16 + 1}], v[{dst + r*16}:{dst + r*16 + 1}]")
        for i in range(1, 8):
            for r in range(2):
                A(f"v_pk_fma_f32 v[{T + 2*r}:{T + 2*r + 1}], v[{dst + r*16 + 2*i}:{dst + r*16 + 2*i + 1}], v[{dst + r*16 + 2*i}:{dst + r*16 + 2*i + 1}], v[{T + 2*r}:{T + 2*r + 1}]")
        for r in range(2):
            A(f"v_add_f32 v{T + 2*r}, v{T + 2*r}, v{T + 2*r + 1}")
        wave_sum_multi(A, [T, T + 2], 44)
        A("s_nop 1")
        for r in range(2):
            A(f"v_mov_b32 v{ST + 4 + r}, s{44 + r}")
            A(f"v_mul_f32 v{ST + 4 + r}, 0x3a800000, v{ST + 4 + r}")
        rnd2(A, ST + 4, ST + 5, T)
        rnd2(A, ST, ST + 2, T)
        A(f"v_add_f32 v{ST + 4}, 0x3727c5ac, v{ST + 4}")
        A(f"v_add_f32 v{ST + 5}, 0x3727c5ac, v{ST + 5}")
        rnd2(A, ST + 4, ST + 5, T)
        A(f"v_sqrt_f32 v{ST + 4}, v{ST + 4}")
        A(f"v_sqrt_f32 v{ST + 5}, v{ST + 5}")
        A("s_nop 0")
        rnd2(A, ST + 4, ST + 5, T)
        A(f"v_rcp_f32 v{ST + 6}, v{ST + 4}")
        A(f"v_rcp_f32 v{ST + 8}, v{ST + 5}")
        A("s_nop 0")
        for r in range(2):
            for i in range(8):
                d = dst + r * 16 + 2 * i
                s_ = src + r * 16 + 2 * i
                A(f"v_pk_add_f32 v[{d}:{d+1}], v[{s_}:{s_+1}], v[{ST + 2*r}:{ST + 2*r + 1}] op_sel_hi:[1,0] neg_lo:[0,1] neg_hi:[0,1]")
                rnd2(A, d, d + 1, T + (i & 3))
                A(f"v_pk_mul_f32 v[{d}:{d+1}], v[{d}:{d+1}], v[{ST + 6 + 2*r}:{ST + 7 + 2*r}] op_sel_hi:[1,0]")
                rnd2(A, d, d + 1, T + 4 + (i & 3))

    layernorm(X, D)
    SA, CA, GA, SB, CB = [MV + 16 * i for i in range(5)]
    for base in (CA, CB):
        for i in range(8):
            r = base + 2 * i
            A(f"v_pk_add_f32 v[{r}:{r+1}], v[{r}:{r+1}], 1.0 op_sel_hi:[1,0]")
            rnd2(A, r, r + 1, T + (i & 3))
    for r in range(2):
        for i in range(8):
            d = D + r * 16 + 2 * i
            x = X + r * 16 + 2 * i
            t = T + (i & 3)
            u = T + 8 + 2 * (i & 3)
            A(f"v_pk_mul_f32 v[{d}:{d+1}], v[{d}:{d+1}], v[{CA + 2*i}:{CA + 2*i + 1}]")
            rnd2(A, d, d + 1, t)
            A(f"v_pk_add_f32 v[{d}:{d+1}], v[{d}:{d+1}], v[{SA + 2*i}:{SA + 2*i + 1}]")
            rnd2(A, d, d + 1, t)
            unpack2(A, u, YP + r * 8 + i)
            A(f"v_pk_mul_f32 v[{d}:{d+1}], v[{d}:{d+1}], v[{u}:{u+1}]")
            rnd2(A, d, d + 1, t)
            A(f"v_pk_mul_f32 v[{d}:{d+1}], v[{d}:{d+1}], v[{GA + 2*i}:{GA + 2*i + 1}]")
            rnd2(A, d, d + 1, t)
            A(f"v_pk_add_f32 v[{x}:{x+1}], v[{x}:{x+1}], v[{d}:{d+1}]")
            A(f"v_cvt_pk_bf16_f32 v{XP + r*8 + i}, v{x}, v{x+1}")
            unpack2(A, x, XP + r * 8 + i)
    for r in range(2):
        for h in range(2):
            A(f"buffer_store_dwordx4 v[{XP + r*8 + h*4}:{XP + r*8 + h*4 + 3}], v4, s[20:23], 0 offen offset:{r * 2048 + h * 1024} sc1")
    layernorm(X, D)
    for r in range(2):
        for i in range(8):
            d = D + r * 16 + 2 * i
            t = T + (i & 3)
            A(f"v_pk_mul_f32 v[{d}:{d+1}], v[{d}:{d+1}], v[{CB + 2*i}:{CB + 2*i + 1}]")
            rnd2(A, d, d + 1, t)
            A(f"v_pk_add_f32 v[{d}:{d+1}], v[{d}:{d+1}], v[{SB + 2*i}:{SB + 2*i + 1}]")
            A(f"v_cvt_pk_bf16_f32 v{YP + r*8 + i}, v{d}, v{d+1}")
    A("v_lshrrev_b32 v5, 2, v2")
    A("v_lshlrev_b32 v5, 9, v5")
    A("v_and_b32 v6, 1, v2"); A("v_lshl_add_u32 v5, v6, 8, v5")
    A("v_bfe_u32 v6, v2, 1, 1"); A("v_lshl_add_u32 v5, v6, 3, v5")
    A("s_lshl_b32 s18, s16, 5"); A(f"s_add_u32 s18, s18, {LBUF}")
    A("v_add_u32 v5, s18, v5")
    for r in range(2):
        for h in range(2):
            for e in range(2):
                src = YP + r * 8 + h * 4 + e * 2
                A(f"ds_write_b64 v5, v[{src}:{src+1}] offset:{h * 8192 + e * 128 + r * 16}")
    A("s_waitcnt lgkmcnt(0)")
    A("s_barrier")
    A("v_lshrrev_b32 v5, 5, v0")
    A(f"v_lshlrev_b32 v6, 4, v0"); A(f"v_add_u32 v6, {LBUF}, v6")
    A("v_lshlrev_b32 v7, 10, v5")
    A("v_bfe_u32 v5, v0, 3, 2"); A("v_lshl_add_u32 v7, v5, 8, v7")
    A("v_and_b32 v5, 7, v0"); A("v_lshl_add_u32 v7, v5, 4, v7")
    A("s_lshr_b32 s18, s17, 1"); A("s_lshl_b32 s18, s18, 15")
    A("s_and_b32 s19, s17, 1"); A("s_lshl_b32 s19, s19, 7"); A("s_add_u32 s18, s18, s19")
    A("v_add_u32 v7, s18, v7")
    for j in range(4):
        A(f"ds_read_b128 v[{40 + 4*j}:{43 + 4*j}], v6 offset:{j * 4096}")
    for j in range(4):
        A(f"s_waitcnt lgkmcnt({3 - j})")
        A(f"s_mov_b32 s19, {j * 8192}")
        A(f"buffer_store_dwordx4 v[{40 + 4*j}:{43 + 4*j}], v7, s[24:27], s19 offen sc1")


XE = 224


def ln_rowoff(A, vdst, vlane):
    A(f"s_lshl_b32 s17, s{S_MT}, 4"); A(f"s_add_u32 s17, s17, s{S_NT}")
    A("s_lshl_b32 s19, s17, 3"); A("s_lshl_b32 s18, s16, 1"); A("s_add_u32 s19, s19, s18")
    A("s_lshl_b32 s19, s19, 11")
    A(f"v_lshlrev_b32 v{vdst}, 4, v{vlane}")
    A(f"v_add_u32 v{vdst}, s19, v{vdst}")


def ln_xload(A):
    A(f"s_load_dwordx2 s[80:81], s[0:1], {KA['q']}")
    A(f"s_lshl_b32 s82, s{S_MT}, 4"); A(f"s_add_u32 s82, s82, s{S_NT}")
    A("s_lshl_b32 s82, s82, 3"); A("s_lshl_b32 s83, s16, 1"); A("s_add_u32 s82, s82, s83")
    A("s_lshl_b32 s82, s82, 11")
    A("v_lshlrev_b32 v240, 4, v2"); A("v_add_u32 v240, s82, v240")
    A("s_waitcnt lgkmcnt(0)")
    A("s_and_b32 s81, s81, 0xffff"); A(f"s_mov_b32 s82, {4 << 20}"); A("s_mov_b32 s83, 0x00020000")
    for r in range(2):
        for h in range(2):
            A(f"buffer_load_dwordx4 v[{XE + r*8 + h*4}:{XE + r*8 + h*4 + 3}], v240, s[80:83], 0 offen offset:{r * 2048 + h * 1024}")


def ln_split(A, LBUF, MBUF, pfw, poll_hook):
    A(f"s_load_dwordx2 s[34:35], s[0:1], {KA['ws']}")
    A(f"s_load_dwordx4 s[36:39], s[0:1], {KA['w1']}")
    A("s_waitcnt lgkmcnt(0)")
    srd_off(A, 8, 34, 35, WS_YP, 4 << 20)
    srd_off(A, 12, 34, 35, WS_MOD, 2 * 6144 * 4)
    srd_off(A, 20, 34, 35, WS_X1, 4 << 20)
    srd_off(A, 24, 34, 35, WS_H2, 4 << 20)
    ln_rowoff(A, 4, 2)
    XP, YP = 8, 24
    MV = 40
    X, D, T, ST = 120, 152, 184, 200
    for r in range(2):
        for i in range(8):
            unpack2(A, X + r * 16 + 2 * i, XE + r * 8 + i)

    def layernorm(src, dst):
        for r in range(2):
            A(f"v_pk_add_f32 v[{T + 2*r}:{T + 2*r + 1}], v[{src + r*16}:{src + r*16 + 1}], v[{src + r*16 + 2}:{src + r*16 + 3}]")
        for i in range(2, 8):
            for r in range(2):
                A(f"v_pk_add_f32 v[{T + 2*r}:{T + 2*r + 1}], v[{T + 2*r}:{T + 2*r + 1}], v[{src + r*16 + 2*i}:{src + r*16 + 2*i + 1}]")
        for r in range(2):
            A(f"v_add_f32 v{T + 2*r}, v{T + 2*r}, v{T + 2*r + 1}")
        wave_sum_multi(A, [T, T + 2], 44)
        A("s_nop 1")
        for r in range(2):
            A(f"v_mov_b32 v{ST + 2*r}, s{44 + r}")
            A(f"v_mul_f32 v{ST + 2*r}, 0x3a800000, v{ST + 2*r}")
        for r in range(2):
            for i in range(8):
                A(f"v_pk_add_f32 v[{dst + r*16 + 2*i}:{dst + r*16 + 2*i + 1}], v[{src + r*16 + 2*i}:{src + r*16 + 2*i + 1}], v[{ST + 2*r}:{ST + 2*r + 1}] op_sel_hi:[1,0] neg_lo:[0,1] neg_hi:[0,1]")
        for r in range(2):
            A(f"v_pk_mul_f32 v[{T + 2*r}:{T + 2*r + 1}], v[{dst + r*16}:{dst + r*16 + 1}], v[{dst + r*16}:{dst + r*16 + 1}]")
        for i in range(1, 8):
            for r in range(2):
                A(f"v_pk_fma_f32 v[{T + 2*r}:{T + 2*r + 1}], v[{dst + r*16 + 2*i}:{dst + r*16 + 2*i + 1}], v[{dst + r*16 + 2*i}:{dst + r*16 + 2*i + 1}], v[{T + 2*r}:{T + 2*r + 1}]")
        for r in range(2):
            A(f"v_add_f32 v{T + 2*r}, v{T + 2*r}, v{T + 2*r + 1}")
        wave_sum_multi(A, [T, T + 2], 44)
        A("s_nop 1")
        for r in range(2):
            A(f"v_mov_b32 v{ST + 4 + r}, s{44 + r}")
            A(f"v_mul_f32 v{ST + 4 + r}, 0x3a800000, v{ST + 4 + r}")
        rnd2(A, ST + 4, ST + 5, T)
        rnd2(A, ST, ST + 2, T)
        A(f"v_add_f32 v{ST + 4}, 0x3727c5ac, v{ST + 4}")
        A(f"v_add_f32 v{ST + 5}, 0x3727c5ac, v{ST + 5}")
        rnd2(A, ST + 4, ST + 5, T)
        A(f"v_sqrt_f32 v{ST + 4}, v{ST + 4}")
        A(f"v_sqrt_f32 v{ST + 5}, v{ST + 5}")
        A("s_nop 0")
        rnd2(A, ST + 4, ST + 5, T)
        A(f"v_rcp_f32 v{ST + 6}, v{ST + 4}")
        A(f"v_rcp_f32 v{ST + 8}, v{ST + 5}")
        A("s_nop 0")
        for r in range(2):
            for i in range(8):
                d = dst + r * 16 + 2 * i
                s_ = src + r * 16 + 2 * i
                A(f"v_pk_add_f32 v[{d}:{d+1}], v[{s_}:{s_+1}], v[{ST + 2*r}:{ST + 2*r + 1}] op_sel_hi:[1,0] neg_lo:[0,1] neg_hi:[0,1]")
                rnd2(A, d, d + 1, T + (i & 3))
                A(f"v_pk_mul_f32 v[{d}:{d+1}], v[{d}:{d+1}], v[{ST + 6 + 2*r}:{ST + 7 + 2*r}] op_sel_hi:[1,0]")
                rnd2(A, d, d + 1, T + 4 + (i & 3))

    layernorm(X, D)
    poll_hook(A)
    A("v_lshlrev_b32 v5, 14, v0"); A("s_lshl_b32 s18, s17, 4"); A("v_add_u32 v5, s18, v5")
    for c in range(4):
        A(f"s_mov_b32 s18, {c * 4096}")
        A(f"buffer_load_dwordx4 v[{84 + 4*c}:{87 + 4*c}], v5, s[8:11], s18 offen sc1")
    A("v_lshlrev_b32 v5, 4, v0")
    for j in range(5):
        A(f"s_mov_b32 s18, {j * 4096}"); A(f"s_mov_b32 s19, {j * 4096 + 24576}")
        A(f"buffer_load_dwordx4 v[{40 + 4*j}:{43 + 4*j}], v5, s[12:15], s18 offen sc1")
        A(f"buffer_load_dwordx4 v[{60 + 4*j}:{63 + 4*j}], v5, s[12:15], s19 offen sc1")
    npf = 0
    if pfw:
        A(f"s_mul_i32 s18, s2, {pfw * 4096}")
        A("v_lshlrev_b32 v6, 4, v0"); A("v_add_u32 v6, s18, v6")
        for bi in range(2):
            srd(A, 28, 36 + 2 * bi, 37 + 2 * bi, 7340032)
            for j in range(pfw):
                A(f"s_mov_b32 s18, {j * 4096}")
                A(f"buffer_load_dwordx4 a[{4 * npf}:{4 * npf + 3}], v6, s[28:31], s18 offen")
                npf += 1
    A(f"s_waitcnt vmcnt({npf})")
    A(f"v_add_u32 v6, {MBUF}, v5")
    for j in range(5):
        for h in range(2):
            r = 40 + 4 * j + 2 * h
            A(f"v_pk_add_f32 v[{r}:{r+1}], v[{r}:{r+1}], v[{r+20}:{r+21}]")
            rnd2(A, r, r + 1, 80 + h)
            if j in (1, 4):
                A(f"v_pk_add_f32 v[{r}:{r+1}], v[{r}:{r+1}], 1.0 op_sel_hi:[1,0]")
                rnd2(A, r, r + 1, 80 + h)
        A(f"ds_write_b128 v6, v[{40 + 4*j}:{43 + 4*j}] offset:{j * 4096}")
    YB = MBUF + 20480
    A("s_mov_b32 s18, 0x05040100"); A("s_mov_b32 s19, 0x07060302")
    A(f"v_lshlrev_b32 v6, 3, v0"); A(f"v_add_u32 v6, {YB}, v6")
    for rr in range(8):
        sel = "s18" if rr % 2 == 0 else "s19"
        dw = rr >> 1
        o = 100 + 2 * (rr & 3)
        A(f"v_perm_b32 v{o}, v{88 + dw}, v{84 + dw}, {sel}")
        A(f"v_perm_b32 v{o + 1}, v{96 + dw}, v{92 + dw}, {sel}")
        A(f"ds_write_b64 v6, v[{o}:{o+1}] offset:{rr * 2064}")
    A("s_waitcnt lgkmcnt(0)")
    A("s_barrier")
    A(f"s_mul_i32 s18, s16, {2 * 2064}"); A(f"s_add_u32 s18, s18, {YB}")
    A("v_lshlrev_b32 v6, 4, v2"); A("v_add_u32 v6, s18, v6")
    for r in range(2):
        for h in range(2):
            A(f"ds_read_b128 v[{YP + r*8 + h*4}:{YP + r*8 + h*4 + 3}], v6 offset:{r * 2064 + h * 1024}")
    A(f"v_lshlrev_b32 v5, 5, v2"); A(f"v_add_u32 v5, {MBUF}, v5")
    for vec in range(5):
        for h in range(2):
            for q in range(2):
                r = MV + vec * 16 + h * 8 + q * 4
                A(f"ds_read_b128 v[{r}:{r+3}], v5 offset:{vec * 4096 + h * 2048 + q * 16}")
    A("s_waitcnt lgkmcnt(0)")
    SA, CA, GA, SB, CB = [MV + 16 * i for i in range(5)]
    for r in range(2):
        for i in range(8):
            d = D + r * 16 + 2 * i
            x = X + r * 16 + 2 * i
            t = T + (i & 3)
            u = T + 8 + 2 * (i & 3)
            A(f"v_pk_mul_f32 v[{d}:{d+1}], v[{d}:{d+1}], v[{CA + 2*i}:{CA + 2*i + 1}]")
            rnd2(A, d, d + 1, t)
            A(f"v_pk_add_f32 v[{d}:{d+1}], v[{d}:{d+1}], v[{SA + 2*i}:{SA + 2*i + 1}]")
            rnd2(A, d, d + 1, t)
            unpack2(A, u, YP + r * 8 + i)
            A(f"v_pk_mul_f32 v[{d}:{d+1}], v[{d}:{d+1}], v[{u}:{u+1}]")
            rnd2(A, d, d + 1, t)
            A(f"v_pk_mul_f32 v[{d}:{d+1}], v[{d}:{d+1}], v[{GA + 2*i}:{GA + 2*i + 1}]")
            rnd2(A, d, d + 1, t)
            A(f"v_pk_add_f32 v[{x}:{x+1}], v[{x}:{x+1}], v[{d}:{d+1}]")
            A(f"v_cvt_pk_bf16_f32 v{XP + r*8 + i}, v{x}, v{x+1}")
            unpack2(A, x, XP + r * 8 + i)
    for r in range(2):
        for h in range(2):
            A(f"buffer_store_dwordx4 v[{XP + r*8 + h*4}:{XP + r*8 + h*4 + 3}], v4, s[20:23], 0 offen offset:{r * 2048 + h * 1024} sc1")
    layernorm(X, D)
    for r in range(2):
        for i in range(8):
            d = D + r * 16 + 2 * i
            t = T + (i & 3)
            A(f"v_pk_mul_f32 v[{d}:{d+1}], v[{d}:{d+1}], v[{CB + 2*i}:{CB + 2*i + 1}]")
            rnd2(A, d, d + 1, t)
            A(f"v_pk_add_f32 v[{d}:{d+1}], v[{d}:{d+1}], v[{SB + 2*i}:{SB + 2*i + 1}]")
            A(f"v_cvt_pk_bf16_f32 v{YP + r*8 + i}, v{d}, v{d+1}")
    A("v_lshrrev_b32 v5, 2, v2")
    A("v_lshlrev_b32 v5, 9, v5")
    A("v_and_b32 v6, 1, v2"); A("v_lshl_add_u32 v5, v6, 8, v5")
    A("v_bfe_u32 v6, v2, 1, 1"); A("v_lshl_add_u32 v5, v6, 3, v5")
    A("s_lshl_b32 s18, s16, 5"); A(f"s_add_u32 s18, s18, {LBUF}")
    A("v_add_u32 v5, s18, v5")
    for r in range(2):
        for h in range(2):
            for e in range(2):
                src = YP + r * 8 + h * 4 + e * 2
                A(f"ds_write_b64 v5, v[{src}:{src+1}] offset:{h * 8192 + e * 128 + r * 16}")
    A("s_waitcnt lgkmcnt(0)")
    A("s_barrier")
    A("v_lshrrev_b32 v5, 5, v0")
    A(f"v_lshlrev_b32 v6, 4, v0"); A(f"v_add_u32 v6, {LBUF}, v6")
    A("v_lshlrev_b32 v7, 10, v5")
    A("v_bfe_u32 v5, v0, 3, 2"); A("v_lshl_add_u32 v7, v5, 8, v7")
    A("v_and_b32 v5, 7, v0"); A("v_lshl_add_u32 v7, v5, 4, v7")
    A("s_lshr_b32 s18, s17, 1"); A("s_lshl_b32 s18, s18, 15")
    A("s_and_b32 s19, s17, 1"); A("s_lshl_b32 s19, s19, 7"); A("s_add_u32 s18, s18, s19")
    A("v_add_u32 v7, s18, v7")
    for j in range(4):
        A(f"ds_read_b128 v[{40 + 4*j}:{43 + 4*j}], v6 offset:{j * 4096}")
    for j in range(4):
        A(f"s_waitcnt lgkmcnt({3 - j})")
        A(f"s_mov_b32 s19, {j * 8192}")
        A(f"buffer_store_dwordx4 v[{40 + 4*j}:{43 + 4*j}], v7, s[24:27], s19 offen sc1")


def mk_poll(phase):
    def hook(A, g):
        vT0, vT1, vLane = g['vT0'], g['vT1'], g['vLane']
        A(f"v_and_b32 v{vT0}, 15, v{vLane}")
        A(f"s_lshl_b32 s58, s{S_MT}, 4")
        A(f"v_add_u32 v{vT0}, s58, v{vT0}"); A(f"v_lshlrev_b32 v{vT0}, 7, v{vT0}")
        poll_flags(A, S_FLAG, S_NONCE, vT0, phase, vT1, 59)
    return hook


def publish_rgi(A, val, vt):
    L = A.newlabel("Lpub")
    A("s_waitcnt vmcnt(0)")
    A("s_barrier")
    A(f"s_cmp_lg_u32 s{S_WAVE}, 0"); A(f"s_cbranch_scc1 {L}")
    A(f"s_lshl_b32 s76, s{S_MT}, 4"); A(f"s_add_u32 s76, s76, s{S_NT}")
    A(f"s_lshl_b32 s76, s76, 7"); A(f"s_add_u32 s77, s{S_NONCE}, {val}")
    A(f"v_mov_b32 v{vt}, s76"); A(f"v_mov_b32 v{vt+1}, s77")
    A("s_mov_b64 exec, 1")
    A(f"buffer_store_dword v{vt+1}, v{vt}, s[{S_FLAG}:{S_FLAG+3}], 0 offen sc1")
    A("s_mov_b64 exec, -1")
    A.label(L)


G1 = dict(MT=128, WM=2, WN=2, NSUB=2, NW=224, K=1024, RSG=7168, KS=1, R=4, PD=1, LAG=0,
          fs=2, fbits=1, wptr=[KA['w1'], KA['w3']], act_off=WS_H2, epilogue=epi1, etemps=16,
          hook_poll=mk_poll(1), act_sc1=1, out_sc1=1, rot=8, stamp0=2)
G2 = dict(MT=128, WM=2, WN=2, NSUB=1, NW=64, K=3584, RSG=2048, KS=2, R=6, PD=2, LAG=1,
          fs=1, fbits=2, wptr=[KA['w2']], act_off=WS_HH, epilogue=epi2, etemps=8, NSET=4,
          hook_poll=mk_poll(2), hook_pre=pre2, pre_regs=34, act_sc1=1, rot=0, pre_barrier=1, stamp0=4)


def gen_b(A, name="b_kernel", opts={}):
    g1 = dict(G1); g2 = dict(G2)
    for k, v in opts.items():
        if k.startswith("g1_"): g1[k[3:]] = v
        if k.startswith("g2_"): g2[k[3:]] = v
    import gen_a, gen_front
    gen_a.TMP[0] = 76; gen_front.STMP[0] = 78
    A.begin_kernel(name)
    Lend = A.newlabel("Lend")
    A("s_cmp_ge_u32 s2, 256"); A(f"s_cbranch_scc1 {Lend}")
    stamp(A, 0)
    A(f"s_load_dwordx4 s[68:71], s[0:1], {KA['dbg']}")
    A("v_lshrrev_b32 v1, 6, v0"); A("s_nop 0"); A(f"v_readfirstlane_b32 s{S_WAVE}, v1")
    A(f"s_mov_b32 {MASK}, 0xffff0000")
    A("s_and_b32 s17, s2, 7"); A("s_lshr_b32 s18, s2, 3")
    A(f"s_and_b32 s{S_MT}, s17, 1"); A(f"s_lshl_b32 s{S_MT}, s{S_MT}, 3"); A("s_and_b32 s19, s18, 7"); A(f"s_add_u32 s{S_MT}, s{S_MT}, s19")
    A(f"s_lshr_b32 s{S_NT}, s17, 1"); A(f"s_lshl_b32 s{S_NT}, s{S_NT}, 2"); A("s_lshr_b32 s19, s18, 3"); A(f"s_add_u32 s{S_NT}, s{S_NT}, s19")
    A("s_waitcnt lgkmcnt(0)")
    srd(A, 72, 68, 69, 256)
    srd_off(A, S_FLAG, 70, 71, WS_FLAG, 256 * 128)
    nonce_write(A, 72, 6)
    ln_part(A, 147456, opts.get('pfw', 0))
    Lgot = A.newlabel("Lgot")
    A("s_waitcnt vmcnt(0)")
    A(f"v_readfirstlane_b32 s{S_NONCE}, v223")
    A("s_nop 3")
    A(f"s_cmp_lg_u32 s{S_NONCE}, 0"); A(f"s_cbranch_scc1 {Lgot}")
    nonce_read(A, 72, S_NONCE, 24, 55)
    A.label(Lgot)
    publish_rgi(A, 1, 24)
    stamp(A, 1)
    nv1, na1, l1 = gemm_body(A, g1)
    publish_rgi(A, 2, 0)
    nv2, na2, l2 = gemm_body(A, g2)
    rt_out(A, Lend, S_WAVE)
    A.label(Lend); A("s_endpgm")
    A.end_kernel(name, 256, max(na1, na2), 102, 256, 256, 163840)


def gen_all(A, name="all_kernel", opts={}):
    import gen_a, gen_front
    g1 = dict(G1); g2 = dict(G2)
    g1['hook_poll'] = mk_poll(3); g2['hook_poll'] = mk_poll(4)
    g1['stamp0'] = 2; g2['stamp0'] = 4
    for k, v in opts.items():
        if k.startswith("g1_"): g1[k[3:]] = v
        if k.startswith("g2_"): g2[k[3:]] = v
    gen_a.TMP[0] = 38; gen_front.STMP[0] = 36
    A.begin_kernel(name)
    Lend = A.newlabel("Lend")
    A("s_cmp_ge_u32 s2, 256"); A(f"s_cbranch_scc1 {Lend}")
    A("s_and_b32 s17, s2, 7"); A("s_lshr_b32 s18, s2, 3")
    A(f"s_and_b32 s{S_MT}, s17, 1"); A(f"s_lshl_b32 s{S_MT}, s{S_MT}, 3"); A("s_and_b32 s19, s18, 7"); A(f"s_add_u32 s{S_MT}, s{S_MT}, s19")
    A(f"s_lshr_b32 s{S_NT}, s17, 1"); A(f"s_lshl_b32 s{S_NT}, s{S_NT}, 2"); A("s_lshr_b32 s19, s18, 3"); A(f"s_add_u32 s{S_NT}, s{S_NT}, s19")
    gen_a.gen_front_a(A, prefetch=(0, 0, 0), pfm=0, merged=True, hook_x=ln_xload)
    publish_flag(A, 32, S_NONCE, 2, S_WAVE, 24)
    stamp(A, 1)
    A("s_mov_b64 s[76:77], s[32:33]"); A("s_mov_b64 s[78:79], s[34:35]")
    srd_off(A, S_FLAG, 70, 71, WS_FLAG + 256 * 128, 256 * 128)
    def grid_poll(A):
        A("s_lshl_b32 s18, s16, 6"); A("v_add_u32 v5, s18, v2"); A("v_lshlrev_b32 v5, 7, v5")
        gen_a.TMP[0] = 46
        poll_flags(A, 76, S_NONCE, 5, 2, 6, 55)
        A("s_barrier")
        if opts.get('st2'): gen_front.STMP[0] = 48; stamp(A, 2)
    ln_split(A, 147456, 0, opts.get('pfw', 0), grid_poll)
    gen_a.TMP[0] = 76; gen_front.STMP[0] = 78
    publish_rgi(A, 3, 24)
    if opts.get('st2'): stamp(A, 3); g1['stamp0'] = 4; g2['stamp0'] = -100
    nv1, na1, l1 = gemm_body(A, g1)
    publish_rgi(A, 4, 0)
    nv2, na2, l2 = gemm_body(A, g2)
    rt_out(A, Lend, S_WAVE)
    A.label(Lend); A("s_endpgm")
    A.end_kernel(name, 256, max(na1, na2, 176), 102, 256, 256, 163840)
```

```python
from gen import *
from gen_front import MASK, rnd2, unpack2, stamp, stamp_out, STAMP

POLL_MAX = 200000


TMP = [38]

def nonce_write(A, sdbg, vt):
    L = A.newlabel("Lnw")
    A("s_cmp_lg_u32 s2, 0"); A(f"s_cbranch_scc1 {L}")
    A(f"s_memrealtime s[{TMP[0]}:{TMP[0]+1}]")
    A("s_waitcnt lgkmcnt(0)")
    A(f"s_lshl_b32 s{TMP[0]}, s{TMP[0]}, 3"); A(f"s_or_b32 s{TMP[0]}, s{TMP[0]}, 8")
    A(f"v_mov_b32 v{vt}, 0"); A(f"v_mov_b32 v{vt+1}, s{TMP[0]}")
    A("v_cmp_eq_u32 vcc, 0, v0")
    A(f"s_and_saveexec_b64 s[{TMP[0]}:{TMP[0]+1}], vcc")
    A(f"s_cbranch_execz {L}_r")
    A(f"buffer_store_dword v{vt+1}, v{vt}, s[{sdbg}:{sdbg+3}], 0 offen sc1")
    A.label(f"{L}_r")
    A(f"s_mov_b64 exec, s[{TMP[0]}:{TMP[0]+1}]")
    A.label(L)


def nonce_read(A, sdbg, snonce, vt, scnt):
    L = A.newlabel("Lnr"); Ld = A.newlabel("Lnd")
    A(f"s_mov_b32 s{scnt}, {POLL_MAX}")
    A(f"v_mov_b32 v{vt}, 0")
    A.label(L)
    A(f"buffer_load_dword v{vt+1}, v{vt}, s[{sdbg}:{sdbg+3}], 0 offen sc1")
    A("s_waitcnt vmcnt(0)")
    A(f"v_readfirstlane_b32 s{snonce}, v{vt+1}")
    A("s_nop 3")
    A(f"s_cmp_lg_u32 s{snonce}, 0")
    A(f"s_cbranch_scc1 {Ld}")
    A(f"s_sub_u32 s{scnt}, s{scnt}, 1"); A(f"s_cmp_lg_u32 s{scnt}, 0")
    A("s_sleep 1")
    A(f"s_cbranch_scc1 {L}")
    A.label(Ld)


def publish_flag(A, sflag, snonce, val, swave, vt):
    L = A.newlabel("Lpub")
    A("s_waitcnt vmcnt(0)")
    A("s_barrier")
    A(f"s_cmp_lg_u32 s{swave}, 0"); A(f"s_cbranch_scc1 {L}")
    A(f"s_lshl_b32 s{TMP[0]}, s2, 7"); A(f"s_add_u32 s{TMP[0]+1}, s{snonce}, {val}")
    A(f"v_mov_b32 v{vt}, s{TMP[0]}"); A(f"v_mov_b32 v{vt+1}, s{TMP[0]+1}")
    A("s_mov_b64 exec, 1")
    A(f"buffer_store_dword v{vt+1}, v{vt}, s[{sflag}:{sflag+3}], 0 offen sc1")
    A("s_mov_b64 exec, -1")
    A.label(L)


def poll_flags(A, sflag, snonce, vaddr, val, vt, scnt):
    L = A.newlabel("Lpoll"); Ld = A.newlabel("Lpd")
    A(f"s_mov_b32 s{scnt}, {POLL_MAX}")
    A(f"s_add_u32 s{TMP[0]}, s{snonce}, {val}")
    A.label(L)
    A(f"buffer_load_dword v{vt}, v{vaddr}, s[{sflag}:{sflag+3}], 0 offen sc1")
    A("s_waitcnt vmcnt(0)")
    A(f"v_subrev_u32 v{vt}, s{TMP[0]}, v{vt}")
    A(f"v_cmp_gt_u32 vcc, {8 - val}, v{vt}")
    A("s_nop 1")
    A("s_cmp_eq_u64 vcc, -1")
    A(f"s_cbranch_scc1 {Ld}")
    A(f"s_sub_u32 s{scnt}, s{scnt}, 1"); A(f"s_cmp_lg_u32 s{scnt}, 0")
    A("s_sleep 1")
    A(f"s_cbranch_scc1 {L}")
    A.label(Ld)


def gen_front_a(A, name="fronta_kernel", prefetch=(1, 1, 0), nearly=0, pfm=1, merged=False, hook_x=None):
    CSZ = 4416
    TCH = 4 * CSZ
    RKV = 4 * TCH
    RCH = 8192
    SIL = RKV + 4 * RCH
    GRED = SIL + 2048
    LDS = GRED + 8192
    OUTS = 4096 + 32
    CHS = 128 + 16
    KVB = RKV
    if not merged:
        A.begin_kernel(name)
        Lend = A.newlabel("Lend")
        A("s_cmp_ge_u32 s2, 256"); A(f"s_cbranch_scc1 {Lend}")
    stamp(A, 0)
    A(f"s_load_dwordx4 s[44:47], s[0:1], {KA['k']}")
    A(f"s_load_dwordx4 s[48:51], s[0:1], {KA['shift']}")
    A(f"s_load_dwordx2 s[52:53], s[0:1], {KA['ssmD']}")
    A(f"s_load_dwordx4 s[56:59], s[0:1], {KA['w1']}")
    A(f"s_load_dwordx4 s[60:63], s[0:1], {KA['w2']}")
    A(f"s_load_dwordx2 s[64:65], s[0:1], {KA['wmod']}")
    A(f"s_load_dwordx4 s[68:71], s[0:1], {KA['dbg']}")
    A("v_lshrrev_b32 v1, 6, v0"); A("v_and_b32 v2, 63, v0"); A("s_nop 0"); A("v_readfirstlane_b32 s16, v1")
    A(f"s_mov_b32 {MASK}, 0xffff0000")
    A("s_and_b32 s41, s2, 7")
    A("s_lshr_b32 s42, s2, 3")
    A("s_lshl_b32 s17, s41, 7"); A("s_lshl_b32 s18, s42, 2"); A("s_add_u32 s17, s17, s18")
    A("v_and_b32 v248, 15, v0")
    A("v_lshrrev_b32 v249, 4, v0")
    A("s_waitcnt lgkmcnt(0)")
    srd(A, 4, 44, 45, 4 << 20)
    srd(A, 8, 46, 47, 4 << 20)
    srd(A, 24, 48, 49, 8192)
    srd_off(A, 20, 70, 71, WS_RKV, 1024 * 5120)
    srd(A, 72, 68, 69, 256)
    srd_off(A, 28, 70, 71, WS_FLAG, 256 * 128)
    A("s_mov_b64 s[32:33], s[28:29]"); A("s_mov_b64 s[34:35], s[30:31]")
    nonce_write(A, 72, 6)
    A("s_lshl_b32 s19, s42, 17"); A("s_lshl_b32 s18, s41, 8"); A("s_add_u32 s19, s19, s18")
    A("v_lshlrev_b32 v3, 13, v249"); A("v_lshl_add_u32 v3, v248, 4, v3"); A("v_add_u32 v3, s19, v3")
    KR, VR, WR = 8, 36, 52
    for i in range(-3, 4):
        if i == 0: vo = 3
        else:
            A(f"v_add_u32 v4, {i * 2048}, v3") if i > 0 else A(f"v_subrev_u32 v4, {-i * 2048}, v3")
            vo = 4
        r = KR + 4 * (i + 3)
        A(f"buffer_load_dwordx4 v[{r}:{r+3}], v{vo}, s[4:7], 0 offen")
        if i >= 0:
            r = VR + 4 * i
            A(f"buffer_load_dwordx4 v[{r}:{r+3}], v{vo}, s[8:11], 0 offen")
    A("s_lshl_b32 s18, s41, 10"); A("v_lshlrev_b32 v4, 6, v248"); A("v_add_u32 v4, s18, v4")
    for q in range(4):
        A(f"buffer_load_dwordx4 v[{WR + 4*q}:{WR + 4*q + 3}], v4, s[24:27], 0 offen offset:{16 * q}")
    A("s_add_u32 s18, s17, s16"); A("s_lshl_b32 s18, s18, 12")
    A("s_add_u32 s12, s50, s18"); A("s_addc_u32 s13, s51, 0"); A("s_and_b32 s13, s13, 0xffff")
    A("s_mov_b32 s14, 4096"); A("s_mov_b32 s15, 0x00020000")
    A("s_lshl_b32 s18, s17, 1")
    A("s_add_u32 s18, s52, s18"); A("s_addc_u32 s19, s53, 0")
    A("s_load_dwordx2 s[76:77], s[18:19], 0")
    ER = 200
    A("v_lshlrev_b32 v5, 4, v2")
    for j in range(4):
        for e in range(3):
            r = ER + j * 12 + e * 4
            A(f"buffer_load_dwordx4 v[{r}:{r+3}], v5, s[12:15], 0 offen offset:{j * 1024 + e * 4}")
    A("v_mov_b32 v6, 0")
    A("buffer_load_dwordx2 v[250:251], v6, s[12:15], 0 offen")
    A("s_waitcnt vmcnt(13)")
    if not merged: stamp(A, 1)
    A("v_mov_b32 v6, 0")
    A("buffer_load_dword v255, v6, s[72:75], 0 offen sc1")
    if pfm:
        srd(A, 28, 64, 65, 1024 * 12288)
        A(f"s_mul_i32 s18, s2, {12 * 4096}")
        A("v_lshlrev_b32 v6, 4, v0"); A("v_add_u32 v6, s18, v6")
        for j in range(12):
            A(f"s_mov_b32 s18, {j * 4096}")
            A(f"buffer_load_dwordx4 a[{112 + 4*j}:{115 + 4*j}], v6, s[28:31], s18 offen")
    WF = 68
    for e in range(8):
        for j in range(4):
            src = WR + 2 * e + (j >> 1)
            dst = WF + (j * 4 + (e >> 1)) * 2 + (e & 1)
            if j & 1: A(f"v_and_b32 v{dst}, {MASK}, v{src}")
            else: A(f"v_lshlrev_b32 v{dst}, 16, v{src}")
    KF = 100
    for i in range(7):
        for p in range(4):
            unpack2(A, KF + i * 8 + 2 * p, KR + 4 * i + p)
    KVF = 156
    for i in range(4):
        for p in range(4):
            d = KVF + i * 8 + 2 * p
            P, Q, TT = 188 + 4 * (p & 1), 190 + 4 * (p & 1), 196 + (p & 1)
            kk = lambda row: KF + row * 8 + 2 * p
            ww = lambda j: WF + (j * 4 + p) * 2
            A(f"v_pk_mul_f32 v[{d}:{d+1}], v[{kk(i)}:{kk(i)+1}], v[{ww(3)}:{ww(3)+1}]")
            rnd2(A, d, d + 1, TT)
            for j in (2, 1, 0):
                A(f"v_pk_mul_f32 v[{P}:{P+1}], v[{kk(i + 3 - j)}:{kk(i + 3 - j)+1}], v[{ww(j)}:{ww(j)+1}]")
                rnd2(A, P, P + 1, TT)
                A(f"v_pk_add_f32 v[{d}:{d+1}], v[{d}:{d+1}], v[{P}:{P+1}]")
                rnd2(A, d, d + 1, TT)
            unpack2(A, Q, VR + 4 * i + p)
            A(f"v_pk_mul_f32 v[{d}:{d+1}], v[{d}:{d+1}], v[{Q}:{Q+1}]")
    A(f"v_mul_u32_u24 v4, {8 * CHS}, v248")
    A("v_lshlrev_b32 v6, 3, v249"); A("v_sub_u32 v4, v4, v6"); A(f"v_add_u32 v4, {KVB + 120}, v4")
    for e in range(8):
        A(f"v_cvt_pk_bf16_f32 v{8 + 2*e}, v{KVF + 3*8 + e}, v{KVF + 2*8 + e}")
        A(f"v_cvt_pk_bf16_f32 v{9 + 2*e}, v{KVF + 1*8 + e}, v{KVF + 0*8 + e}")
        A(f"ds_write_b64 v4, v[{8 + 2*e}:{9 + 2*e}] offset:{e * CHS}")
    A("s_waitcnt lgkmcnt(0)")
    A("s_barrier")
    A("v_lshrrev_b32 v4, 3, v0"); A("v_and_b32 v3, 7, v0")
    A(f"v_mul_u32_u24 v6, {CHS}, v4"); A("v_lshl_add_u32 v6, v3, 4, v6"); A(f"v_add_u32 v6, {KVB}, v6")
    A("v_mul_u32_u24 v7, 5120, v4"); A("v_lshl_add_u32 v7, v3, 4, v7")
    A(f"s_mul_i32 s18, s41, {128 * 5120}")
    A("s_sub_u32 s19, 31, s42"); A("s_mul_i32 s19, s19, 160"); A("s_add_u32 s18, s18, s19")
    A("v_add_u32 v7, s18, v7")
    for j in range(4):
        A(f"ds_read_b128 v[{8 + 4*j}:{11 + 4*j}], v6 offset:{j * 32 * CHS}")
    for j in range(4):
        A(f"s_waitcnt lgkmcnt({3 - j})")
        A(f"s_mov_b32 s18, {j * 32 * 5120}")
        A(f"buffer_store_dwordx4 v[{8 + 4*j}:{11 + 4*j}], v7, s[20:23], s18 offen sc1")
    Lgot = A.newlabel("Lgot")
    A("s_waitcnt vmcnt(0)")
    A("v_readfirstlane_b32 s93, v255")
    A("s_nop 3")
    A("s_cmp_lg_u32 s93, 0"); A(f"s_cbranch_scc1 {Lgot}")
    nonce_read(A, 72, 93, 24, 55)
    A.label(Lgot)
    publish_flag(A, 32, 93, 1, 16, 24)
    if not merged: stamp(A, 2)
    GV = 112
    A("s_cmp_ge_u32 s2, 96"); A("s_cselect_b32 s43, 1, 0")
    A("s_mul_i32 s18, s43, 96"); A("s_sub_u32 s54, s2, s18")
    srd(A, 24, 62, 63, 2048)
    srd(A, 28, 64, 65, 1024 * 12288)
    A("s_cmp_ge_u32 s2, 192"); A("s_cselect_b32 s30, 0, s30"); A("s_cselect_b32 s26, 0, s26")
    A("s_lshl_b32 s18, s43, 10"); A("v_lshlrev_b32 v6, 2, v0"); A("v_add_u32 v6, s18, v6")
    A("buffer_load_dword v252, v6, s[24:27], 0 offen")
    A("v_lshrrev_b32 v125, 3, v0"); A("v_mul_u32_u24 v125, 12288, v125")
    A("v_and_b32 v7, 7, v0"); A("v_lshl_add_u32 v125, v7, 4, v125")
    A("s_lshl_b32 s18, s54, 7"); A(f"s_mul_i32 s19, s43, {512 * 12288}"); A("s_add_u32 s18, s18, s19")
    A("v_add_u32 v125, s18, v125")
    gvl = []
    for j in range(16):
        gvl.append([f"s_mov_b32 s55, {j * 32 * 12288}",
                    f"buffer_load_dwordx4 a[{GV + 4*j}:{GV + 4*j + 3}], v125, s[28:31], s55 offen"])
    pfl = []
    A(f"s_mul_i32 s18, s2, {7 * 4096}")
    A("v_lshlrev_b32 v124, 4, v0"); A("v_add_u32 v124, s18, v124")
    for bi, lo in enumerate((56, 58, 60)):
        if not prefetch[bi]: continue
        srd(A, 80 + 4 * bi, lo, lo + 1, 7340032)
        for j in range(7):
            n = len(pfl)
            pfl.append([f"s_mov_b32 s55, {j * 4096}",
                        f"buffer_load_dwordx4 v[{128 + 4 * (n % 8)}:{131 + 4 * (n % 8)}], v124, s[{80 + 4*bi}:{83 + 4*bi}], s55 offen"])
    for x in pfl[:nearly]:
        for y in x: A(y)
    pfl = pfl[nearly:]
    A(f"s_mul_i32 s18, s16, {TCH}")
    A("v_add_u32 v6, s18, v5")
    W = 100
    for j in range(4):
        e0, e1, e2 = ER + j * 12, ER + j * 12 + 4, ER + j * 12 + 8
        off = 128 + j * 1024
        Wj = W + (j & 1) * 8
        for q in range(4):
            A(f"v_alignbit_b32 v{Wj + q}, v{e1 + q}, v{e0 + q}, 16")
            A(f"v_alignbit_b32 v{Wj + 4 + q}, v{e2 + q}, v{e1 + q}, 16")
        A(f"ds_write_b128 v6, v[{e0}:{e0+3}] offset:{off}")
        A(f"ds_write_b128 v6, v[{Wj}:{Wj+3}] offset:{off + CSZ}")
        A(f"ds_write_b128 v6, v[{e1}:{e1+3}] offset:{off + 2 * CSZ}")
        A(f"ds_write_b128 v6, v[{Wj+4}:{Wj+7}] offset:{off + 3 * CSZ}")
    Z = 40
    for i in range(16): A(f"v_mov_b32 v{Z + i}, 0")
    A("v_cmp_eq_u32 vcc, 7, v2")
    A("v_lshlrev_b32 v116, 16, v250")
    A("v_alignbit_b32 v117, v251, v250, 16")
    A(f"v_cndmask_b32 v{Z + 7}, 0, v116, vcc")
    A(f"v_cndmask_b32 v{Z + 11}, 0, v250, vcc")
    A(f"v_cndmask_b32 v{Z + 14}, 0, v116, vcc")
    A(f"v_cndmask_b32 v{Z + 15}, 0, v117, vcc")
    A("v_cmp_gt_u32 vcc, 8, v2")
    A("s_and_saveexec_b64 s[22:23], vcc")
    for c in range(4):
        A(f"ds_write_b128 v6, v[{Z + 4*c}:{Z + 4*c + 3}] offset:{c * CSZ}")
    A("s_mov_b64 exec, s[22:23]")
    srd_off(A, 20, 70, 71, WS_RKV, 1024 * 5120)
    A(f"s_mul_i32 s18, s16, {RCH}"); A(f"s_add_u32 s18, s18, {RKV}")
    A("v_add_u32 v7, s18, v5")
    for j in range(3):
        A(f"ds_write_b128 v7, v[{Z}:{Z+3}] offset:{5120 + j * 1024}")
    vTB, vKB = 3, 4
    A("v_and_b32 v253, 15, v2"); A("v_lshrrev_b32 v254, 4, v2")
    A("v_add_u32 v1, 1, v253"); A("v_and_b32 v1, 3, v1")
    A(f"v_mul_u32_u24 v{vTB}, {CSZ - 2}, v1")
    A(f"v_lshl_add_u32 v{vTB}, v253, 1, v{vTB}")
    A(f"v_lshl_add_u32 v{vTB}, v254, 4, v{vTB}")
    A(f"s_mul_i32 s18, s16, {TCH}"); A(f"s_add_u32 s18, s18, 2")
    A(f"v_add_u32 v{vTB}, s18, v{vTB}")
    A("v_sub_u32 v1, 15, v253"); A(f"v_mul_u32_u24 v{vKB}, 160, v1")
    A(f"v_lshl_add_u32 v{vKB}, v254, 4, v{vKB}")
    A(f"s_mul_i32 s18, s16, {RCH}"); A(f"s_add_u32 s18, s18, {RKV}")
    A(f"v_add_u32 v{vKB}, s18, v{vKB}")
    A("v_and_b32 v1, 31, v2"); A("v_lshlrev_b32 v1, 3, v1"); A("v_add_u32 v1, s41, v1"); A("v_lshlrev_b32 v1, 7, v1")
    poll_flags(A, 32, 93, 1, 1, 6, 55)
    if not merged: stamp(A, 3)
    A("s_add_u32 s18, s17, s16"); A("s_mul_i32 s18, s18, 5120")
    for j in range(5):
        A(f"s_add_u32 s19, s18, {j * 1024}")
        A(f"buffer_load_dwordx4 v[{56 + 4*j}:{59 + 4*j}], v5, s[20:23], s19 offen sc1")
    ACC = 8
    for i in range(32): A(f"v_mov_b32 v{ACC + i}, 0")
    for j in range(5):
        A(f"s_waitcnt vmcnt({4 - j})")
        A(f"ds_write_b128 v7, v[{56 + 4*j}:{59 + 4*j}] offset:{j * 1024}")
    npre = max(0, len(pfl) - 16)
    for x in pfl[:npre]:
        for y in x: A(y)
    pfl = pfl[npre:]
    A("s_waitcnt lgkmcnt(0)")
    NR = 10
    def tf(stream, tau): return stream * NR * 4 + ((tau + 2) % NR) * 4
    KVA = 2 * NR * 4
    def kf(p, which, kb): return KVA + p * 16 + (which * 2 + kb) * 4
    NAG = KVA + 32
    def rd_t(stream, tau):
        r = tf(stream, tau)
        off = 32 * (tau + 2)
        return [f"ds_read_b64 a[{r}:{r+1}], v{vTB} offset:{off}", f"ds_read_b64 a[{r+2}:{r+3}], v{vTB} offset:{off + 8}"]
    def rd_kv(p, j):
        res = []
        for which in range(2):
            dm = j + 16 * which
            for kb in range(2):
                r = kf(p, which, kb)
                res.append(f"ds_read_b128 a[{r}:{r+3}], v{vKB} offset:{160 * dm + 64 * (1 - kb)}")
        return res
    def reads_for(j, first=False):
        res = rd_kv(j & 1, j)
        for st in range(2):
            d = j + 16 * st
            for tau in range(4 * d - (2 if first else 0), 4 * d + 4):
                res += rd_t(st, tau)
        return res
    for x in reads_for(0, True): A(x)
    for j in range(16):
        A("s_waitcnt lgkmcnt(0)")
        mf = []
        p = j & 1
        for kb in range(2):
            for mb in range(4):
                t_lo = tf(0, 4 * j + mb - 2 * kb); t_hi = tf(1, 4 * (j + 16) + mb - 2 * kb)
                a1 = ACC + (mb * 2 + 1) * 4; a0 = ACC + (mb * 2) * 4
                k0 = kf(p, 0, kb); k1 = kf(p, 1, kb)
                mf.append(f"v_mfma_f32_16x16x32_bf16 v[{a1}:{a1+3}], a[{t_lo}:{t_lo+3}], a[{k0}:{k0+3}], v[{a1}:{a1+3}]")
                mf.append(f"v_mfma_f32_16x16x32_bf16 v[{a0}:{a0+3}], a[{t_lo}:{t_lo+3}], a[{k1}:{k1+3}], v[{a0}:{a0+3}]")
                mf.append(f"v_mfma_f32_16x16x32_bf16 v[{a1}:{a1+3}], a[{t_hi}:{t_hi+3}], a[{k1}:{k1+3}], v[{a1}:{a1+3}]")
        side = {}
        if j < 15:
            for i, x in enumerate(reads_for(j + 1)):
                side.setdefault(i, []).append(x)
        side.setdefault(20, []).extend(gvl[j])
        if j < len(pfl):
            side.setdefault(22, []).extend(pfl[j])
        for x in interleave(mf, side): A(x)
    A("s_nop 7"); A("s_nop 7")
    if not merged: stamp(A, 4)
    if hook_x: hook_x(A)
    if not merged: A("s_barrier")
    A("v_mul_u32_u24 v1, 24, v254")
    A(f"v_sub_u32 v5, v{vKB}, v1"); A("v_add_u32 v5, 24, v5")
    KVR = 48
    for mb in range(4):
        for nb in range(2):
            r = KVR + (mb * 2 + nb) * 2
            A(f"ds_read_b64 v[{r}:{r+1}], v5 offset:{2560 * (1 - nb) + 32 * (3 - mb)}")
    A("s_lshr_b32 s18, s16, 1"); A("s_cmp_eq_u32 s18, 0"); A("s_cselect_b32 s78, s76, s77")
    A("s_and_b32 s18, s16, 1")
    A("s_lshl_b32 s19, s78, 16"); A("s_and_b32 s78, s78, 0xffff0000"); A("s_cmp_eq_u32 s18, 0"); A("s_cselect_b32 s78, s19, s78")
    A("s_mov_b32 s79, s78")
    A("v_lshlrev_b32 v1, 7, v253"); A("v_lshl_add_u32 v1, v254, 3, v1")
    A(f"s_mul_i32 s18, s16, {TCH if merged else OUTS}"); A("v_add_u32 v1, s18, v1")
    A("s_waitcnt lgkmcnt(0)")
    for mb in range(4):
        for nb in range(2):
            a_ = ACC + (mb * 2 + nb) * 4
            r = KVR + (mb * 2 + nb) * 2
            u = 64 + ((mb * 2 + nb) & 1) * 8
            rnd2(A, a_, a_ + 1, u + 4); rnd2(A, a_ + 2, a_ + 3, u + 5)
            A(f"v_and_b32 v{u}, {MASK}, v{r+1}"); A(f"v_lshlrev_b32 v{u+1}, 16, v{r+1}")
            A(f"v_and_b32 v{u+2}, {MASK}, v{r}"); A(f"v_lshlrev_b32 v{u+3}, 16, v{r}")
            A(f"v_pk_mul_f32 v[{u}:{u+1}], v[{u}:{u+1}], s[78:79]")
            A(f"v_pk_mul_f32 v[{u+2}:{u+3}], v[{u+2}:{u+3}], s[78:79]")
            rnd2(A, u, u + 1, u + 4); rnd2(A, u + 2, u + 3, u + 5)
            A(f"v_pk_add_f32 v[{a_}:{a_+1}], v[{a_}:{a_+1}], v[{u}:{u+1}]")
            A(f"v_pk_add_f32 v[{a_+2}:{a_+3}], v[{a_+2}:{a_+3}], v[{u+2}:{u+3}]")
            A(f"v_cvt_pk_bf16_f32 v{u+6}, v{a_}, v{a_+1}")
            A(f"v_cvt_pk_bf16_f32 v{u+7}, v{a_+2}, v{a_+3}")
            A(f"ds_write_b64 v1, v[{u+6}:{u+7}] offset:{2048 * nb + 32 * mb}")
    if merged:
        srd_off(A, 4, 70, 71, WS_YP, 4 << 20)
        A(f"s_mul_i32 s18, s16, {TCH}"); A("v_lshlrev_b32 v5, 4, v2"); A("v_add_u32 v1, s18, v5")
        A("s_waitcnt lgkmcnt(0)")
        for j in range(4):
            A(f"ds_read_b128 v[{48 + 4*j}:{51 + 4*j}], v1 offset:{j * 1024}")
        A("s_add_u32 s18, s17, s16"); A("s_lshl_b32 s18, s18, 12")
        for j in range(4):
            A(f"s_waitcnt lgkmcnt({3 - j})")
            A(f"buffer_store_dwordx4 v[{48 + 4*j}:{51 + 4*j}], v5, s[4:7], s18 offen offset:{j * 1024} sc1")
    Lns = A.newlabel("Lns")
    A("s_cmp_ge_u32 s2, 192"); A(f"s_cbranch_scc1 {Lns}")
    unpack2(A, 80, 252)
    for i in range(2): A(f"v_mul_f32 v{82 + i}, 0xbfb8aa3b, v{80 + i}")
    for i in range(2): A(f"v_exp_f32 v{82 + i}, v{82 + i}")
    A("s_nop 0")
    for i in range(2): A(f"v_add_f32 v{82 + i}, 1.0, v{82 + i}")
    for i in range(2): A(f"v_rcp_f32 v{82 + i}, v{82 + i}")
    A("s_nop 0")
    for i in range(2): A(f"v_mul_f32 v{82 + i}, v{82 + i}, v{80 + i}")
    rnd2(A, 82, 83, 84)
    A("v_lshlrev_b32 v80, 1, v0"); A("v_and_b32 v81, 31, v80"); A("v_lshlrev_b32 v81, 6, v81")
    A("v_lshrrev_b32 v80, 5, v80"); A("v_lshl_add_u32 v81, v80, 2, v81"); A(f"v_add_u32 v81, {SIL}, v81")
    for i in range(2): A(f"ds_write_b32 v81, v{82 + i} offset:{i * 64}")
    A.label(Lns)
    A("s_waitcnt lgkmcnt(0)")
    A("s_barrier")
    if not merged:
        srd_off(A, 4, 70, 71, WS_YP, 4 << 20)
        A("v_lshlrev_b32 v1, 3, v0")
        for j in range(2):
            for c in range(4):
                r = 48 + (j * 4 + c) * 2
                A(f"ds_read_b64 v[{r}:{r+1}], v1 offset:{c * OUTS + j * 2048}")
        A("v_lshlrev_b32 v5, 13, v0")
        A("s_lshl_b32 s18, s17, 1"); A("v_add_u32 v5, s18, v5")
        A("s_mov_b32 s18, 0x05040100"); A("s_mov_b32 s19, 0x07060302")
        A("s_waitcnt lgkmcnt(0)")
        for j in range(2):
            b = 48 + j * 8
            o = 64 + j * 8
            for rr in range(4):
                sel = "s18" if rr % 2 == 0 else "s19"
                dw = rr >> 1
                A(f"v_perm_b32 v{o + 2*rr}, v{b + 2 + dw}, v{b + dw}, {sel}")
                A(f"v_perm_b32 v{o + 2*rr + 1}, v{b + 6 + dw}, v{b + 4 + dw}, {sel}")
            for rr in range(4):
                A(f"s_mov_b32 s20, {j * 1024 * 2048 + (rr >> 1) * 4096}")
                A(f"buffer_store_dwordx2 v[{o + 2*rr}:{o + 2*rr + 1}], v5, s[4:7], s20 offen offset:{(rr & 1) * 2048}{' sc1' if merged else ''}")
    if not merged: stamp(A, 5)
    Lfin = A.newlabel("Lfin")
    A("s_cmp_ge_u32 s2, 192"); A(f"s_cbranch_scc1 {Lfin}")
    A("v_lshrrev_b32 v1, 3, v0"); A("v_lshlrev_b32 v1, 6, v1"); A(f"v_add_u32 v1, {SIL}, v1")
    SV = 80
    for q in range(4):
        A(f"ds_read_b128 v[{SV + 4*q}:{SV + 4*q + 3}], v1 offset:{16 * q}")
    GA_ = 96
    for i in range(8): A(f"v_mov_b32 v{GA_ + i}, 0")
    A("s_waitcnt vmcnt(0) lgkmcnt(0)")
    for j in range(16):
        sj = SV + j
        base = sj & ~1
        sel = "op_sel:[0,0,0] op_sel_hi:[1,0,1]" if sj % 2 == 0 else "op_sel:[0,1,0] op_sel_hi:[1,1,1]"
        for q in range(4):
            A(f"v_accvgpr_read_b32 v{112 + q}, a{GV + 4 * j + q}")
        for q in range(4):
            unpack2(A, 104 + 2 * q, 112 + q)
        for q in range(4):
            u = 104 + 2 * q
            A(f"v_pk_fma_f32 v[{GA_ + 2*q}:{GA_ + 2*q + 1}], v[{u}:{u+1}], v[{base}:{base+1}], v[{GA_ + 2*q}:{GA_ + 2*q + 1}] {sel}")
    A("v_lshlrev_b32 v1, 5, v0"); A(f"v_add_u32 v1, {GRED}, v1")
    A(f"ds_write_b128 v1, v[{GA_}:{GA_+3}]")
    A(f"ds_write_b128 v1, v[{GA_+4}:{GA_+7}] offset:16")
    A("s_waitcnt lgkmcnt(0)")
    A("s_barrier")
    A("s_cmp_lg_u32 s16, 0"); A(f"s_cbranch_scc1 {Lfin}")
    A("v_lshlrev_b32 v1, 2, v2"); A(f"v_add_u32 v6, {GRED}, v1")
    for rg in range(32):
        A(f"ds_read_b32 v{80 + rg}, v6 offset:{rg * 256}")
    A("s_waitcnt lgkmcnt(0)")
    for st in (16, 8, 4, 2, 1):
        for i in range(st):
            A(f"v_add_f32 v{80 + i}, v{80 + i}, v{80 + i + st}")
    srd_off(A, 8, 70, 71, WS_MOD, 2 * 6144 * 4)
    A("s_lshl_b32 s18, s54, 8"); A("s_mul_i32 s19, s43, 24576"); A("s_add_u32 s18, s18, s19")
    A("v_add_u32 v1, s18, v1")
    A(f"buffer_store_dword v80, v1, s[8:11], 0 offen{' sc1' if merged else ''}")
    A.label(Lfin)
    if merged: return
    rt_out(A, Lend, 16)
    A.label(Lend); A("s_endpgm")
    A.end_kernel(name, 256, 176, 102, 256, 256, LDS)
```

```python
from gen import *

MASK = "s40"


def rnd2(A, a, b, t):
    A(f"v_cvt_pk_bf16_f32 v{t}, v{a}, v{b}")
    A(f"v_lshlrev_b32 v{a}, 16, v{t}")
    A(f"v_and_b32 v{b}, {MASK}, v{t}")


def unpack2(A, d, src):
    A(f"v_lshlrev_b32 v{d}, 16, v{src}")
    A(f"v_and_b32 v{d+1}, {MASK}, v{src}")


def wave_sum_multi(A, regs, sdst):
    steps = ["quad_perm:[1,0,3,2] row_mask:0xf bank_mask:0xf", "quad_perm:[2,3,0,1] row_mask:0xf bank_mask:0xf",
             "row_half_mirror row_mask:0xf bank_mask:0xf", "row_mirror row_mask:0xf bank_mask:0xf"]
    pad = max(0, 3 - len(regs))
    for st in steps:
        if pad: A(f"s_nop {pad - 1}")
        for r in regs:
            A(f"v_add_f32_dpp v{r}, v{r}, v{r} {st}")
    for st in ("row_bcast:15 row_mask:0xa bank_mask:0xf", "row_bcast:31 row_mask:0xc bank_mask:0xf"):
        if pad: A(f"s_nop {pad - 1}")
        for r in regs:
            A(f"v_add_f32_dpp v{r}, v{r}, v{r} {st}")
    A("s_nop 1")
    for i, r in enumerate(regs):
        A(f"v_readlane_b32 s{sdst + i}, v{r}, 63")


def gen_ln(A, name="ln_kernel", pf2=1):
    A.begin_kernel(name)
    Lend = A.newlabel("Lend")
    A("s_cmp_ge_u32 s2, 256"); A(f"s_cbranch_scc1 {Lend}")
    A(f"s_load_dwordx2 s[32:33], s[0:1], {KA['q']}")
    A(f"s_load_dwordx2 s[34:35], s[0:1], {KA['ws']}")
    A(f"s_load_dwordx2 s[36:37], s[0:1], {KA['w2']}")
    A("v_lshrrev_b32 v1, 6, v0"); A("v_and_b32 v2, 63, v0"); A("s_nop 0"); A("v_readfirstlane_b32 s16, v1")
    A(f"s_mov_b32 {MASK}, 0xffff0000")
    A("s_waitcnt lgkmcnt(0)")
    srd(A, 4, 32, 33, 4 << 20)
    srd_off(A, 8, 34, 35, WS_YP, 4 << 20)
    srd_off(A, 12, 34, 35, WS_MOD, 2 * 6144 * 4)
    srd_off(A, 20, 34, 35, WS_X1, 4 << 20)
    srd_off(A, 24, 34, 35, WS_H2, 4 << 20)
    A("s_lshl_b32 s17, s2, 3"); A("s_lshl_b32 s18, s16, 1"); A("s_add_u32 s17, s17, s18")
    A("s_lshl_b32 s17, s17, 11")
    A("v_lshlrev_b32 v3, 4, v2")
    A("v_add_u32 v4, s17, v3")
    XP, YP = 8, 24
    for r in range(2):
        for h in range(2):
            A(f"buffer_load_dwordx4 v[{XP + r*8 + h*4}:{XP + r*8 + h*4 + 3}], v4, s[4:7], 0 offen offset:{r * 2048 + h * 1024}")
    for r in range(2):
        for h in range(2):
            A(f"buffer_load_dwordx4 v[{YP + r*8 + h*4}:{YP + r*8 + h*4 + 3}], v4, s[8:11], 0 offen offset:{r * 2048 + h * 1024}")
    MV = 40
    A("v_lshlrev_b32 v5, 5, v2")
    for vec in range(5):
        A(f"s_mov_b32 s18, {vec * 4096}")
        for h in range(2):
            for q in range(2):
                r = MV + vec * 16 + h * 8 + q * 4
                A(f"buffer_load_dwordx4 v[{r}:{r+3}], v5, s[12:15], s18 offen offset:{h * 2048 + q * 16}")
    for vec in range(5):
        A(f"s_mov_b32 s18, {vec * 4096 + 24576}")
        for h in range(2):
            for q in range(2):
                r = 120 + vec * 16 + h * 8 + q * 4
                A(f"buffer_load_dwordx4 v[{r}:{r+3}], v5, s[12:15], s18 offen offset:{h * 2048 + q * 16}")
    A("s_waitcnt vmcnt(0)")
    for i in range(0, 80, 2):
        A(f"v_pk_add_f32 v[{MV+i}:{MV+i+1}], v[{MV+i}:{MV+i+1}], v[{120+i}:{121+i}]")
        rnd2(A, MV + i, MV + i + 1, 200 + (i >> 1 & 3))
    X = 120
    D = 152
    T = 184
    ST = 200
    for r in range(2):
        for i in range(8):
            unpack2(A, X + r * 16 + 2 * i, XP + r * 8 + i)

    def layernorm(src, dst):
        for r in range(2):
            A(f"v_pk_add_f32 v[{T + 2*r}:{T + 2*r + 1}], v[{src + r*16}:{src + r*16 + 1}], v[{src + r*16 + 2}:{src + r*16 + 3}]")
        for i in range(2, 8):
            for r in range(2):
                A(f"v_pk_add_f32 v[{T + 2*r}:{T + 2*r + 1}], v[{T + 2*r}:{T + 2*r + 1}], v[{src + r*16 + 2*i}:{src + r*16 + 2*i + 1}]")
        for r in range(2):
            A(f"v_add_f32 v{T + 2*r}, v{T + 2*r}, v{T + 2*r + 1}")
        wave_sum_multi(A, [T, T + 2], 44)
        A("s_nop 1")
        for r in range(2):
            A(f"v_mov_b32 v{ST + 2*r}, s{44 + r}")
            A(f"v_mul_f32 v{ST + 2*r}, 0x3a800000, v{ST + 2*r}")
        for r in range(2):
            for i in range(8):
                A(f"v_pk_add_f32 v[{dst + r*16 + 2*i}:{dst + r*16 + 2*i + 1}], v[{src + r*16 + 2*i}:{src + r*16 + 2*i + 1}], v[{ST + 2*r}:{ST + 2*r + 1}] op_sel_hi:[1,0] neg_lo:[0,1] neg_hi:[0,1]")
        for r in range(2):
            A(f"v_pk_mul_f32 v[{T + 2*r}:{T + 2*r + 1}], v[{dst + r*16}:{dst + r*16 + 1}], v[{dst + r*16}:{dst + r*16 + 1}]")
        for i in range(1, 8):
            for r in range(2):
                A(f"v_pk_fma_f32 v[{T + 2*r}:{T + 2*r + 1}], v[{dst + r*16 + 2*i}:{dst + r*16 + 2*i + 1}], v[{dst + r*16 + 2*i}:{dst + r*16 + 2*i + 1}], v[{T + 2*r}:{T + 2*r + 1}]")
        for r in range(2):
            A(f"v_add_f32 v{T + 2*r}, v{T + 2*r}, v{T + 2*r + 1}")
        wave_sum_multi(A, [T, T + 2], 44)
        A("s_nop 1")
        for r in range(2):
            A(f"v_mov_b32 v{ST + 4 + r}, s{44 + r}")
            A(f"v_mul_f32 v{ST + 4 + r}, 0x3a800000, v{ST + 4 + r}")
        rnd2(A, ST + 4, ST + 5, T)
        rnd2(A, ST, ST + 2, T)
        A(f"v_add_f32 v{ST + 4}, 0x3727c5ac, v{ST + 4}")
        A(f"v_add_f32 v{ST + 5}, 0x3727c5ac, v{ST + 5}")
        rnd2(A, ST + 4, ST + 5, T)
        A(f"v_sqrt_f32 v{ST + 4}, v{ST + 4}")
        A(f"v_sqrt_f32 v{ST + 5}, v{ST + 5}")
        A("s_nop 0")
        rnd2(A, ST + 4, ST + 5, T)
        A(f"v_rcp_f32 v{ST + 6}, v{ST + 4}")
        A(f"v_rcp_f32 v{ST + 8}, v{ST + 5}")
        A("s_nop 0")
        for r in range(2):
            for i in range(8):
                d = dst + r * 16 + 2 * i
                s_ = src + r * 16 + 2 * i
                A(f"v_pk_add_f32 v[{d}:{d+1}], v[{s_}:{s_+1}], v[{ST + 2*r}:{ST + 2*r + 1}] op_sel_hi:[1,0] neg_lo:[0,1] neg_hi:[0,1]")
                rnd2(A, d, d + 1, T + (i & 3))
                A(f"v_pk_mul_f32 v[{d}:{d+1}], v[{d}:{d+1}], v[{ST + 6 + 2*r}:{ST + 7 + 2*r}] op_sel_hi:[1,0]")
                rnd2(A, d, d + 1, T + 4 + (i & 3))

    layernorm(X, D)
    A("s_waitcnt vmcnt(0)")
    if pf2:
        srd(A, 28, 36, 37, 7340032)
        A(f"s_mul_i32 s18, s2, {7 * 4096}")
        A("v_lshlrev_b32 v6, 4, v0"); A("v_add_u32 v6, s18, v6")
        for j in range(7):
            A(f"s_mov_b32 s18, {j * 4096}")
            A(f"buffer_load_dwordx4 v[{212 + 4 * j}:{215 + 4 * j}], v6, s[28:31], s18 offen")
    SA, CA, GA, SB, CB = [MV + 16 * i for i in range(5)]
    for base in (CA, CB):
        for i in range(8):
            r = base + 2 * i
            A(f"v_pk_add_f32 v[{r}:{r+1}], v[{r}:{r+1}], 1.0 op_sel_hi:[1,0]")
            rnd2(A, r, r + 1, T + (i & 3))
    for r in range(2):
        for i in range(8):
            d = D + r * 16 + 2 * i
            x = X + r * 16 + 2 * i
            t = T + (i & 3)
            u = T + 8 + 2 * (i & 3)
            A(f"v_pk_mul_f32 v[{d}:{d+1}], v[{d}:{d+1}], v[{CA + 2*i}:{CA + 2*i + 1}]")
            rnd2(A, d, d + 1, t)
            A(f"v_pk_add_f32 v[{d}:{d+1}], v[{d}:{d+1}], v[{SA + 2*i}:{SA + 2*i + 1}]")
            rnd2(A, d, d + 1, t)
            unpack2(A, u, YP + r * 8 + i)
            A(f"v_pk_mul_f32 v[{d}:{d+1}], v[{d}:{d+1}], v[{u}:{u+1}]")
            rnd2(A, d, d + 1, t)
            A(f"v_pk_mul_f32 v[{d}:{d+1}], v[{d}:{d+1}], v[{GA + 2*i}:{GA + 2*i + 1}]")
            rnd2(A, d, d + 1, t)
            A(f"v_pk_add_f32 v[{x}:{x+1}], v[{x}:{x+1}], v[{d}:{d+1}]")
            A(f"v_cvt_pk_bf16_f32 v{XP + r*8 + i}, v{x}, v{x+1}")
            unpack2(A, x, XP + r * 8 + i)
    for r in range(2):
        for h in range(2):
            A(f"buffer_store_dwordx4 v[{XP + r*8 + h*4}:{XP + r*8 + h*4 + 3}], v4, s[20:23], 0 offen offset:{r * 2048 + h * 1024}")
    layernorm(X, D)
    for r in range(2):
        for i in range(8):
            d = D + r * 16 + 2 * i
            t = T + (i & 3)
            A(f"v_pk_mul_f32 v[{d}:{d+1}], v[{d}:{d+1}], v[{CB + 2*i}:{CB + 2*i + 1}]")
            rnd2(A, d, d + 1, t)
            A(f"v_pk_add_f32 v[{d}:{d+1}], v[{d}:{d+1}], v[{SB + 2*i}:{SB + 2*i + 1}]")
            A(f"v_cvt_pk_bf16_f32 v{YP + r*8 + i}, v{d}, v{d+1}")
    PADK = 16
    A("v_lshrrev_b32 v5, 2, v2")
    A(f"v_mul_u32_u24 v5, {512 + PADK}, v5")
    A("v_and_b32 v6, 1, v2"); A("v_lshl_add_u32 v5, v6, 8, v5")
    A("v_bfe_u32 v6, v2, 1, 1"); A("v_lshl_add_u32 v5, v6, 3, v5")
    A("s_lshl_b32 s18, s16, 5")
    A("v_add_u32 v5, s18, v5")
    for r in range(2):
        for h in range(2):
            for e in range(2):
                src = YP + r * 8 + h * 4 + e * 2
                A(f"ds_write_b64 v5, v[{src}:{src+1}] offset:{h * 16 * (512 + PADK) + e * 128 + r * 16}")
    A("s_waitcnt lgkmcnt(0)")
    A("s_barrier")
    A("v_lshrrev_b32 v5, 5, v0")
    A(f"v_mul_u32_u24 v6, {PADK}, v5")
    A("v_lshl_add_u32 v6, v0, 4, v6")
    A("v_lshlrev_b32 v7, 10, v5")
    A("v_bfe_u32 v5, v0, 3, 2"); A("v_lshl_add_u32 v7, v5, 8, v7")
    A("v_and_b32 v5, 7, v0"); A("v_lshl_add_u32 v7, v5, 4, v7")
    A("s_lshr_b32 s18, s2, 1"); A("s_lshl_b32 s18, s18, 15")
    A("s_and_b32 s19, s2, 1"); A("s_lshl_b32 s19, s19, 7"); A("s_add_u32 s18, s18, s19")
    A("v_add_u32 v7, s18, v7")
    for j in range(4):
        A(f"ds_read_b128 v[{40 + 4*j}:{43 + 4*j}], v6 offset:{j * 8 * (512 + PADK)}")
    for j in range(4):
        A(f"s_waitcnt lgkmcnt({3 - j})")
        A(f"s_mov_b32 s19, {j * 8192}")
        A(f"buffer_store_dwordx4 v[{40 + 4*j}:{43 + 4*j}], v7, s[24:27], s19 offen")
    rt_out(A, Lend, 16)
    A.label(Lend); A("s_endpgm")
    A.end_kernel(name, 240, 0, 102, 256, 256, 32 * (512 + PADK))


def gemv_role(A, Lend):
    SIL, GRED = 0, 4096
    GV = 100
    A(f"s_load_dwordx4 s[60:63], s[0:1], {KA['c']}")
    A(f"s_load_dwordx2 s[66:67], s[0:1], {KA['ws']}")
    A(f"s_mov_b32 {MASK}, 0xffff0000")
    A("s_sub_u32 s17, s2, 256")
    A("v_lshrrev_b32 v1, 6, v0"); A("v_and_b32 v2, 63, v0"); A("s_nop 0"); A("v_readfirstlane_b32 s16, v1")
    A("s_waitcnt lgkmcnt(0)")
    srd(A, 24, 60, 61, 2048)
    srd(A, 28, 62, 63, 1024 * 12288)
    A("v_lshlrev_b32 v6, 3, v0")
    A("buffer_load_dwordx2 v[46:47], v6, s[24:27], 0 offen")
    A("v_lshrrev_b32 v6, 3, v0"); A("v_mul_u32_u24 v6, 12288, v6")
    A("v_and_b32 v7, 7, v0"); A("v_lshl_add_u32 v6, v7, 4, v6")
    A("s_lshl_b32 s18, s17, 7"); A("v_add_u32 v6, s18, v6")
    for j in range(32):
        A(f"s_mov_b32 s18, {j * 32 * 12288}")
        A(f"buffer_load_dwordx4 v[{GV + 4*j}:{GV + 4*j + 3}], v6, s[28:31], s18 offen")
    A("s_waitcnt vmcnt(32)")
    unpack2(A, 48, 46); unpack2(A, 50, 47)
    for i in range(4):
        A(f"v_mul_f32 v{52 + i}, 0xbfb8aa3b, v{48 + i}")
    for i in range(4): A(f"v_exp_f32 v{52 + i}, v{52 + i}")
    A("s_nop 0")
    for i in range(4): A(f"v_add_f32 v{52 + i}, 1.0, v{52 + i}")
    for i in range(4): A(f"v_rcp_f32 v{52 + i}, v{52 + i}")
    A("s_nop 0")
    for i in range(4): A(f"v_mul_f32 v{52 + i}, v{52 + i}, v{48 + i}")
    rnd2(A, 52, 53, 56); rnd2(A, 54, 55, 56)
    A("v_lshlrev_b32 v48, 2, v0"); A("v_and_b32 v49, 31, v48"); A("v_lshlrev_b32 v49, 7, v49")
    A("v_lshrrev_b32 v48, 5, v48"); A("v_lshl_add_u32 v49, v48, 2, v49")
    for i in range(4): A(f"ds_write_b32 v49, v{52 + i} offset:{SIL + i * 128}")
    A("s_waitcnt lgkmcnt(0)")
    A("s_barrier")
    A("v_lshrrev_b32 v1, 3, v0"); A("v_lshlrev_b32 v1, 7, v1")
    SV = 48
    for q in range(8):
        A(f"ds_read_b128 v[{SV + 4*q}:{SV + 4*q + 3}], v1 offset:{SIL + 16 * q}")
    GA_ = 80
    for i in range(8): A(f"v_mov_b32 v{GA_ + i}, 0")
    A("s_waitcnt lgkmcnt(0)")
    for j in range(32):
        A(f"s_waitcnt vmcnt({31 - j})")
        sj = SV + j
        base = sj & ~1
        sel = "op_sel:[0,0,0] op_sel_hi:[1,0,1]" if sj % 2 == 0 else "op_sel:[0,1,0] op_sel_hi:[1,1,1]"
        for q in range(4):
            unpack2(A, 88 + 2 * q, GV + 4 * j + q)
        for q in range(4):
            u = 88 + 2 * q
            A(f"v_pk_fma_f32 v[{GA_ + 2*q}:{GA_ + 2*q + 1}], v[{u}:{u+1}], v[{base}:{base+1}], v[{GA_ + 2*q}:{GA_ + 2*q + 1}] {sel}")
    A("v_lshlrev_b32 v1, 5, v0")
    A(f"ds_write_b128 v1, v[{GA_}:{GA_+3}] offset:{GRED}")
    A(f"ds_write_b128 v1, v[{GA_+4}:{GA_+7}] offset:{GRED + 16}")
    A("s_waitcnt lgkmcnt(0)")
    A("s_barrier")
    A("s_cmp_lg_u32 s16, 0"); A(f"s_cbranch_scc1 {Lend}")
    A("v_lshlrev_b32 v1, 2, v2")
    for rg in range(32):
        A(f"ds_read_b32 v{48 + rg}, v1 offset:{GRED + rg * 256}")
    A("s_waitcnt lgkmcnt(0)")
    for st in (16, 8, 4, 2, 1):
        for i in range(st):
            A(f"v_add_f32 v{48 + i}, v{48 + i}, v{48 + i + st}")
    A("v_cvt_pk_bf16_f32 v49, v48, v48")
    A("v_lshlrev_b32 v49, 16, v49")
    srd_off(A, 8, 66, 67, WS_MOD, 6144 * 4)
    A("s_lshl_b32 s18, s17, 8")
    A("v_add_u32 v1, s18, v1")
    A("buffer_store_dword v49, v1, s[8:11], 0 offen")
    A(f"s_branch {Lend}")


def gen_kv(A, name="kv_kernel", prefetch=(0, 0, 0)):
    CHS = 128 + 16
    A.begin_kernel(name)
    Lend = A.newlabel("Lend")
    Lmain = A.newlabel("Lmain")
    A("s_cmp_lt_u32 s2, 256"); A(f"s_cbranch_scc1 {Lmain}")
    A("s_cmp_ge_u32 s2, 352"); A(f"s_cbranch_scc1 {Lend}")
    gemv_role(A, Lend)
    A.label(Lmain)
    A(f"s_load_dwordx4 s[44:47], s[0:1], {KA['k']}")
    A(f"s_load_dwordx2 s[48:49], s[0:1], {KA['shift']}")
    A(f"s_load_dwordx4 s[56:59], s[0:1], {KA['w1']}")
    A(f"s_load_dwordx2 s[60:61], s[0:1], {KA['w2']}")
    A(f"s_load_dwordx2 s[66:67], s[0:1], {KA['ws']}")
    A(f"s_mov_b32 {MASK}, 0xffff0000")
    A("s_and_b32 s17, s2, 7")
    A("s_lshr_b32 s18, s2, 3")
    A("v_and_b32 v1, 15, v0")
    A("v_lshrrev_b32 v2, 4, v0")
    A("s_waitcnt lgkmcnt(0)")
    srd(A, 4, 44, 45, 4 << 20)
    srd(A, 8, 46, 47, 4 << 20)
    srd(A, 12, 48, 49, 8192)
    srd_off(A, 20, 66, 67, WS_RKV, 1024 * 5120)
    A("s_lshl_b32 s19, s18, 17"); A("s_lshl_b32 s16, s17, 8"); A("s_add_u32 s19, s19, s16")
    A("v_lshlrev_b32 v3, 13, v2"); A("v_lshl_add_u32 v3, v1, 4, v3"); A("v_add_u32 v3, s19, v3")
    KR, VR, WR = 8, 36, 52
    for i in range(-3, 4):
        if i == 0: vo = 3
        else:
            A(f"v_add_u32 v4, {i * 2048}, v3") if i > 0 else A(f"v_subrev_u32 v4, {-i * 2048}, v3")
            vo = 4
        r = KR + 4 * (i + 3)
        A(f"buffer_load_dwordx4 v[{r}:{r+3}], v{vo}, s[4:7], 0 offen")
        if i >= 0:
            r = VR + 4 * i
            A(f"buffer_load_dwordx4 v[{r}:{r+3}], v{vo}, s[8:11], 0 offen")
    A("s_lshl_b32 s16, s17, 10"); A("v_lshlrev_b32 v4, 6, v1"); A("v_add_u32 v4, s16, v4")
    for q in range(4):
        A(f"buffer_load_dwordx4 v[{WR + 4*q}:{WR + 4*q + 3}], v4, s[12:15], 0 offen offset:{16 * q}")
    npf = 0
    if any(prefetch):
        A(f"s_mul_i32 s16, s2, {7 * 4096}")
        A("v_lshlrev_b32 v5, 4, v0"); A("v_add_u32 v5, s16, v5")
        for bi, lo in enumerate((56, 58, 60)):
            if not prefetch[bi]: continue
            srd(A, 24, lo, lo + 1, 7340032)
            for j in range(7):
                A(f"s_mov_b32 s16, {j * 4096}")
                A(f"buffer_load_dwordx4 v[{200 + 4 * (npf % 8)}:{203 + 4 * (npf % 8)}], v5, s[24:27], s16 offen")
                npf += 1
    A(f"s_waitcnt vmcnt({npf})")
    WF = 68
    for e in range(8):
        for j in range(4):
            src = WR + 2 * e + (j >> 1)
            dst = WF + (j * 4 + (e >> 1)) * 2 + (e & 1)
            if j & 1: A(f"v_and_b32 v{dst}, {MASK}, v{src}")
            else: A(f"v_lshlrev_b32 v{dst}, 16, v{src}")
    KF = 100
    for i in range(7):
        for p in range(4):
            unpack2(A, KF + i * 8 + 2 * p, KR + 4 * i + p)
    KVF = 156
    for i in range(4):
        for p in range(4):
            d = KVF + i * 8 + 2 * p
            P, Q, TT = 188 + 4 * (p & 1), 190 + 4 * (p & 1), 196 + (p & 1)
            kk = lambda row: KF + row * 8 + 2 * p
            ww = lambda j: WF + (j * 4 + p) * 2
            A(f"v_pk_mul_f32 v[{d}:{d+1}], v[{kk(i)}:{kk(i)+1}], v[{ww(3)}:{ww(3)+1}]")
            rnd2(A, d, d + 1, TT)
            for j in (2, 1, 0):
                A(f"v_pk_mul_f32 v[{P}:{P+1}], v[{kk(i + 3 - j)}:{kk(i + 3 - j)+1}], v[{ww(j)}:{ww(j)+1}]")
                rnd2(A, P, P + 1, TT)
                A(f"v_pk_add_f32 v[{d}:{d+1}], v[{d}:{d+1}], v[{P}:{P+1}]")
                rnd2(A, d, d + 1, TT)
            unpack2(A, Q, VR + 4 * i + p)
            A(f"v_pk_mul_f32 v[{d}:{d+1}], v[{d}:{d+1}], v[{Q}:{Q+1}]")
    A(f"v_mul_u32_u24 v4, {8 * CHS}, v1")
    A("v_lshlrev_b32 v5, 3, v2"); A("v_sub_u32 v4, v4, v5"); A("v_add_u32 v4, 120, v4")
    for e in range(8):
        A(f"v_cvt_pk_bf16_f32 v{8 + 2*e}, v{KVF + 3*8 + e}, v{KVF + 2*8 + e}")
        A(f"v_cvt_pk_bf16_f32 v{9 + 2*e}, v{KVF + 1*8 + e}, v{KVF + 0*8 + e}")
        A(f"ds_write_b64 v4, v[{8 + 2*e}:{9 + 2*e}] offset:{e * CHS}")
    A("s_waitcnt lgkmcnt(0)")
    A("s_barrier")
    A("v_lshrrev_b32 v4, 3, v0"); A("v_and_b32 v5, 7, v0")
    A(f"v_mul_u32_u24 v6, {CHS}, v4"); A("v_lshl_add_u32 v6, v5, 4, v6")
    A("v_mul_u32_u24 v7, 5120, v4"); A("v_lshl_add_u32 v7, v5, 4, v7")
    A(f"s_mul_i32 s16, s17, {128 * 5120}")
    A("s_sub_u32 s19, 31, s18"); A("s_mul_i32 s19, s19, 160"); A("s_add_u32 s16, s16, s19")
    A("v_add_u32 v7, s16, v7")
    for j in range(4):
        A(f"ds_read_b128 v[{8 + 4*j}:{11 + 4*j}], v6 offset:{j * 32 * CHS}")
    for j in range(4):
        A(f"s_waitcnt lgkmcnt({3 - j})")
        A(f"s_mov_b32 s16, {j * 32 * 5120}")
        A(f"buffer_store_dwordx4 v[{8 + 4*j}:{11 + 4*j}], v7, s[20:23], s16 offen")
    if RT[0]:
        A("v_lshrrev_b32 v1, 6, v0"); A("s_nop 0"); A("v_readfirstlane_b32 s16, v1")
    rt_out(A, Lend, 16)
    A.label(Lend); A("s_endpgm")
    A.end_kernel(name, 232, 0, 102, 352, 256, 128 * CHS)

STAMP = [0]
STMP = [36]
def stamp(A, i):
    if STAMP[0] and i >= 0:
        A("s_waitcnt lgkmcnt(0)")
        A(f"{'s_memtime' if STAMP[0] == 2 else 's_memrealtime'} s[{STMP[0]}:{STMP[0]+1}]"); A("s_waitcnt lgkmcnt(0)"); A(f"s_mov_b32 s{94 + i}, s{STMP[0]}")

def stamp_out(A, n, Lend):
    pass


def gen_conv(A, name="conv_kernel", prefetch=(1, 1, 1)):
    CSZ = 4416
    TCH = 4 * CSZ
    RKV = 4 * TCH
    RCH = 8192
    LDS = RKV + 4 * RCH
    OUTS = 4096 + 32
    A.begin_kernel(name)
    Lend = A.newlabel("Lend")
    A("s_cmp_ge_u32 s2, 256"); A(f"s_cbranch_scc1 {Lend}")
    stamp(A, 0)
    A(f"s_load_dwordx4 s[44:47], s[0:1], {KA['k']}")
    A(f"s_load_dwordx4 s[48:51], s[0:1], {KA['shift']}")
    A(f"s_load_dwordx2 s[52:53], s[0:1], {KA['ssmD']}")
    A(f"s_load_dwordx4 s[56:59], s[0:1], {KA['w1']}")
    A(f"s_load_dwordx4 s[60:63], s[0:1], {KA['w2']}")
    A(f"s_load_dwordx2 s[64:65], s[0:1], {KA['wmod']}")
    A(f"s_load_dwordx2 s[66:67], s[0:1], {KA['ws']}")
    A("v_lshrrev_b32 v1, 6, v0"); A("v_and_b32 v2, 63, v0"); A("s_nop 0"); A("v_readfirstlane_b32 s16, v1")
    A(f"s_mov_b32 {MASK}, 0xffff0000")
    A("s_and_b32 s17, s2, 7"); A("s_lshl_b32 s17, s17, 7"); A("s_lshr_b32 s18, s2, 3"); A("s_lshl_b32 s18, s18, 2")
    A("s_add_u32 s17, s17, s18")
    A("s_waitcnt lgkmcnt(0)")
    A("s_add_u32 s18, s17, s16"); A("s_lshl_b32 s18, s18, 12")
    A("s_add_u32 s12, s50, s18"); A("s_addc_u32 s13, s51, 0"); A("s_and_b32 s13, s13, 0xffff")
    A("s_mov_b32 s14, 4096"); A("s_mov_b32 s15, 0x00020000")
    A("s_lshl_b32 s18, s17, 1")
    A("s_add_u32 s20, s52, s18"); A("s_addc_u32 s21, s53, 0")
    A("s_load_dwordx2 s[76:77], s[20:21], 0")
    A("v_lshlrev_b32 v5, 4, v2")
    srd_off(A, 4, 66, 67, WS_RKV, 1024 * 5120)
    A("s_add_u32 s18, s17, s16"); A("s_mul_i32 s18, s18, 5120")
    A(f"s_mul_i32 s19, s16, {RCH}"); A(f"s_add_u32 s19, s19, {RKV}")
    for j in range(5):
        A(f"s_add_u32 m0, s19, {j * 1024}")
        A(f"s_add_u32 s20, s18, {j * 1024}")
        A(f"buffer_load_dwordx4 v5, s[4:7], s20 offen lds")
    ER = 48
    A("v_lshlrev_b32 v5, 4, v2")
    for j in range(4):
        for e in range(3):
            r = ER + j * 12 + e * 4
            A(f"buffer_load_dwordx4 v[{r}:{r+3}], v5, s[12:15], 0 offen offset:{j * 1024 + e * 4}")
    A("v_mov_b32 v6, 0")
    A("buffer_load_dwordx2 v[96:97], v6, s[12:15], 0 offen")
    A("s_waitcnt vmcnt(0)")
    stamp(A, 1)
    A("s_waitcnt lgkmcnt(0)")
    pfl = []
    A(f"s_mul_i32 s18, s2, {7 * 4096}")
    A("v_lshlrev_b32 v124, 4, v0"); A("v_add_u32 v124, s18, v124")
    for bi, lo in enumerate((56, 58, 60)):
        if not prefetch[bi]: continue
        srd(A, 24 + 4 * bi, lo, lo + 1, 7340032)
        for j in range(7):
            n = len(pfl)
            pfl.append([f"s_mov_b32 s21, {j * 4096}",
                        f"buffer_load_dwordx4 v[{128 + 4 * (n % 8)}:{131 + 4 * (n % 8)}], v124, s[{24 + 4*bi}:{27 + 4*bi}], s21 offen"])
    npre = max(0, len(pfl) - 16)
    for x in pfl[:npre]:
        for y in x: A(y)
    pfl = pfl[npre:]
    A(f"s_mul_i32 s18, s16, {TCH}")
    A("v_add_u32 v6, s18, v5")
    W = 100
    for j in range(4):
        e0, e1, e2 = ER + j * 12, ER + j * 12 + 4, ER + j * 12 + 8
        off = 128 + j * 1024
        for q in range(4):
            A(f"v_alignbit_b32 v{W + q}, v{e1 + q}, v{e0 + q}, 16")
            A(f"v_alignbit_b32 v{W + 4 + q}, v{e2 + q}, v{e1 + q}, 16")
        A(f"ds_write_b128 v6, v[{e0}:{e0+3}] offset:{off}")
        A(f"ds_write_b128 v6, v[{W}:{W+3}] offset:{off + CSZ}")
        A(f"ds_write_b128 v6, v[{e1}:{e1+3}] offset:{off + 2 * CSZ}")
        A(f"ds_write_b128 v6, v[{W+4}:{W+7}] offset:{off + 3 * CSZ}")
        A("s_nop 1")
    Z = 108
    for i in range(16): A(f"v_mov_b32 v{Z + i}, 0")
    A("v_cmp_eq_u32 vcc, 7, v2")
    A("v_lshlrev_b32 v100, 16, v96")
    A("v_alignbit_b32 v101, v97, v96, 16")
    A(f"v_cndmask_b32 v{Z + 7}, 0, v100, vcc")
    A(f"v_cndmask_b32 v{Z + 11}, 0, v96, vcc")
    A(f"v_cndmask_b32 v{Z + 14}, 0, v100, vcc")
    A(f"v_cndmask_b32 v{Z + 15}, 0, v101, vcc")
    A("v_cmp_gt_u32 vcc, 8, v2")
    A("s_and_saveexec_b64 s[22:23], vcc")
    for c in range(4):
        A(f"ds_write_b128 v6, v[{Z + 4*c}:{Z + 4*c + 3}] offset:{c * CSZ}")
    A("s_mov_b64 exec, s[22:23]")
    A(f"s_mul_i32 s18, s16, {RCH}"); A(f"s_add_u32 s18, s18, {RKV + 5120}")
    A("v_add_u32 v7, s18, v5")
    for j in range(3):
        A(f"ds_write_b128 v7, v[{Z}:{Z+3}] offset:{j * 1024}")
    vTB, vKB = 3, 4
    A("v_and_b32 v6, 15, v2"); A("v_lshrrev_b32 v7, 4, v2")
    A("v_add_u32 v1, 1, v6"); A("v_and_b32 v1, 3, v1")
    A(f"v_mul_u32_u24 v{vTB}, {CSZ - 2}, v1")
    A(f"v_lshl_add_u32 v{vTB}, v6, 1, v{vTB}")
    A(f"v_lshl_add_u32 v{vTB}, v7, 4, v{vTB}")
    A(f"s_mul_i32 s18, s16, {TCH}"); A(f"s_add_u32 s18, s18, 2")
    A(f"v_add_u32 v{vTB}, s18, v{vTB}")
    A("v_sub_u32 v1, 15, v6"); A(f"v_mul_u32_u24 v{vKB}, 160, v1")
    A(f"v_lshl_add_u32 v{vKB}, v7, 4, v{vKB}")
    A(f"s_mul_i32 s18, s16, {RCH}"); A(f"s_add_u32 s18, s18, {RKV}")
    A(f"v_add_u32 v{vKB}, s18, v{vKB}")
    ACC = 8
    for i in range(32): A(f"v_mov_b32 v{ACC + i}, 0")
    A("s_waitcnt lgkmcnt(0)")
    stamp(A, 2)
    NR = 10
    def tf(stream, tau): return stream * NR * 4 + ((tau + 2) % NR) * 4
    KVA = 2 * NR * 4
    def kf(p, which, kb): return KVA + p * 16 + (which * 2 + kb) * 4
    NAG = KVA + 32
    def rd_t(stream, tau):
        r = tf(stream, tau)
        off = 32 * (tau + 2)
        return [f"ds_read_b64 a[{r}:{r+1}], v{vTB} offset:{off}", f"ds_read_b64 a[{r+2}:{r+3}], v{vTB} offset:{off + 8}"]
    def rd_kv(p, j):
        res = []
        for which in range(2):
            dm = j + 16 * which
            for kb in range(2):
                r = kf(p, which, kb)
                res.append(f"ds_read_b128 a[{r}:{r+3}], v{vKB} offset:{160 * dm + 64 * (1 - kb)}")
        return res
    def reads_for(j, first=False):
        res = rd_kv(j & 1, j)
        for st in range(2):
            d = j + 16 * st
            for tau in range(4 * d - (2 if first else 0), 4 * d + 4):
                res += rd_t(st, tau)
        return res
    for x in reads_for(0, True): A(x)
    for j in range(16):
        A("s_waitcnt lgkmcnt(0)")
        mf = []
        p = j & 1
        for kb in range(2):
            for mb in range(4):
                t_lo = tf(0, 4 * j + mb - 2 * kb); t_hi = tf(1, 4 * (j + 16) + mb - 2 * kb)
                a1 = ACC + (mb * 2 + 1) * 4; a0 = ACC + (mb * 2) * 4
                k0 = kf(p, 0, kb); k1 = kf(p, 1, kb)
                mf.append(f"v_mfma_f32_16x16x32_bf16 v[{a1}:{a1+3}], a[{t_lo}:{t_lo+3}], a[{k0}:{k0+3}], v[{a1}:{a1+3}]")
                mf.append(f"v_mfma_f32_16x16x32_bf16 v[{a0}:{a0+3}], a[{t_lo}:{t_lo+3}], a[{k1}:{k1+3}], v[{a0}:{a0+3}]")
                mf.append(f"v_mfma_f32_16x16x32_bf16 v[{a1}:{a1+3}], a[{t_hi}:{t_hi+3}], a[{k1}:{k1+3}], v[{a1}:{a1+3}]")
        side = {}
        if j < 15:
            for i, x in enumerate(reads_for(j + 1)):
                side.setdefault(i, []).append(x)
        if j < len(pfl):
            side.setdefault(21, []).extend(pfl[j])
        for x in interleave(mf, side): A(x)
    A("s_nop 7"); A("s_nop 7")
    stamp(A, 3)
    A("s_barrier")
    A("v_mul_u32_u24 v1, 24, v7")
    A(f"v_sub_u32 v5, v{vKB}, v1"); A("v_add_u32 v5, 24, v5")
    KVR = 48
    for mb in range(4):
        for nb in range(2):
            r = KVR + (mb * 2 + nb) * 2
            A(f"ds_read_b64 v[{r}:{r+1}], v5 offset:{2560 * (1 - nb) + 32 * (3 - mb)}")
    A("s_lshr_b32 s18, s16, 1"); A("s_cmp_eq_u32 s18, 0"); A("s_cselect_b32 s78, s76, s77")
    A("s_and_b32 s18, s16, 1"); A("s_cmp_eq_u32 s18, 0")
    A("s_lshl_b32 s19, s78, 16"); A("s_and_b32 s78, s78, 0xffff0000"); A("s_cmp_eq_u32 s18, 0"); A("s_cselect_b32 s78, s19, s78")
    A("s_mov_b32 s79, s78")
    A("v_lshlrev_b32 v1, 7, v6"); A("v_lshl_add_u32 v1, v7, 3, v1")
    A(f"s_mul_i32 s18, s16, {OUTS}"); A("v_add_u32 v1, s18, v1")
    A("s_waitcnt lgkmcnt(0)")
    for mb in range(4):
        for nb in range(2):
            a_ = ACC + (mb * 2 + nb) * 4
            r = KVR + (mb * 2 + nb) * 2
            u = 64 + ((mb * 2 + nb) & 1) * 8
            rnd2(A, a_, a_ + 1, u + 4); rnd2(A, a_ + 2, a_ + 3, u + 5)
            A(f"v_and_b32 v{u}, {MASK}, v{r+1}"); A(f"v_lshlrev_b32 v{u+1}, 16, v{r+1}")
            A(f"v_and_b32 v{u+2}, {MASK}, v{r}"); A(f"v_lshlrev_b32 v{u+3}, 16, v{r}")
            A(f"v_pk_mul_f32 v[{u}:{u+1}], v[{u}:{u+1}], s[78:79]")
            A(f"v_pk_mul_f32 v[{u+2}:{u+3}], v[{u+2}:{u+3}], s[78:79]")
            rnd2(A, u, u + 1, u + 4); rnd2(A, u + 2, u + 3, u + 5)
            A(f"v_pk_add_f32 v[{a_}:{a_+1}], v[{a_}:{a_+1}], v[{u}:{u+1}]")
            A(f"v_pk_add_f32 v[{a_+2}:{a_+3}], v[{a_+2}:{a_+3}], v[{u+2}:{u+3}]")
            A(f"v_cvt_pk_bf16_f32 v{u+6}, v{a_}, v{a_+1}")
            A(f"v_cvt_pk_bf16_f32 v{u+7}, v{a_+2}, v{a_+3}")
            A(f"ds_write_b64 v1, v[{u+6}:{u+7}] offset:{2048 * nb + 32 * mb}")
    A("s_waitcnt lgkmcnt(0)")
    A("s_barrier")
    srd_off(A, 4, 66, 67, WS_YP, 4 << 20)
    A("v_lshlrev_b32 v1, 3, v0")
    for j in range(2):
        for c in range(4):
            r = 48 + (j * 4 + c) * 2
            A(f"ds_read_b64 v[{r}:{r+1}], v1 offset:{c * OUTS + j * 2048}")
    A("v_lshlrev_b32 v5, 13, v0")
    A("s_lshl_b32 s18, s17, 1"); A("v_add_u32 v5, s18, v5")
    A("s_mov_b32 s18, 0x05040100"); A("s_mov_b32 s19, 0x07060302")
    A("s_waitcnt lgkmcnt(0)")
    for j in range(2):
        b = 48 + j * 8
        o = 64 + j * 8
        for rr in range(4):
            sel = "s18" if rr % 2 == 0 else "s19"
            dw = rr >> 1
            A(f"v_perm_b32 v{o + 2*rr}, v{b + 2 + dw}, v{b + dw}, {sel}")
            A(f"v_perm_b32 v{o + 2*rr + 1}, v{b + 6 + dw}, v{b + 4 + dw}, {sel}")
        for rr in range(4):
            A(f"s_mov_b32 s20, {j * 1024 * 2048 + (rr >> 1) * 4096}")
            A(f"buffer_store_dwordx2 v[{o + 2*rr}:{o + 2*rr + 1}], v5, s[4:7], s20 offen offset:{(rr & 1) * 2048}")
    stamp(A, 4)
    Lfin = A.newlabel("Lfin")
    if STAMP[0] or RT[0]:
        A.label(Lfin)
        stamp_out(A, 5, Lend)
        rt_out(A, Lend, 16)
    A.label(Lend); A("s_endpgm")
    A.end_kernel(name, 160, NAG, 102, 256, 256, LDS)
```

```python
import sys, math

NAME = "adaLN_cond__ssm_conv_h3__glu_gated_swiglu__prompt"

WS_MOD = 0
WS_YP = 1 << 20
WS_X1 = WS_YP + (4 << 20)
WS_H2 = WS_X1 + (4 << 20)
WS_HH = WS_H2 + (4 << 20)
WS_RKV = WS_HH + 2048 * 3584 * 2
WS_FLAG = WS_RKV + 1024 * 5120
WS_END = WS_FLAG + 512 * 128

KA = dict(q=0, k=8, v=16, shift=24, ssmk=32, ssmD=40, bx=48, w1=56, w3=64, w2=72, c=80, wmod=88, out=96, dbg=104, ws=112)


RT = [0]

WS_DBG = 200 << 20

def rt_out(A, Lend, swave):
    if not RT[0]: return
    A("s_waitcnt vmcnt(0) lgkmcnt(0)")
    A("s_memrealtime s[38:39]")
    A(f"s_load_dwordx2 s[36:37], s[0:1], {KA['ws']}")
    A("s_waitcnt lgkmcnt(0)")
    srd_off(A, 8, 36, 37, WS_DBG + 512 * len(A.launch), 512)
    A(f"s_and_b32 s36, s2, 31"); A(f"s_add_u32 s36, s36, s{swave}"); A("s_cmp_lg_u32 s36, 0"); A(f"s_cbranch_scc1 {Lend}")
    A("s_lshr_b32 s36, s2, 5"); A("s_lshl_b32 s36, s36, 5")
    A("s_mov_b64 exec, 1")
    A("v_mov_b32 v0, s36"); A("v_mov_b32 v2, s100"); A("v_mov_b32 v3, s38")
    A("buffer_store_dwordx2 v[2:3], v0, s[8:11], 0 offen")
    for i in range(6):
        A(f"v_mov_b32 v2, s{94 + i}")
        A(f"buffer_store_dword v2, v0, s[8:11], 0 offen offset:{8 + 4 * i}")


class Asm:
    def __init__(self):
        self.lines = []
        self.launch = []
        self.kd = []
        self.uid = 0

    def __call__(self, s):
        self.lines.append("    " + s)

    def label(self, l):
        self.lines.append(l + ":")

    def newlabel(self, p="L"):
        self.uid += 1
        return f"{p}_{self.uid}"

    def begin_kernel(self, name):
        self.lines.append(f".globl {name}")
        self.lines.append(".p2align 8")
        self.lines.append(f".type {name},@function")
        self.lines.append(f"{name}:")
        if RT[0]:
            self("s_memrealtime s[100:101]")
            self("v_lshrrev_b32 v255, 6, v0") if False else None

    def end_kernel(self, name, nvgpr, nagpr, nsgpr, grid, block, lds):
        acc_off = (nvgpr + 3) // 4 * 4
        nfv = acc_off + nagpr if nagpr else nvgpr
        self.kd.append(f""".p2align 6
.amdhsa_kernel {name}
  .amdhsa_next_free_vgpr {nfv}
  .amdhsa_next_free_sgpr {nsgpr}
  .amdhsa_accum_offset {acc_off}
  .amdhsa_group_segment_fixed_size 0
  .amdhsa_kernarg_size 120
  .amdhsa_user_sgpr_count 2
  .amdhsa_user_sgpr_kernarg_segment_ptr 1
  .amdhsa_system_sgpr_workgroup_id_x 1
  .amdhsa_float_denorm_mode_32 3
.end_amdhsa_kernel""")
        self.launch.append(f"; @launch kernel={name} grid=({grid},1,1) block=({block},1,1) lds={lds}")

    def text(self):
        out = list(self.launch)
        out.append('.amdgcn_target "amdgcn-amd-amdhsa--gfx950"')
        out.append(".text")
        out += self.lines
        out.append('.section .rodata,"a"')
        out += self.kd
        return "\n".join(out) + "\n"


def srd(A, d, lo, hi, nbytes):
    A(f"s_mov_b32 s{d}, s{lo}")
    A(f"s_and_b32 s{d+1}, s{hi}, 0xffff")
    A(f"s_mov_b32 s{d+2}, {nbytes}")
    A(f"s_mov_b32 s{d+3}, 0x00020000")


def srd_off(A, d, lo, hi, off, nbytes):
    A(f"s_add_u32 s{d}, s{lo}, {off}")
    A(f"s_addc_u32 s{d+1}, s{hi}, 0")
    A(f"s_and_b32 s{d+1}, s{d+1}, 0xffff")
    A(f"s_mov_b32 s{d+2}, {nbytes}")
    A(f"s_mov_b32 s{d+3}, 0x00020000")


def interleave(main, side_at):
    out = []
    for i, m in enumerate(main):
        out.append(m)
        out += side_at.get(i, [])
    return out


def gen_gemm(A, cfg):
    name = cfg['name']
    MT, WM, WN = cfg['MT'], cfg['WM'], cfg['WN']
    NSUB, NW = cfg['NSUB'], cfg['NW']
    K, RSG = cfg['K'], cfg['RSG']
    KS, R, PD, LAG = cfg['KS'], cfg['R'], cfg['PD'], cfg['LAG']
    fs, fbits = cfg['fs'], cfg['fbits']
    fm = (1 << fbits) - 1
    KBT = K // 32
    S = KBT
    T = S // KS
    RS = NW * 2
    CPR = RS // 16
    WT_BYTES = 32 * RS
    assert WT_BYTES % 1024 == 0
    ipt = WT_BYTES // 1024
    ACT_BYTES = MT * 64
    SUB_BYTES = ACT_BYTES + NSUB * WT_BYTES
    SLOT = KS * SUB_BYTES
    LDS = R * SLOT
    assert LDS <= 163840, LDS
    NWAVE = 4
    assert WM * WN == NWAVE
    MBW = MT // 16 // WM
    FBW = NW // 16 // WN
    nA = MT // 16 // NWAVE
    assert (NSUB * ipt) % NWAVE == 0
    nW = NSUB * ipt // NWAVE
    wps = NWAVE // NSUB
    assert ipt % nW == 0 or True
    n_dma = KS * (nA + nW)
    NCLS = min(1 << fbits, FBW)
    for b in range(NW // 16):
        for k0 in (0, 8, 16, 24):
            segs = set(((k * RS + 32 * (b ^ ((k >> fs) & fm))) // 32) % 8 for k in range(k0, k0 + 8))
            assert len(segs) == 8, (b, k0, segs)
    assert fs + fbits <= 4
    NACC = NSUB * FBW * MBW * 4
    def acc(sub, fb, mb):
        return ((sub * FBW + fb) * MBW + mb) * 4
    vn = [NACC]
    def valloc(n=1):
        r = vn[0]; vn[0] += n; return r
    vLane = valloc()
    if vn[0] % 2: valloc()
    ubase = vn[0]
    vT0 = valloc(); vT1 = valloc(); vT2 = valloc(); vT3 = valloc()
    vWoff = valloc(nW); vAoff = valloc(nA)
    vX0 = valloc(); vW0 = valloc(NCLS)
    vXc = valloc(); vWc = valloc(NCLS)
    loop_end = vn[0]
    vn[0] = ubase
    vE = valloc(8)
    vE2 = valloc(cfg.get('etemps', 16))
    NV = max(vn[0], loop_end)
    assert NV <= 256, NV
    NSET = cfg.get("NSET", PD + 1)
    SETSZ = (NSUB * FBW + MBW) * 4
    def wfrag(p, sub, fb): return p * SETSZ + (sub * FBW + fb) * 4
    def xfrag(p, mb): return p * SETSZ + (NSUB * FBW + mb) * 4
    NA_ = NSET * SETSZ
    assert NA_ <= 256
    sW, sX, sO = 4, 8, 12
    sWave, sKW, sKX, sCnt, sWB, sAB, sRd, sWr, sT0, sT1, sMT, sNT, sWM, sWN, sKXe, sTK = range(16, 32)
    sP = 32
    sE = 48

    A.begin_kernel(name)
    Lend = A.newlabel("Lend")
    A(f"s_cmp_ge_u32 s2, 256")
    A(f"s_cbranch_scc1 {Lend}")
    wk = cfg['wptr']
    if cfg.get('stamp'): A("s_memtime s[56:57]"); A("s_memrealtime s[64:65]")
    A(f"s_load_dwordx2 s[{sP}:{sP+1}], s[0:1], {wk[0]}")
    A(f"s_load_dwordx2 s[{sP+2}:{sP+3}], s[0:1], {wk[-1]}")
    A(f"s_load_dwordx2 s[{sP+4}:{sP+5}], s[0:1], {KA['ws']}")
    A(f"s_load_dwordx2 s[{sP+6}:{sP+7}], s[0:1], {KA['out']}")
    A(f"v_lshrrev_b32 v{vT0}, 6, v0")
    A(f"v_and_b32 v{vLane}, 63, v0")
    A(f"s_nop 0")
    A(f"v_readfirstlane_b32 s{sWave}, v{vT0}")
    xm_bits, = (cfg['xm_bits'],)
    qm_bits = cfg['qm_bits']
    A(f"s_and_b32 s{sT0}, s2, 7")
    A(f"s_lshr_b32 s{sT1}, s2, 3")
    A(f"s_and_b32 s{sMT}, s{sT0}, {(1 << xm_bits) - 1}")
    A(f"s_lshl_b32 s{sMT}, s{sMT}, {qm_bits}")
    A(f"s_and_b32 s{sTK}, s{sT1}, {(1 << qm_bits) - 1}")
    A(f"s_add_u32 s{sMT}, s{sMT}, s{sTK}")
    A(f"s_lshr_b32 s{sNT}, s{sT0}, {xm_bits}")
    A(f"s_lshl_b32 s{sNT}, s{sNT}, {5 - qm_bits}")
    A(f"s_lshr_b32 s{sTK}, s{sT1}, {qm_bits}")
    A(f"s_add_u32 s{sNT}, s{sNT}, s{sTK}")
    A(f"s_lshr_b32 s{sWM}, s{sWave}, {int(math.log2(WN))}")
    A(f"s_and_b32 s{sWN}, s{sWave}, {WN - 1}")
    A(f"s_waitcnt lgkmcnt(0)")
    if NSUB == 2:
        A(f"s_cmp_ge_u32 s{sWave}, {wps}")
        A(f"s_cselect_b32 s{sT0}, s{sP+2}, s{sP}")
        A(f"s_cselect_b32 s{sT1}, s{sP+3}, s{sP+1}")
        srd(A, sW, sT0, sT1, K * RSG)
    else:
        srd(A, sW, sP, sP + 1, K * RSG)
    srd_off(A, sX, sP + 4, sP + 5, cfg['act_off'], 2048 * K * 2)
    A(f"s_and_b32 s{sT0}, s{sWave}, {wps - 1}")
    A(f"s_mul_i32 s{sT0}, s{sT0}, {nW * 64}")
    A(f"s_mul_i32 s{sT1}, s{sNT}, {RS}")
    magic = (65536 + CPR - 1) // CPR
    for Q in range(ipt * 64):
        assert (Q * magic) >> 16 == Q // CPR
    for j in range(nW):
        A(f"v_add_u32 v{vT0}, s{sT0}, v{vLane}")
        if j: A(f"v_add_u32 v{vT0}, {j * 64}, v{vT0}")
        A(f"v_mul_u32_u24 v{vT1}, {magic}, v{vT0}")
        A(f"v_lshrrev_b32 v{vT1}, 16, v{vT1}")
        A(f"v_mul_u32_u24 v{vT2}, {CPR}, v{vT1}")
        A(f"v_sub_u32 v{vT2}, v{vT0}, v{vT2}")
        A(f"v_lshrrev_b32 v{vT3}, {fs}, v{vT1}")
        A(f"v_and_b32 v{vT3}, {fm}, v{vT3}")
        A(f"v_lshlrev_b32 v{vT3}, 1, v{vT3}")
        A(f"v_xor_b32 v{vT2}, v{vT2}, v{vT3}")
        A(f"v_lshlrev_b32 v{vT2}, 4, v{vT2}")
        A(f"v_mul_u32_u24 v{vT1}, {RSG}, v{vT1}")
        A(f"v_add3_u32 v{vWoff + j}, v{vT1}, v{vT2}, s{sT1}")
    A(f"s_mul_i32 s{sT0}, s{sMT}, {MT // 16}")
    A(f"s_mul_i32 s{sT1}, s{sWave}, {nA}")
    A(f"s_add_u32 s{sT0}, s{sT0}, s{sT1}")
    A(f"s_mul_i32 s{sT0}, s{sT0}, {KBT * 1024}")
    A(f"v_lshlrev_b32 v{vT0}, 4, v{vLane}")
    for j in range(nA):
        A(f"v_add_u32 v{vAoff + j}, s{sT0}, v{vT0}")
        if j: A(f"v_add_u32 v{vAoff + j}, {j * KBT * 1024}, v{vAoff + j}")
    A(f"s_mul_i32 s{sWB}, s{sWave}, {nW * 1024}")
    A(f"s_add_u32 s{sWB}, s{sWB}, {ACT_BYTES}")
    A(f"s_mul_i32 s{sAB}, s{sWave}, {nA * 1024}")
    A(f"s_mul_i32 s{sT0}, s{sWM}, {MBW * 1024}")
    A(f"v_lshl_add_u32 v{vX0}, v{vLane}, 4, s{sT0}")
    A(f"v_lshrrev_b32 v{vT0}, 2, v{vLane}")
    A(f"v_and_b32 v{vT1}, 3, v{vLane}")
    A(f"v_mul_u32_u24 v{vT2}, {RS}, v{vT0}")
    A(f"v_lshl_add_u32 v{vT2}, v{vT1}, 3, v{vT2}")
    A(f"v_add_u32 v{vT2}, {ACT_BYTES}, v{vT2}")
    A(f"v_lshrrev_b32 v{vT3}, {fs}, v{vT0}")
    A(f"v_and_b32 v{vT3}, {fm}, v{vT3}")
    A(f"s_mul_i32 s{sT0}, s{sWN}, {FBW}")
    for c in range(NCLS):
        A(f"s_add_u32 s{sT1}, s{sT0}, {c}")
        A(f"v_xor_b32 v{vT1}, s{sT1}, v{vT3}")
        A(f"v_lshl_add_u32 v{vW0 + c}, v{vT1}, 5, v{vT2}")

    def dma_instrs(u, slot_s, slot_const, kW_s, kX_s):
        res = []
        for j in range(nA):
            cst = slot_const + u * SUB_BYTES + j * 1024
            if slot_s is None:
                m0 = [f"s_add_u32 m0, s{sAB}, {cst}"]
            else:
                m0 = [f"s_add_u32 s{sTK}, s{sAB}, s{slot_s}", f"s_add_u32 m0, s{sTK}, {cst}"]
            res.append((m0, f"buffer_load_dwordx4 v{vAoff + j}, s[{sX}:{sX+3}], s{kX_s} offen lds"))
        for j in range(nW):
            cst = slot_const + u * SUB_BYTES + j * 1024
            if slot_s is None:
                m0 = [f"s_add_u32 m0, s{sWB}, {cst}"]
            else:
                m0 = [f"s_add_u32 s{sTK}, s{sWB}, s{slot_s}", f"s_add_u32 m0, s{sTK}, {cst}"]
            res.append((m0, f"buffer_load_dwordx4 v{vWoff + j}, s[{sW}:{sW+3}], s{kW_s} offen lds"))
        return res

    def ds_reads(p, u, vX, vW, extra=0):
        res = []
        for mb in range(MBW):
            r = xfrag(p, mb)
            res.append(f"ds_read_b128 a[{r}:{r+3}], v{vX} offset:{extra + u * SUB_BYTES + mb * 1024}")
        for sub in range(NSUB):
            for fb in range(FBW):
                cls = fb % NCLS
                r = wfrag(p, sub, fb)
                off = extra + u * SUB_BYTES + sub * WT_BYTES + 32 * (fb - cls)
                assert off + 16 * RS < 65536
                res.append(f"ds_read_b64_tr_b16 a[{r}:{r+1}], v{vW + cls} offset:{off}")
                res.append(f"ds_read_b64_tr_b16 a[{r+2}:{r+3}], v{vW + cls} offset:{off + 16 * RS}")
        return res

    t0 = (PD - 1) // KS
    assert t0 <= LAG
    n_pro = t0 + R - LAG
    for st in range(n_pro):
        for u in range(KS):
            A(f"s_mov_b32 s{sT0}, {(st * KS + u) * 32 * RSG}")
            A(f"s_mov_b32 s{sT1}, {(st * KS + u) * 1024}")
            for m0, d in dma_instrs(u, None, (st % R) * SLOT, sT0, sT1):
                for x in m0: A(x)
                A("s_nop 0")
                A(d)
    A(f"s_mov_b32 s{sKW}, {n_pro * KS * 32 * RSG}")
    A(f"s_mov_b32 s{sKX}, {n_pro * KS * 1024}")
    for i in range(NACC):
        A(f"v_mov_b32 v{i}, 0")
    nst = t0 + 1
    A(f"s_waitcnt vmcnt({n_dma * (n_pro - nst)})")
    A("s_barrier")
    for s in range(PD):
        st, u = s // KS, s % KS
        if st == 0:
            for x in ds_reads(s % NSET, u, vX0, vW0): A(x)
        else:
            A(f"v_add_u32 v{vXc}, {st * SLOT}, v{vX0}")
            for c in range(NCLS): A(f"v_add_u32 v{vWc + c}, {st * SLOT}, v{vW0 + c}")
            for x in ds_reads(s % NSET, u, vXc, vWc): A(x)
    A(f"s_mov_b32 s{sRd}, {t0 * SLOT}")
    A(f"v_add_u32 v{vXc}, {t0 * SLOT}, v{vX0}")
    for c in range(NCLS): A(f"v_add_u32 v{vWc + c}, {t0 * SLOT}, v{vW0 + c}")
    UN = KS * NSET // math.gcd(KS, NSET)
    assert S % UN == 0, (S, UN)
    A(f"s_mov_b32 s{sCnt}, {S // UN}")
    if cfg.get('stamp'): A("s_waitcnt lgkmcnt(0)"); A("s_memtime s[58:59]"); A("s_waitcnt lgkmcnt(0)")
    Lloop = A.newlabel("Lloop")
    A.label(Lloop)
    nDS = MBW + 2 * NSUB * FBW
    for s in range(UN):
        p = s % NSET
        pr = (s + PD) % NSET
        ph = (s + PD) % KS
        pre = []
        if ph == 0:
            lg = 0 if LAG == 0 else min(15, nDS * (PD - 1))
            pre.append(f"s_waitcnt vmcnt({n_dma * (R - LAG - 2)}) lgkmcnt({lg})")
            pre.append("s_barrier")
            if LAG == 0:
                pre.append(f"s_mov_b32 s{sWr}, s{sRd}")
            else:
                pre.append(f"s_sub_u32 s{sWr}, s{sRd}, {SLOT}")
                pre.append(f"s_cmp_eq_u32 s{sRd}, 0")
                pre.append(f"s_cselect_b32 s{sWr}, {(R - 1) * SLOT}, s{sWr}")
            pre.append(f"s_add_u32 s{sRd}, s{sRd}, {SLOT}")
            pre.append(f"s_cmp_eq_u32 s{sRd}, {R * SLOT}")
            pre.append(f"s_cselect_b32 s{sRd}, 0, s{sRd}")
            pre.append(f"v_add_u32 v{vXc}, s{sRd}, v{vX0}")
            for c in range(NCLS): pre.append(f"v_add_u32 v{vWc + c}, s{sRd}, v{vW0 + c}")
        else:
            pre.append(f"s_waitcnt lgkmcnt({min(15, nDS * (PD - 1))})")
        pre2 = []
        if ph:
            pre2.append(f"s_add_u32 s{sT0}, s{sKW}, {ph * 32 * RSG}")
            pre2.append(f"s_add_u32 s{sT1}, s{sKX}, {ph * 1024}")
        else:
            pre2.append(f"s_mov_b32 s{sT0}, s{sKW}")
            pre2.append(f"s_mov_b32 s{sT1}, s{sKX}")
        pre2.append(f"s_cmp_ge_u32 s{sT1}, {KBT * 1024}")
        pre2.append(f"s_cselect_b32 s{sT1}, 0x40000000, s{sT1}")
        if ph == KS - 1:
            pre2.append(f"s_add_u32 s{sKW}, s{sKW}, {KS * 32 * RSG}")
            pre2.append(f"s_add_u32 s{sKX}, s{sKX}, {KS * 1024}")
        mf = []
        for sub in range(NSUB):
            for fb in range(FBW):
                for mb in range(MBW):
                    a_ = acc(sub, fb, mb); w = wfrag(p, sub, fb); x = xfrag(p, mb)
                    mf.append(f"v_mfma_f32_16x16x32_bf16 v[{a_}:{a_+3}], a[{w}:{w+3}], a[{x}:{x+3}], v[{a_}:{a_+3}]")
        M = len(mf)
        ds = ds_reads(pr, ph, vXc, vWc)
        dm = dma_instrs(ph, sWr, 0, sT0, sT1)
        if cfg.get('no_ds'): ds = []
        if cfg.get('no_dma'): dm = []
        if cfg.get('no_dma_a'): dm = dm[nA:] + dm[nA:nA + nA]
        if cfg.get('no_dma_w'): dm = (dm[:nA] * 16)[:nA + nW]
        if cfg.get('no_mfma'): mf = ["s_nop 0"] * M
        if cfg.get('no_bar'): pre = [x for x in pre if x != "s_barrier"]
        side = {}
        def put(g, ins):
            side.setdefault(min(g, M - 1), []).extend(ins)
        dsr = cfg.get('ds_rate', 1)
        for i, d in enumerate(ds):
            put(i // dsr, [d])
        put(0, pre2)
        g0 = cfg.get('dma_g0', 2)
        span = max(1, (M - g0 - 2) // max(1, len(dm)))
        for i, (m0, d) in enumerate(dm):
            g = g0 + i * span
            put(g, m0)
            if g + 1 <= M - 1:
                put(g + 1, [d])
            else:
                put(g, ["s_nop 0", d])
        for x in pre: A(x)
        for x in interleave(mf, side): A(x)
    A(f"s_sub_u32 s{sCnt}, s{sCnt}, 1")
    A(f"s_cmp_lg_u32 s{sCnt}, 0")
    A(f"s_cbranch_scc1 {Lloop}")
    A("s_waitcnt vmcnt(0) lgkmcnt(0)")
    A("s_nop 7")
    A("s_nop 7")
    env = dict(locals())
    if cfg.get('stamp'): A("s_memtime s[60:61]"); A("s_waitcnt lgkmcnt(0)")
    cfg['epilogue'](A, env)
    if cfg.get('stamp'):
        A("s_waitcnt vmcnt(0)")
        A("s_memtime s[62:63]")
        A("s_memrealtime s[66:67]")
        A(f"s_load_dwordx2 s[{sP}:{sP+1}], s[0:1], {KA['dbg']}")
        A("s_waitcnt lgkmcnt(0)")
        srd(A, sO, sP, sP + 1, 256)
        A("s_sub_u32 s58, s58, s56"); A("s_sub_u32 s60, s60, s56"); A("s_sub_u32 s62, s62, s56")
        A("v_mov_b32 v0, s58"); A("v_mov_b32 v1, s60"); A("v_mov_b32 v2, s62"); A("s_sub_u32 s66, s66, s64"); A("v_mov_b32 v3, s66")
        A(f"s_and_b32 s{sT0}, s2, 63")
        A(f"s_add_u32 s{sT0}, s{sT0}, s{sWave}")
        A(f"s_cmp_lg_u32 s{sT0}, 0")
        A(f"s_cbranch_scc1 {Lend}")
        A(f"s_lshr_b32 s{sT0}, s2, 6")
        A(f"s_lshl_b32 s{sT0}, s{sT0}, 4")
        A(f"v_mov_b32 v4, s{sT0}")
        A(f"buffer_store_dwordx4 v[0:3], v4, s[{sO}:{sO+3}], 0 offen")
    rt_out(A, Lend, sWave)
    A.label(Lend)
    A("s_endpgm")
    A.end_kernel(name, NV, NA_, 102, 256, 256, LDS)


def epi_gemm1(A, e):
    g = e
    acc, FBW, MBW = g['acc'], g['FBW'], g['MBW']
    sO, sP, sT0, sT1, sMT, sNT, sWM, sWN, vLane, vE, vE2, sE = [g[k] for k in
        "sO sP sT0 sT1 sMT sNT sWM sWN vLane vE vE2 sE".split()]
    faithful = g['cfg'].get('faithful', True)
    srd_off(A, sO, sP + 4, sP + 5, WS_HH, 2048 * 3584 * 2)
    A(f"s_mul_i32 s{sT0}, s{sNT}, 14")
    A(f"s_mul_i32 s{sT1}, s{sWN}, 7")
    A(f"s_add_u32 s{sT0}, s{sT0}, s{sT1}")
    A(f"s_lshl_b32 s{sT1}, s{sMT}, 3")
    A(f"s_lshl_b32 s{sE}, s{sWM}, 2")
    A(f"s_add_u32 s{sT1}, s{sT1}, s{sE}")
    A(f"s_mul_i32 s{sT1}, s{sT1}, {112 * 1024}")
    A(f"s_mov_b32 s{sE+2}, 0xbfb8aa3b")
    A(f"s_mov_b32 s{sE+3}, 0xbfb8aa3b")
    A(f"s_mov_b32 s{sE+4}, 0xffff0000")
    for fb in range(FBW):
        A(f"s_add_u32 s{sE}, s{sT0}, {fb}")
        A(f"s_lshr_b32 s{sE+1}, s{sE}, 1")
        A(f"s_lshl_b32 s{sE+1}, s{sE+1}, 10")
        A(f"s_and_b32 s{sE}, s{sE}, 1")
        A(f"s_lshl_b32 s{sE}, s{sE}, 3")
        A(f"s_add_u32 s{sE}, s{sE}, s{sE+1}")
        A(f"s_add_u32 s{sE}, s{sE}, s{sT1}")
        A(f"v_lshl_add_u32 v{vE}, v{vLane}, 4, s{sE}")
        for mb in range(MBW):
            G = acc(0, fb, mb); U = acc(1, fb, mb)
            t = vE2 + (mb % 2) * 8
            if faithful:
                for h in range(2):
                    A(f"v_cvt_pk_bf16_f32 v{t}, v{G+2*h}, v{G+2*h+1}")
                    A(f"v_cvt_pk_bf16_f32 v{t+1}, v{U+2*h}, v{U+2*h+1}")
                    A(f"v_lshlrev_b32 v{G+2*h}, 16, v{t}")
                    A(f"v_and_b32 v{G+2*h+1}, s{sE+4}, v{t}")
                    A(f"v_lshlrev_b32 v{U+2*h}, 16, v{t+1}")
                    A(f"v_and_b32 v{U+2*h+1}, s{sE+4}, v{t+1}")
            for h in range(2):
                A(f"v_pk_mul_f32 v[{t+2*h}:{t+2*h+1}], v[{G+2*h}:{G+2*h+1}], s[{sE+2}:{sE+3}]")
            for i in range(4):
                A(f"v_exp_f32 v{t+i}, v{t+i}")
            for h in range(2):
                A(f"v_pk_add_f32 v[{t+2*h}:{t+2*h+1}], v[{t+2*h}:{t+2*h+1}], 1.0 op_sel_hi:[1,0]")
            for i in range(4):
                A(f"v_rcp_f32 v{t+i}, v{t+i}")
            for h in range(2):
                A(f"v_pk_mul_f32 v[{t+2*h}:{t+2*h+1}], v[{t+2*h}:{t+2*h+1}], v[{G+2*h}:{G+2*h+1}]")
            if faithful:
                for h in range(2):
                    A(f"v_cvt_pk_bf16_f32 v{t+4+h}, v{t+2*h}, v{t+2*h+1}")
                for h in range(2):
                    A(f"v_lshlrev_b32 v{t+2*h}, 16, v{t+4+h}")
                    A(f"v_and_b32 v{t+2*h+1}, s{sE+4}, v{t+4+h}")
            for h in range(2):
                A(f"v_pk_mul_f32 v[{t+2*h}:{t+2*h+1}], v[{t+2*h}:{t+2*h+1}], v[{U+2*h}:{U+2*h+1}]")
            A(f"v_cvt_pk_bf16_f32 v{t+6}, v{t}, v{t+1}")
            A(f"v_cvt_pk_bf16_f32 v{t+7}, v{t+2}, v{t+3}")
            A(f"s_mov_b32 s{sE+5}, {mb * 112 * 1024}")
            A(f"buffer_store_dwordx2 v[{t+6}:{t+7}], v{vE}, s[{sO}:{sO+3}], s{sE+5} offen")


def epi_gemm2(A, e):
    g = e
    acc, FBW, MBW, MT, NW = g['acc'], g['FBW'], g['MBW'], g['MT'], g['NW']
    sO, sP, sT0, sT1, sMT, sNT, sWM, sWN, vLane, vE, vE2, sE, sX, sW = [g[k] for k in
        "sO sP sT0 sT1 sMT sNT sWM sWN vLane vE vE2 sE sX sW".split()]
    srd(A, sO, sP + 6, sP + 7, 2048 * 1024 * 2)
    srd_off(A, sX, sP + 4, sP + 5, WS_X1, 2048 * 1024 * 2)
    srd_off(A, sW, sP + 4, sP + 5, WS_MOD, 2 * 6144 * 4)
    A(f"s_mul_i32 s{sT0}, s{sNT}, {NW}")
    A(f"s_mul_i32 s{sE}, s{sWN}, {FBW * 16}")
    A(f"s_add_u32 s{sT0}, s{sT0}, s{sE}")
    A(f"s_mul_i32 s{sT1}, s{sMT}, {MT}")
    A(f"s_mul_i32 s{sE}, s{sWM}, {MBW * 16}")
    A(f"s_add_u32 s{sT1}, s{sT1}, s{sE}")
    A(f"s_mov_b32 s{sE+4}, 0xffff0000")
    A(f"v_lshrrev_b32 v{vE}, 4, v{vLane}")
    A(f"v_lshlrev_b32 v{vE}, 2, v{vE}")
    A(f"v_add_u32 v{vE}, s{sT0}, v{vE}")
    A(f"v_and_b32 v{vE+1}, 15, v{vLane}")
    A(f"v_add_u32 v{vE+1}, s{sT1}, v{vE+1}")
    A(f"v_lshlrev_b32 v{vE+1}, 11, v{vE+1}")
    A(f"v_lshl_add_u32 v{vE+1}, v{vE}, 1, v{vE+1}")
    A(f"v_lshlrev_b32 v{vE}, 2, v{vE}")
    A(f"v_add_u32 v{vE}, {5 * 4096}, v{vE}")
    gbr = vE2
    xr = vE2 + FBW * 4
    gb2 = xr + FBW * MBW * 2
    A(f"s_mov_b32 s{sE}, 24576")
    for fb in range(FBW):
        A(f"buffer_load_dwordx4 v[{gbr+4*fb}:{gbr+4*fb+3}], v{vE}, s[{sW}:{sW+3}], 0 offen offset:{fb * 64}")
        A(f"buffer_load_dwordx4 v[{gb2+4*fb}:{gb2+4*fb+3}], v{vE}, s[{sW}:{sW+3}], s{sE} offen offset:{fb * 64}")
    for fb in range(FBW):
        for mb in range(MBW):
            r = xr + (fb * MBW + mb) * 2
            A(f"s_mov_b32 s{sE}, {mb * 16 * 2048}")
            A(f"buffer_load_dwordx2 v[{r}:{r+1}], v{vE+1}, s[{sX}:{sX+3}], s{sE} offen offset:{fb * 32}")
    A("s_waitcnt vmcnt(0)")
    t = vE + 2
    for i in range(0, FBW * 4, 2):
        A(f"v_pk_add_f32 v[{gbr+i}:{gbr+i+1}], v[{gbr+i}:{gbr+i+1}], v[{gb2+i}:{gb2+i+1}]")
        A(f"v_cvt_pk_bf16_f32 v{t}, v{gbr+i}, v{gbr+i+1}")
        A(f"v_lshlrev_b32 v{gbr+i}, 16, v{t}")
        A(f"v_and_b32 v{gbr+i+1}, s{sE+4}, v{t}")
    for fb in range(FBW):
        for mb in range(MBW):
            a_ = acc(0, fb, mb)
            r = xr + (fb * MBW + mb) * 2
            for h in range(2):
                A(f"v_cvt_pk_bf16_f32 v{t}, v{a_+2*h}, v{a_+2*h+1}")
                A(f"v_lshlrev_b32 v{a_+2*h}, 16, v{t}")
                A(f"v_and_b32 v{a_+2*h+1}, s{sE+4}, v{t}")
                A(f"v_pk_mul_f32 v[{a_+2*h}:{a_+2*h+1}], v[{a_+2*h}:{a_+2*h+1}], v[{gbr+4*fb+2*h}:{gbr+4*fb+2*h+1}]")
                A(f"v_cvt_pk_bf16_f32 v{t}, v{a_+2*h}, v{a_+2*h+1}")
                A(f"v_lshlrev_b32 v{a_+2*h}, 16, v{t}")
                A(f"v_and_b32 v{a_+2*h+1}, s{sE+4}, v{t}")
                A(f"v_lshlrev_b32 v{t}, 16, v{r+h}")
                A(f"v_and_b32 v{t+1}, s{sE+4}, v{r+h}")
                A(f"v_add_f32 v{a_+2*h}, v{a_+2*h}, v{t}")
                A(f"v_add_f32 v{a_+2*h+1}, v{a_+2*h+1}, v{t+1}")
                A(f"v_cvt_pk_bf16_f32 v{r+h}, v{a_+2*h}, v{a_+2*h+1}")
            A(f"s_mov_b32 s{sE}, {mb * 16 * 2048}")
            A(f"buffer_store_dwordx2 v[{r}:{r+1}], v{vE+1}, s[{sO}:{sO+3}], s{sE} offen offset:{fb * 32}")


def gen_prefetch(A, name="pf_kernel"):
    A.begin_kernel(name)
    Lend = A.newlabel("Lend")
    A("s_cmp_ge_u32 s2, 256"); A(f"s_cbranch_scc1 {Lend}")
    A(f"s_load_dwordx4 s[32:35], s[0:1], {KA['w1']}")
    A(f"s_load_dwordx2 s[36:37], s[0:1], {KA['w2']}")
    A("s_waitcnt lgkmcnt(0)")
    srd(A, 4, 32, 33, 7340032); srd(A, 8, 34, 35, 7340032); srd(A, 12, 36, 37, 7340032)
    A("s_mul_i32 s16, s2, 28672")
    A("v_lshlrev_b32 v1, 4, v0")
    A("v_add_u32 v1, s16, v1")
    r = 4
    for sr in (4, 8, 12):
        for j in range(7):
            A(f"s_mov_b32 s17, {j * 4096}")
            A(f"buffer_load_dwordx4 v[{r}:{r+3}], v1, s[{sr}:{sr+3}], s17 offen")
            r += 4
    A("s_waitcnt vmcnt(0)")
    A.label(Lend); A("s_endpgm")
    A.end_kernel(name, r, 0, 48, 256, 256, 0)


GEMM1 = dict(name="gemm1_kernel", MT=128, WM=2, WN=2, NSUB=2, NW=224, K=1024, RSG=7168, KS=1, R=4, PD=1, LAG=0,
             fs=2, fbits=1, wptr=[KA['w1'], KA['w3']], act_off=WS_H2, xm_bits=1, qm_bits=3, epilogue=epi_gemm1,
             etemps=16)
GEMM2 = dict(name="gemm2_kernel", MT=128, WM=2, WN=2, NSUB=1, NW=64, K=3584, RSG=2048, KS=2, R=6, PD=2, LAG=1,
             fs=1, fbits=2, wptr=[KA['w2']], act_off=WS_HH, xm_bits=2, qm_bits=2, epilogue=epi_gemm2,
             etemps=40, dma_g0=0, NSET=4)

if __name__ == "__main__":
    import importlib
    A = Asm()
    which = sys.argv[2].split(",") if len(sys.argv) > 2 else ["kv", "conv", "ln", "g1", "g2"]
    try:
        import gen_front
    except ImportError:
        gen_front = None
    opts = {}
    for kv in sys.argv[3:]:
        k_, v_ = kv.split("=")
        opts[k_] = int(v_)
    GEMM1.update(opts); GEMM2.update(opts)
    if gen_front and opts.get("fstamp"): gen_front.STAMP[0] = 1
    if opts.get('rt'):
        RT[0] = 1
        import gen as _g; _g.RT[0] = 1
    for w in which:
        if w == "conv": gen_front.gen_conv(A, prefetch=(opts.get('pf1', 1), opts.get('pf1', 1), opts.get('pf2', 0)))
        if w == "kv": gen_front.gen_kv(A, prefetch=(opts.get('pk1', 0), opts.get('pk1', 0), opts.get('pk2', 0)))
        if w == "fa":
            import gen_a
            gen_a.gen_front_a(A, prefetch=(opts.get('pf1', 1), opts.get('pf1', 1), opts.get('pf2', 0)), nearly=opts.get('nearly', 0), pfm=opts.get('pfm', 1))
        if w == "all":
            import gen2
            gen2.gen_all(A, opts=opts)
        if w == "b":
            import gen2
            gen2.gen_b(A, opts=opts)
        if w == "ln": gen_front.gen_ln(A, pf2=opts.get('pl2', 1))
        if w == "g1": gen_gemm(A, GEMM1)
        if w == "g2": gen_gemm(A, GEMM2)
        if w == "pf": gen_prefetch(A)
        if w.startswith("nop"):
            A.begin_kernel(w + "_kernel"); A("s_endpgm"); A.end_kernel(w + "_kernel", 8, 0, 16, 256, 256, 0)
    open(sys.argv[1], "w").write(A.text())
```

```python
import sys, math

NAME = "adaLN_cond__ssm_conv_h3__glu_gated_swiglu__prompt"

WS_MOD = 0
WS_YP = 1 << 20
WS_X1 = WS_YP + (4 << 20)
WS_H2 = WS_X1 + (4 << 20)
WS_HH = WS_H2 + (4 << 20)
WS_RKV = WS_HH + 2048 * 3584 * 2
WS_FLAG = WS_RKV + 1024 * 5120
WS_END = WS_FLAG + 512 * 128

KA = dict(q=0, k=8, v=16, shift=24, ssmk=32, ssmD=40, bx=48, w1=56, w3=64, w2=72, c=80, wmod=88, out=96, dbg=104, ws=112)


RT = [0]

WS_DBG = 200 << 20

def rt_out(A, Lend, swave):
    if not RT[0]: return
    A("s_waitcnt vmcnt(0) lgkmcnt(0)")
    A("s_memrealtime s[38:39]")
    A(f"s_load_dwordx2 s[36:37], s[0:1], {KA['ws']}")
    A("s_waitcnt lgkmcnt(0)")
    srd_off(A, 8, 36, 37, WS_DBG + 512 * len(A.launch), 512)
    A(f"s_and_b32 s36, s2, 31"); A(f"s_add_u32 s36, s36, s{swave}"); A("s_cmp_lg_u32 s36, 0"); A(f"s_cbranch_scc1 {Lend}")
    A("s_lshr_b32 s36, s2, 5"); A("s_lshl_b32 s36, s36, 5")
    A("s_mov_b64 exec, 1")
    A("v_mov_b32 v0, s36"); A("v_mov_b32 v2, s100"); A("v_mov_b32 v3, s38")
    A("buffer_store_dwordx2 v[2:3], v0, s[8:11], 0 offen")
    for i in range(6):
        A(f"v_mov_b32 v2, s{94 + i}")
        A(f"buffer_store_dword v2, v0, s[8:11], 0 offen offset:{8 + 4 * i}")


class Asm:
    def __init__(self):
        self.lines = []
        self.launch = []
        self.kd = []
        self.uid = 0

    def __call__(self, s):
        self.lines.append("    " + s)

    def label(self, l):
        self.lines.append(l + ":")

    def newlabel(self, p="L"):
        self.uid += 1
        return f"{p}_{self.uid}"

    def begin_kernel(self, name):
        self.lines.append(f".globl {name}")
        self.lines.append(".p2align 8")
        self.lines.append(f".type {name},@function")
        self.lines.append(f"{name}:")
        if RT[0]:
            self("s_memrealtime s[100:101]")
            self("v_lshrrev_b32 v255, 6, v0") if False else None

    def end_kernel(self, name, nvgpr, nagpr, nsgpr, grid, block, lds):
        acc_off = (nvgpr + 3) // 4 * 4
        nfv = acc_off + nagpr if nagpr else nvgpr
        self.kd.append(f""".p2align 6
.amdhsa_kernel {name}
  .amdhsa_next_free_vgpr {nfv}
  .amdhsa_next_free_sgpr {nsgpr}
  .amdhsa_accum_offset {acc_off}
  .amdhsa_group_segment_fixed_size 0
  .amdhsa_kernarg_size 120
  .amdhsa_user_sgpr_count 2
  .amdhsa_user_sgpr_kernarg_segment_ptr 1
  .amdhsa_system_sgpr_workgroup_id_x 1
  .amdhsa_float_denorm_mode_32 3
.end_amdhsa_kernel""")
        if name == NAME + "_kernel":
            self.launch.append(f"; @launch grid=({grid},1,1) block=({block},1,1) lds={lds}")
        else:
            self.launch.append(f"; @launch kernel={name} grid=({grid},1,1) block=({block},1,1) lds={lds}")

    def text(self):
        out = list(self.launch)
        out.append('.amdgcn_target "amdgcn-amd-amdhsa--gfx950"')
        out.append(".text")
        out += self.lines
        out.append('.section .rodata,"a"')
        out += self.kd
        return "\n".join(out) + "\n"


def srd(A, d, lo, hi, nbytes):
    A(f"s_mov_b32 s{d}, s{lo}")
    A(f"s_and_b32 s{d+1}, s{hi}, 0xffff")
    A(f"s_mov_b32 s{d+2}, {nbytes}")
    A(f"s_mov_b32 s{d+3}, 0x00020000")


def srd_off(A, d, lo, hi, off, nbytes):
    A(f"s_add_u32 s{d}, s{lo}, {off}")
    A(f"s_addc_u32 s{d+1}, s{hi}, 0")
    A(f"s_and_b32 s{d+1}, s{d+1}, 0xffff")
    A(f"s_mov_b32 s{d+2}, {nbytes}")
    A(f"s_mov_b32 s{d+3}, 0x00020000")


def interleave(main, side_at):
    out = []
    for i, m in enumerate(main):
        out.append(m)
        out += side_at.get(i, [])
    return out


def gen_gemm(A, cfg):
    name = cfg['name']
    MT, WM, WN = cfg['MT'], cfg['WM'], cfg['WN']
    NSUB, NW = cfg['NSUB'], cfg['NW']
    K, RSG = cfg['K'], cfg['RSG']
    KS, R, PD, LAG = cfg['KS'], cfg['R'], cfg['PD'], cfg['LAG']
    fs, fbits = cfg['fs'], cfg['fbits']
    fm = (1 << fbits) - 1
    KBT = K // 32
    S = KBT
    T = S // KS
    RS = NW * 2
    CPR = RS // 16
    WT_BYTES = 32 * RS
    assert WT_BYTES % 1024 == 0
    ipt = WT_BYTES // 1024
    ACT_BYTES = MT * 64
    SUB_BYTES = ACT_BYTES + NSUB * WT_BYTES
    SLOT = KS * SUB_BYTES
    LDS = R * SLOT
    assert LDS <= 163840, LDS
    NWAVE = 4
    assert WM * WN == NWAVE
    MBW = MT // 16 // WM
    FBW = NW // 16 // WN
    nA = MT // 16 // NWAVE
    assert (NSUB * ipt) % NWAVE == 0
    nW = NSUB * ipt // NWAVE
    wps = NWAVE // NSUB
    assert ipt % nW == 0 or True
    n_dma = KS * (nA + nW)
    NCLS = min(1 << fbits, FBW)
    for b in range(NW // 16):
        for k0 in (0, 8, 16, 24):
            segs = set(((k * RS + 32 * (b ^ ((k >> fs) & fm))) // 32) % 8 for k in range(k0, k0 + 8))
            assert len(segs) == 8, (b, k0, segs)
    assert fs + fbits <= 4
    NACC = NSUB * FBW * MBW * 4
    def acc(sub, fb, mb):
        return ((sub * FBW + fb) * MBW + mb) * 4
    vn = [NACC]
    def valloc(n=1):
        r = vn[0]; vn[0] += n; return r
    vLane = valloc()
    if vn[0] % 2: valloc()
    ubase = vn[0]
    vT0 = valloc(); vT1 = valloc(); vT2 = valloc(); vT3 = valloc()
    vWoff = valloc(nW); vAoff = valloc(nA)
    vX0 = valloc(); vW0 = valloc(NCLS)
    vXc = valloc(); vWc = valloc(NCLS)
    loop_end = vn[0]
    vn[0] = ubase
    vE = valloc(8)
    vE2 = valloc(cfg.get('etemps', 16))
    NV = max(vn[0], loop_end)
    assert NV <= 256, NV
    NSET = cfg.get("NSET", PD + 1)
    SETSZ = (NSUB * FBW + MBW) * 4
    def wfrag(p, sub, fb): return p * SETSZ + (sub * FBW + fb) * 4
    def xfrag(p, mb): return p * SETSZ + (NSUB * FBW + mb) * 4
    NA_ = NSET * SETSZ
    assert NA_ <= 256
    sW, sX, sO = 4, 8, 12
    sWave, sKW, sKX, sCnt, sWB, sAB, sRd, sWr, sT0, sT1, sMT, sNT, sWM, sWN, sKXe, sTK = range(16, 32)
    sP = 32
    sE = 48

    A.begin_kernel(name)
    Lend = A.newlabel("Lend")
    A(f"s_cmp_ge_u32 s2, 256")
    A(f"s_cbranch_scc1 {Lend}")
    wk = cfg['wptr']
    if cfg.get('stamp'): A("s_memtime s[56:57]"); A("s_memrealtime s[64:65]")
    A(f"s_load_dwordx2 s[{sP}:{sP+1}], s[0:1], {wk[0]}")
    A(f"s_load_dwordx2 s[{sP+2}:{sP+3}], s[0:1], {wk[-1]}")
    A(f"s_load_dwordx2 s[{sP+4}:{sP+5}], s[0:1], {KA['ws']}")
    A(f"s_load_dwordx2 s[{sP+6}:{sP+7}], s[0:1], {KA['out']}")
    A(f"v_lshrrev_b32 v{vT0}, 6, v0")
    A(f"v_and_b32 v{vLane}, 63, v0")
    A(f"s_nop 0")
    A(f"v_readfirstlane_b32 s{sWave}, v{vT0}")
    xm_bits, = (cfg['xm_bits'],)
    qm_bits = cfg['qm_bits']
    A(f"s_and_b32 s{sT0}, s2, 7")
    A(f"s_lshr_b32 s{sT1}, s2, 3")
    A(f"s_and_b32 s{sMT}, s{sT0}, {(1 << xm_bits) - 1}")
    A(f"s_lshl_b32 s{sMT}, s{sMT}, {qm_bits}")
    A(f"s_and_b32 s{sTK}, s{sT1}, {(1 << qm_bits) - 1}")
    A(f"s_add_u32 s{sMT}, s{sMT}, s{sTK}")
    A(f"s_lshr_b32 s{sNT}, s{sT0}, {xm_bits}")
    A(f"s_lshl_b32 s{sNT}, s{sNT}, {5 - qm_bits}")
    A(f"s_lshr_b32 s{sTK}, s{sT1}, {qm_bits}")
    A(f"s_add_u32 s{sNT}, s{sNT}, s{sTK}")
    A(f"s_lshr_b32 s{sWM}, s{sWave}, {int(math.log2(WN))}")
    A(f"s_and_b32 s{sWN}, s{sWave}, {WN - 1}")
    A(f"s_waitcnt lgkmcnt(0)")
    if NSUB == 2:
        A(f"s_cmp_ge_u32 s{sWave}, {wps}")
        A(f"s_cselect_b32 s{sT0}, s{sP+2}, s{sP}")
        A(f"s_cselect_b32 s{sT1}, s{sP+3}, s{sP+1}")
        srd(A, sW, sT0, sT1, K * RSG)
    else:
        srd(A, sW, sP, sP + 1, K * RSG)
    srd_off(A, sX, sP + 4, sP + 5, cfg['act_off'], 2048 * K * 2)
    A(f"s_and_b32 s{sT0}, s{sWave}, {wps - 1}")
    A(f"s_mul_i32 s{sT0}, s{sT0}, {nW * 64}")
    A(f"s_mul_i32 s{sT1}, s{sNT}, {RS}")
    magic = (65536 + CPR - 1) // CPR
    for Q in range(ipt * 64):
        assert (Q * magic) >> 16 == Q // CPR
    for j in range(nW):
        A(f"v_add_u32 v{vT0}, s{sT0}, v{vLane}")
        if j: A(f"v_add_u32 v{vT0}, {j * 64}, v{vT0}")
        A(f"v_mul_u32_u24 v{vT1}, {magic}, v{vT0}")
        A(f"v_lshrrev_b32 v{vT1}, 16, v{vT1}")
        A(f"v_mul_u32_u24 v{vT2}, {CPR}, v{vT1}")
        A(f"v_sub_u32 v{vT2}, v{vT0}, v{vT2}")
        A(f"v_lshrrev_b32 v{vT3}, {fs}, v{vT1}")
        A(f"v_and_b32 v{vT3}, {fm}, v{vT3}")
        A(f"v_lshlrev_b32 v{vT3}, 1, v{vT3}")
        A(f"v_xor_b32 v{vT2}, v{vT2}, v{vT3}")
        A(f"v_lshlrev_b32 v{vT2}, 4, v{vT2}")
        A(f"v_mul_u32_u24 v{vT1}, {RSG}, v{vT1}")
        A(f"v_add3_u32 v{vWoff + j}, v{vT1}, v{vT2}, s{sT1}")
    A(f"s_mul_i32 s{sT0}, s{sMT}, {MT // 16}")
    A(f"s_mul_i32 s{sT1}, s{sWave}, {nA}")
    A(f"s_add_u32 s{sT0}, s{sT0}, s{sT1}")
    A(f"s_mul_i32 s{sT0}, s{sT0}, {KBT * 1024}")
    A(f"v_lshlrev_b32 v{vT0}, 4, v{vLane}")
    for j in range(nA):
        A(f"v_add_u32 v{vAoff + j}, s{sT0}, v{vT0}")
        if j: A(f"v_add_u32 v{vAoff + j}, {j * KBT * 1024}, v{vAoff + j}")
    A(f"s_mul_i32 s{sWB}, s{sWave}, {nW * 1024}")
    A(f"s_add_u32 s{sWB}, s{sWB}, {ACT_BYTES}")
    A(f"s_mul_i32 s{sAB}, s{sWave}, {nA * 1024}")
    A(f"s_mul_i32 s{sT0}, s{sWM}, {MBW * 1024}")
    A(f"v_lshl_add_u32 v{vX0}, v{vLane}, 4, s{sT0}")
    A(f"v_lshrrev_b32 v{vT0}, 2, v{vLane}")
    A(f"v_and_b32 v{vT1}, 3, v{vLane}")
    A(f"v_mul_u32_u24 v{vT2}, {RS}, v{vT0}")
    A(f"v_lshl_add_u32 v{vT2}, v{vT1}, 3, v{vT2}")
    A(f"v_add_u32 v{vT2}, {ACT_BYTES}, v{vT2}")
    A(f"v_lshrrev_b32 v{vT3}, {fs}, v{vT0}")
    A(f"v_and_b32 v{vT3}, {fm}, v{vT3}")
    A(f"s_mul_i32 s{sT0}, s{sWN}, {FBW}")
    for c in range(NCLS):
        A(f"s_add_u32 s{sT1}, s{sT0}, {c}")
        A(f"v_xor_b32 v{vT1}, s{sT1}, v{vT3}")
        A(f"v_lshl_add_u32 v{vW0 + c}, v{vT1}, 5, v{vT2}")

    def dma_instrs(u, slot_s, slot_const, kW_s, kX_s):
        res = []
        for j in range(nA):
            cst = slot_const + u * SUB_BYTES + j * 1024
            if slot_s is None:
                m0 = [f"s_add_u32 m0, s{sAB}, {cst}"]
            else:
                m0 = [f"s_add_u32 s{sTK}, s{sAB}, s{slot_s}", f"s_add_u32 m0, s{sTK}, {cst}"]
            res.append((m0, f"buffer_load_dwordx4 v{vAoff + j}, s[{sX}:{sX+3}], s{kX_s} offen lds"))
        for j in range(nW):
            cst = slot_const + u * SUB_BYTES + j * 1024
            if slot_s is None:
                m0 = [f"s_add_u32 m0, s{sWB}, {cst}"]
            else:
                m0 = [f"s_add_u32 s{sTK}, s{sWB}, s{slot_s}", f"s_add_u32 m0, s{sTK}, {cst}"]
            res.append((m0, f"buffer_load_dwordx4 v{vWoff + j}, s[{sW}:{sW+3}], s{kW_s} offen lds"))
        return res

    def ds_reads(p, u, vX, vW, extra=0):
        res = []
        for mb in range(MBW):
            r = xfrag(p, mb)
            res.append(f"ds_read_b128 a[{r}:{r+3}], v{vX} offset:{extra + u * SUB_BYTES + mb * 1024}")
        for sub in range(NSUB):
            for fb in range(FBW):
                cls = fb % NCLS
                r = wfrag(p, sub, fb)
                off = extra + u * SUB_BYTES + sub * WT_BYTES + 32 * (fb - cls)
                assert off + 16 * RS < 65536
                res.append(f"ds_read_b64_tr_b16 a[{r}:{r+1}], v{vW + cls} offset:{off}")
                res.append(f"ds_read_b64_tr_b16 a[{r+2}:{r+3}], v{vW + cls} offset:{off + 16 * RS}")
        return res

    t0 = (PD - 1) // KS
    assert t0 <= LAG
    n_pro = t0 + R - LAG
    for st in range(n_pro):
        for u in range(KS):
            A(f"s_mov_b32 s{sT0}, {(st * KS + u) * 32 * RSG}")
            A(f"s_mov_b32 s{sT1}, {(st * KS + u) * 1024}")
            for m0, d in dma_instrs(u, None, (st % R) * SLOT, sT0, sT1):
                for x in m0: A(x)
                A("s_nop 0")
                A(d)
    A(f"s_mov_b32 s{sKW}, {n_pro * KS * 32 * RSG}")
    A(f"s_mov_b32 s{sKX}, {n_pro * KS * 1024}")
    for i in range(NACC):
        A(f"v_mov_b32 v{i}, 0")
    nst = t0 + 1
    A(f"s_waitcnt vmcnt({n_dma * (n_pro - nst)})")
    A("s_barrier")
    for s in range(PD):
        st, u = s // KS, s % KS
        if st == 0:
            for x in ds_reads(s % NSET, u, vX0, vW0): A(x)
        else:
            A(f"v_add_u32 v{vXc}, {st * SLOT}, v{vX0}")
            for c in range(NCLS): A(f"v_add_u32 v{vWc + c}, {st * SLOT}, v{vW0 + c}")
            for x in ds_reads(s % NSET, u, vXc, vWc): A(x)
    A(f"s_mov_b32 s{sRd}, {t0 * SLOT}")
    A(f"v_add_u32 v{vXc}, {t0 * SLOT}, v{vX0}")
    for c in range(NCLS): A(f"v_add_u32 v{vWc + c}, {t0 * SLOT}, v{vW0 + c}")
    UN = KS * NSET // math.gcd(KS, NSET)
    assert S % UN == 0, (S, UN)
    A(f"s_mov_b32 s{sCnt}, {S // UN}")
    if cfg.get('stamp'): A("s_waitcnt lgkmcnt(0)"); A("s_memtime s[58:59]"); A("s_waitcnt lgkmcnt(0)")
    Lloop = A.newlabel("Lloop")
    A.label(Lloop)
    nDS = MBW + 2 * NSUB * FBW
    for s in range(UN):
        p = s % NSET
        pr = (s + PD) % NSET
        ph = (s + PD) % KS
        pre = []
        if ph == 0:
            lg = 0 if LAG == 0 else min(15, nDS * (PD - 1))
            pre.append(f"s_waitcnt vmcnt({n_dma * (R - LAG - 2)}) lgkmcnt({lg})")
            pre.append("s_barrier")
            if LAG == 0:
                pre.append(f"s_mov_b32 s{sWr}, s{sRd}")
            else:
                pre.append(f"s_sub_u32 s{sWr}, s{sRd}, {SLOT}")
                pre.append(f"s_cmp_eq_u32 s{sRd}, 0")
                pre.append(f"s_cselect_b32 s{sWr}, {(R - 1) * SLOT}, s{sWr}")
            pre.append(f"s_add_u32 s{sRd}, s{sRd}, {SLOT}")
            pre.append(f"s_cmp_eq_u32 s{sRd}, {R * SLOT}")
            pre.append(f"s_cselect_b32 s{sRd}, 0, s{sRd}")
            pre.append(f"v_add_u32 v{vXc}, s{sRd}, v{vX0}")
            for c in range(NCLS): pre.append(f"v_add_u32 v{vWc + c}, s{sRd}, v{vW0 + c}")
        else:
            pre.append(f"s_waitcnt lgkmcnt({min(15, nDS * (PD - 1))})")
        pre2 = []
        if ph:
            pre2.append(f"s_add_u32 s{sT0}, s{sKW}, {ph * 32 * RSG}")
            pre2.append(f"s_add_u32 s{sT1}, s{sKX}, {ph * 1024}")
        else:
            pre2.append(f"s_mov_b32 s{sT0}, s{sKW}")
            pre2.append(f"s_mov_b32 s{sT1}, s{sKX}")
        pre2.append(f"s_cmp_ge_u32 s{sT1}, {KBT * 1024}")
        pre2.append(f"s_cselect_b32 s{sT1}, 0x40000000, s{sT1}")
        if ph == KS - 1:
            pre2.append(f"s_add_u32 s{sKW}, s{sKW}, {KS * 32 * RSG}")
            pre2.append(f"s_add_u32 s{sKX}, s{sKX}, {KS * 1024}")
        mf = []
        for sub in range(NSUB):
            for fb in range(FBW):
                for mb in range(MBW):
                    a_ = acc(sub, fb, mb); w = wfrag(p, sub, fb); x = xfrag(p, mb)
                    mf.append(f"v_mfma_f32_16x16x32_bf16 v[{a_}:{a_+3}], a[{w}:{w+3}], a[{x}:{x+3}], v[{a_}:{a_+3}]")
        M = len(mf)
        ds = ds_reads(pr, ph, vXc, vWc)
        dm = dma_instrs(ph, sWr, 0, sT0, sT1)
        if cfg.get('no_ds'): ds = []
        if cfg.get('no_dma'): dm = []
        if cfg.get('no_dma_a'): dm = dm[nA:] + dm[nA:nA + nA]
        if cfg.get('no_dma_w'): dm = (dm[:nA] * 16)[:nA + nW]
        if cfg.get('no_mfma'): mf = ["s_nop 0"] * M
        if cfg.get('no_bar'): pre = [x for x in pre if x != "s_barrier"]
        side = {}
        def put(g, ins):
            side.setdefault(min(g, M - 1), []).extend(ins)
        dsr = cfg.get('ds_rate', 1)
        for i, d in enumerate(ds):
            put(i // dsr, [d])
        put(0, pre2)
        g0 = cfg.get('dma_g0', 2)
        span = max(1, (M - g0 - 2) // max(1, len(dm)))
        for i, (m0, d) in enumerate(dm):
            g = g0 + i * span
            put(g, m0)
            if g + 1 <= M - 1:
                put(g + 1, [d])
            else:
                put(g, ["s_nop 0", d])
        for x in pre: A(x)
        for x in interleave(mf, side): A(x)
    A(f"s_sub_u32 s{sCnt}, s{sCnt}, 1")
    A(f"s_cmp_lg_u32 s{sCnt}, 0")
    A(f"s_cbranch_scc1 {Lloop}")
    A("s_waitcnt vmcnt(0) lgkmcnt(0)")
    A("s_nop 7")
    A("s_nop 7")
    env = dict(locals())
    if cfg.get('stamp'): A("s_memtime s[60:61]"); A("s_waitcnt lgkmcnt(0)")
    cfg['epilogue'](A, env)
    if cfg.get('stamp'):
        A("s_waitcnt vmcnt(0)")
        A("s_memtime s[62:63]")
        A("s_memrealtime s[66:67]")
        A(f"s_load_dwordx2 s[{sP}:{sP+1}], s[0:1], {KA['dbg']}")
        A("s_waitcnt lgkmcnt(0)")
        srd(A, sO, sP, sP + 1, 256)
        A("s_sub_u32 s58, s58, s56"); A("s_sub_u32 s60, s60, s56"); A("s_sub_u32 s62, s62, s56")
        A("v_mov_b32 v0, s58"); A("v_mov_b32 v1, s60"); A("v_mov_b32 v2, s62"); A("s_sub_u32 s66, s66, s64"); A("v_mov_b32 v3, s66")
        A(f"s_and_b32 s{sT0}, s2, 63")
        A(f"s_add_u32 s{sT0}, s{sT0}, s{sWave}")
        A(f"s_cmp_lg_u32 s{sT0}, 0")
        A(f"s_cbranch_scc1 {Lend}")
        A(f"s_lshr_b32 s{sT0}, s2, 6")
        A(f"s_lshl_b32 s{sT0}, s{sT0}, 4")
        A(f"v_mov_b32 v4, s{sT0}")
        A(f"buffer_store_dwordx4 v[0:3], v4, s[{sO}:{sO+3}], 0 offen")
    rt_out(A, Lend, sWave)
    A.label(Lend)
    A("s_endpgm")
    A.end_kernel(name, NV, NA_, 102, 256, 256, LDS)


def epi_gemm1(A, e):
    g = e
    acc, FBW, MBW = g['acc'], g['FBW'], g['MBW']
    sO, sP, sT0, sT1, sMT, sNT, sWM, sWN, vLane, vE, vE2, sE = [g[k] for k in
        "sO sP sT0 sT1 sMT sNT sWM sWN vLane vE vE2 sE".split()]
    faithful = g['cfg'].get('faithful', True)
    srd_off(A, sO, sP + 4, sP + 5, WS_HH, 2048 * 3584 * 2)
    A(f"s_mul_i32 s{sT0}, s{sNT}, 14")
    A(f"s_mul_i32 s{sT1}, s{sWN}, 7")
    A(f"s_add_u32 s{sT0}, s{sT0}, s{sT1}")
    A(f"s_lshl_b32 s{sT1}, s{sMT}, 3")
    A(f"s_lshl_b32 s{sE}, s{sWM}, 2")
    A(f"s_add_u32 s{sT1}, s{sT1}, s{sE}")
    A(f"s_mul_i32 s{sT1}, s{sT1}, {112 * 1024}")
    A(f"s_mov_b32 s{sE+2}, 0xbfb8aa3b")
    A(f"s_mov_b32 s{sE+3}, 0xbfb8aa3b")
    A(f"s_mov_b32 s{sE+4}, 0xffff0000")
    for fb in range(FBW):
        A(f"s_add_u32 s{sE}, s{sT0}, {fb}")
        A(f"s_lshr_b32 s{sE+1}, s{sE}, 1")
        A(f"s_lshl_b32 s{sE+1}, s{sE+1}, 10")
        A(f"s_and_b32 s{sE}, s{sE}, 1")
        A(f"s_lshl_b32 s{sE}, s{sE}, 3")
        A(f"s_add_u32 s{sE}, s{sE}, s{sE+1}")
        A(f"s_add_u32 s{sE}, s{sE}, s{sT1}")
        A(f"v_lshl_add_u32 v{vE}, v{vLane}, 4, s{sE}")
        for mb in range(MBW):
            G = acc(0, fb, mb); U = acc(1, fb, mb)
            t = vE2 + (mb % 2) * 8
            if faithful:
                for h in range(2):
                    A(f"v_cvt_pk_bf16_f32 v{t}, v{G+2*h}, v{G+2*h+1}")
                    A(f"v_cvt_pk_bf16_f32 v{t+1}, v{U+2*h}, v{U+2*h+1}")
                    A(f"v_lshlrev_b32 v{G+2*h}, 16, v{t}")
                    A(f"v_and_b32 v{G+2*h+1}, s{sE+4}, v{t}")
                    A(f"v_lshlrev_b32 v{U+2*h}, 16, v{t+1}")
                    A(f"v_and_b32 v{U+2*h+1}, s{sE+4}, v{t+1}")
            for h in range(2):
                A(f"v_pk_mul_f32 v[{t+2*h}:{t+2*h+1}], v[{G+2*h}:{G+2*h+1}], s[{sE+2}:{sE+3}]")
            for i in range(4):
                A(f"v_exp_f32 v{t+i}, v{t+i}")
            for h in range(2):
                A(f"v_pk_add_f32 v[{t+2*h}:{t+2*h+1}], v[{t+2*h}:{t+2*h+1}], 1.0 op_sel_hi:[1,0]")
            for i in range(4):
                A(f"v_rcp_f32 v{t+i}, v{t+i}")
            for h in range(2):
                A(f"v_pk_mul_f32 v[{t+2*h}:{t+2*h+1}], v[{t+2*h}:{t+2*h+1}], v[{G+2*h}:{G+2*h+1}]")
            if faithful:
                for h in range(2):
                    A(f"v_cvt_pk_bf16_f32 v{t+4+h}, v{t+2*h}, v{t+2*h+1}")
                for h in range(2):
                    A(f"v_lshlrev_b32 v{t+2*h}, 16, v{t+4+h}")
                    A(f"v_and_b32 v{t+2*h+1}, s{sE+4}, v{t+4+h}")
            for h in range(2):
                A(f"v_pk_mul_f32 v[{t+2*h}:{t+2*h+1}], v[{t+2*h}:{t+2*h+1}], v[{U+2*h}:{U+2*h+1}]")
            A(f"v_cvt_pk_bf16_f32 v{t+6}, v{t}, v{t+1}")
            A(f"v_cvt_pk_bf16_f32 v{t+7}, v{t+2}, v{t+3}")
            A(f"s_mov_b32 s{sE+5}, {mb * 112 * 1024}")
            A(f"buffer_store_dwordx2 v[{t+6}:{t+7}], v{vE}, s[{sO}:{sO+3}], s{sE+5} offen")


def epi_gemm2(A, e):
    g = e
    acc, FBW, MBW, MT, NW = g['acc'], g['FBW'], g['MBW'], g['MT'], g['NW']
    sO, sP, sT0, sT1, sMT, sNT, sWM, sWN, vLane, vE, vE2, sE, sX, sW = [g[k] for k in
        "sO sP sT0 sT1 sMT sNT sWM sWN vLane vE vE2 sE sX sW".split()]
    srd(A, sO, sP + 6, sP + 7, 2048 * 1024 * 2)
    srd_off(A, sX, sP + 4, sP + 5, WS_X1, 2048 * 1024 * 2)
    srd_off(A, sW, sP + 4, sP + 5, WS_MOD, 2 * 6144 * 4)
    A(f"s_mul_i32 s{sT0}, s{sNT}, {NW}")
    A(f"s_mul_i32 s{sE}, s{sWN}, {FBW * 16}")
    A(f"s_add_u32 s{sT0}, s{sT0}, s{sE}")
    A(f"s_mul_i32 s{sT1}, s{sMT}, {MT}")
    A(f"s_mul_i32 s{sE}, s{sWM}, {MBW * 16}")
    A(f"s_add_u32 s{sT1}, s{sT1}, s{sE}")
    A(f"s_mov_b32 s{sE+4}, 0xffff0000")
    A(f"v_lshrrev_b32 v{vE}, 4, v{vLane}")
    A(f"v_lshlrev_b32 v{vE}, 2, v{vE}")
    A(f"v_add_u32 v{vE}, s{sT0}, v{vE}")
    A(f"v_and_b32 v{vE+1}, 15, v{vLane}")
    A(f"v_add_u32 v{vE+1}, s{sT1}, v{vE+1}")
    A(f"v_lshlrev_b32 v{vE+1}, 11, v{vE+1}")
    A(f"v_lshl_add_u32 v{vE+1}, v{vE}, 1, v{vE+1}")
    A(f"v_lshlrev_b32 v{vE}, 2, v{vE}")
    A(f"v_add_u32 v{vE}, {5 * 4096}, v{vE}")
    gbr = vE2
    xr = vE2 + FBW * 4
    gb2 = xr + FBW * MBW * 2
    A(f"s_mov_b32 s{sE}, 24576")
    for fb in range(FBW):
        A(f"buffer_load_dwordx4 v[{gbr+4*fb}:{gbr+4*fb+3}], v{vE}, s[{sW}:{sW+3}], 0 offen offset:{fb * 64}")
        A(f"buffer_load_dwordx4 v[{gb2+4*fb}:{gb2+4*fb+3}], v{vE}, s[{sW}:{sW+3}], s{sE} offen offset:{fb * 64}")
    for fb in range(FBW):
        for mb in range(MBW):
            r = xr + (fb * MBW + mb) * 2
            A(f"s_mov_b32 s{sE}, {mb * 16 * 2048}")
            A(f"buffer_load_dwordx2 v[{r}:{r+1}], v{vE+1}, s[{sX}:{sX+3}], s{sE} offen offset:{fb * 32}")
    A("s_waitcnt vmcnt(0)")
    t = vE + 2
    for i in range(0, FBW * 4, 2):
        A(f"v_pk_add_f32 v[{gbr+i}:{gbr+i+1}], v[{gbr+i}:{gbr+i+1}], v[{gb2+i}:{gb2+i+1}]")
        A(f"v_cvt_pk_bf16_f32 v{t}, v{gbr+i}, v{gbr+i+1}")
        A(f"v_lshlrev_b32 v{gbr+i}, 16, v{t}")
        A(f"v_and_b32 v{gbr+i+1}, s{sE+4}, v{t}")
    for fb in range(FBW):
        for mb in range(MBW):
            a_ = acc(0, fb, mb)
            r = xr + (fb * MBW + mb) * 2
            for h in range(2):
                A(f"v_cvt_pk_bf16_f32 v{t}, v{a_+2*h}, v{a_+2*h+1}")
                A(f"v_lshlrev_b32 v{a_+2*h}, 16, v{t}")
                A(f"v_and_b32 v{a_+2*h+1}, s{sE+4}, v{t}")
                A(f"v_pk_mul_f32 v[{a_+2*h}:{a_+2*h+1}], v[{a_+2*h}:{a_+2*h+1}], v[{gbr+4*fb+2*h}:{gbr+4*fb+2*h+1}]")
                A(f"v_cvt_pk_bf16_f32 v{t}, v{a_+2*h}, v{a_+2*h+1}")
                A(f"v_lshlrev_b32 v{a_+2*h}, 16, v{t}")
                A(f"v_and_b32 v{a_+2*h+1}, s{sE+4}, v{t}")
                A(f"v_lshlrev_b32 v{t}, 16, v{r+h}")
                A(f"v_and_b32 v{t+1}, s{sE+4}, v{r+h}")
                A(f"v_add_f32 v{a_+2*h}, v{a_+2*h}, v{t}")
                A(f"v_add_f32 v{a_+2*h+1}, v{a_+2*h+1}, v{t+1}")
                A(f"v_cvt_pk_bf16_f32 v{r+h}, v{a_+2*h}, v{a_+2*h+1}")
            A(f"s_mov_b32 s{sE}, {mb * 16 * 2048}")
            A(f"buffer_store_dwordx2 v[{r}:{r+1}], v{vE+1}, s[{sO}:{sO+3}], s{sE} offen offset:{fb * 32}")


def gen_prefetch(A, name="pf_kernel"):
    A.begin_kernel(name)
    Lend = A.newlabel("Lend")
    A("s_cmp_ge_u32 s2, 256"); A(f"s_cbranch_scc1 {Lend}")
    A(f"s_load_dwordx4 s[32:35], s[0:1], {KA['w1']}")
    A(f"s_load_dwordx2 s[36:37], s[0:1], {KA['w2']}")
    A("s_waitcnt lgkmcnt(0)")
    srd(A, 4, 32, 33, 7340032); srd(A, 8, 34, 35, 7340032); srd(A, 12, 36, 37, 7340032)
    A("s_mul_i32 s16, s2, 28672")
    A("v_lshlrev_b32 v1, 4, v0")
    A("v_add_u32 v1, s16, v1")
    r = 4
    for sr in (4, 8, 12):
        for j in range(7):
            A(f"s_mov_b32 s17, {j * 4096}")
            A(f"buffer_load_dwordx4 v[{r}:{r+3}], v1, s[{sr}:{sr+3}], s17 offen")
            r += 4
    A("s_waitcnt vmcnt(0)")
    A.label(Lend); A("s_endpgm")
    A.end_kernel(name, r, 0, 48, 256, 256, 0)


GEMM1 = dict(name="gemm1_kernel", MT=128, WM=2, WN=2, NSUB=2, NW=224, K=1024, RSG=7168, KS=1, R=4, PD=1, LAG=0,
             fs=2, fbits=1, wptr=[KA['w1'], KA['w3']], act_off=WS_H2, xm_bits=1, qm_bits=3, epilogue=epi_gemm1,
             etemps=16)
GEMM2 = dict(name="gemm2_kernel", MT=128, WM=2, WN=2, NSUB=1, NW=64, K=3584, RSG=2048, KS=2, R=6, PD=2, LAG=1,
             fs=1, fbits=2, wptr=[KA['w2']], act_off=WS_HH, xm_bits=2, qm_bits=2, epilogue=epi_gemm2,
             etemps=40, dma_g0=0, NSET=4)

if __name__ == "__main__":
    import importlib
    A = Asm()
    which = sys.argv[2].split(",") if len(sys.argv) > 2 else ["kv", "conv", "ln", "g1", "g2"]
    try:
        import gen_front
    except ImportError:
        gen_front = None
    opts = {}
    for kv in sys.argv[3:]:
        k_, v_ = kv.split("=")
        opts[k_] = int(v_)
    GEMM1.update(opts); GEMM2.update(opts)
    if gen_front and opts.get("fstamp"): gen_front.STAMP[0] = 1
    if opts.get('rt'):
        RT[0] = 1
        import gen as _g; _g.RT[0] = 1
    for w in which:
        if w == "conv": gen_front.gen_conv(A, prefetch=(opts.get('pf1', 1), opts.get('pf1', 1), opts.get('pf2', 0)))
        if w == "kv": gen_front.gen_kv(A, prefetch=(opts.get('pk1', 0), opts.get('pk1', 0), opts.get('pk2', 0)))
        if w == "fa":
            import gen_a
            gen_a.gen_front_a(A, prefetch=(opts.get('pf1', 1), opts.get('pf1', 1), opts.get('pf2', 0)), nearly=opts.get('nearly', 0), pfm=opts.get('pfm', 1))
        if w == "all":
            import gen2
            gen2.gen_all(A, name=(NAME + "_kernel") if opts.get('single') else "all_kernel", opts=opts)
        if w == "b":
            import gen2
            gen2.gen_b(A, opts=opts)
        if w == "ln": gen_front.gen_ln(A, pf2=opts.get('pl2', 1))
        if w == "g1": gen_gemm(A, GEMM1)
        if w == "g2": gen_gemm(A, GEMM2)
        if w == "pf": gen_prefetch(A)
        if w.startswith("nop"):
            A.begin_kernel(w + "_kernel"); A("s_endpgm"); A.end_kernel(w + "_kernel", 8, 0, 16, 256, 256, 0)
    open(sys.argv[1], "w").write(A.text())
```

```python
import sys, math
from gen import *
import gen
from gen_front import MASK, rnd2, unpack2, wave_sum_multi, stamp, STAMP
from gen_a import nonce_write, nonce_read, publish_flag, poll_flags, POLL_MAX

S_WAVE = 16
S_FLAG, S_MT, S_NONCE, S_NT = 88, 92, 93, 3


def lane_id(A, v):
    A(f"v_mbcnt_lo_u32_b32 v{v}, -1, 0")
    A(f"v_mbcnt_hi_u32_b32 v{v}, -1, v{v}")


class Geo:
    def __init__(s, cfg):
        s.cfg = cfg
        for k in "MT WM WN NSUB NW K RSG KS R PD LAG fs fbits".split(): setattr(s, k, cfg[k])
        s.fm = (1 << s.fbits) - 1
        s.KBT = s.K // 32; s.S = s.KBT; s.T = s.S // s.KS
        s.RS = s.NW * 2; s.CPR = s.RS // 16
        s.WT_BYTES = 32 * s.RS; s.ipt = s.WT_BYTES // 1024
        s.ACT_BYTES = s.MT * 64
        s.SUB_BYTES = s.ACT_BYTES + s.NSUB * s.WT_BYTES
        s.SLOT = s.KS * s.SUB_BYTES
        s.LDS = s.R * s.SLOT
        assert s.LDS <= 163840
        s.MBW = s.MT // 16 // s.WM; s.FBW = s.NW // 16 // s.WN
        s.nA = s.MT // 16 // 4; s.nW = s.NSUB * s.ipt // 4; s.wps = 4 // s.NSUB
        s.NCLS = min(1 << s.fbits, s.FBW)
        for b in range(s.NW // 16):
            for k0 in (0, 8, 16, 24):
                segs = set(((k * s.RS + 32 * (b ^ ((k >> s.fs) & s.fm))) // 32) % 8 for k in range(k0, k0 + 8))
                assert len(segs) == 8
        s.NACC = s.NSUB * s.FBW * s.MBW * 4
        s.t0 = (s.PD - 1) // s.KS
        assert s.t0 <= s.LAG
        s.n_pro = s.t0 + s.R - s.LAG
        s.vWoff = cfg['vWoff']
        s.WMUL = 32 * s.RSG // 1024


def woff_calc(A, G, vLane, vT, s_nt, s0, s1):
    vT0, vT1, vT2, vT3 = vT, vT + 1, vT + 2, vT + 3
    A(f"s_and_b32 s{s0}, s{S_WAVE}, {G.wps - 1}")
    A(f"s_mul_i32 s{s0}, s{s0}, {G.nW * 64}")
    A(f"s_mul_i32 s{s1}, s{s_nt}, {G.RS}")
    magic = (65536 + G.CPR - 1) // G.CPR
    for Q in range(G.ipt * 64):
        assert (Q * magic) >> 16 == Q // G.CPR
    for j in range(G.nW):
        A(f"v_add_u32 v{vT0}, s{s0}, v{vLane}")
        if j: A(f"v_add_u32 v{vT0}, {j * 64}, v{vT0}")
        A(f"v_mul_u32_u24 v{vT1}, {magic}, v{vT0}")
        A(f"v_lshrrev_b32 v{vT1}, 16, v{vT1}")
        A(f"v_mul_u32_u24 v{vT2}, {G.CPR}, v{vT1}")
        A(f"v_sub_u32 v{vT2}, v{vT0}, v{vT2}")
        A(f"v_lshrrev_b32 v{vT3}, {G.fs}, v{vT1}")
        A(f"v_and_b32 v{vT3}, {G.fm}, v{vT3}")
        A(f"v_lshlrev_b32 v{vT3}, 1, v{vT3}")
        A(f"v_xor_b32 v{vT2}, v{vT2}, v{vT3}")
        A(f"v_lshlrev_b32 v{vT2}, 4, v{vT2}")
        A(f"v_mul_u32_u24 v{vT1}, {G.RSG}, v{vT1}")
        A(f"v_add3_u32 v{G.vWoff + j}, v{vT1}, v{vT2}, s{s1}")


def early_weights(A, cfg, s_nt, vT, sb):
    G = Geo(cfg)
    wk = cfg['wptr']
    A(f"s_load_dwordx2 s[{sb+4}:{sb+5}], s[0:1], {wk[0]}")
    A(f"s_load_dwordx2 s[{sb+6}:{sb+7}], s[0:1], {wk[-1]}")
    lane_id(A, vT + 4)
    woff_calc(A, G, vT + 4, vT, s_nt, sb + 8, sb + 9)
    A("s_waitcnt lgkmcnt(0)")
    if G.NSUB == 2:
        A(f"s_cmp_ge_u32 s{S_WAVE}, {G.wps}")
        A(f"s_cselect_b32 s{sb+4}, s{sb+6}, s{sb+4}")
        A(f"s_cselect_b32 s{sb+5}, s{sb+7}, s{sb+5}")
    srd(A, sb, sb + 4, sb + 5, G.K * G.RSG)
    A(f"s_mul_i32 s{sb+8}, s{S_WAVE}, {G.nW * 1024}")
    A(f"s_add_u32 s{sb+8}, s{sb+8}, {G.ACT_BYTES}")
    for st in range(G.n_pro):
        for u in range(G.KS):
            A(f"s_mov_b32 s{sb+9}, {(st * G.KS + u) * 32 * G.RSG}")
            for j in range(G.nW):
                A(f"s_add_u32 m0, s{sb+8}, {(st % G.R) * G.SLOT + u * G.SUB_BYTES + j * 1024}")
                A("s_nop 0")
                A(f"buffer_load_dwordx4 v{G.vWoff + j}, s[{sb}:{sb+3}], s{sb+9} offen lds")


def gemm_body(A, cfg):
    G = Geo(cfg)
    MT, WM, WN, NSUB, NW, K, RSG, KS, R, PD, LAG, fs, fm = [getattr(G, k) for k in "MT WM WN NSUB NW K RSG KS R PD LAG fs fm".split()]
    KBT, S, T, RS, WT_BYTES, ACT_BYTES, SUB_BYTES, SLOT, LDS = [getattr(G, k) for k in "KBT S T RS WT_BYTES ACT_BYTES SUB_BYTES SLOT LDS".split()]
    MBW, FBW, nA, nW, wps, NCLS, NACC, t0, n_pro, vWoff, WMUL = [getattr(G, k) for k in "MBW FBW nA nW wps NCLS NACC t0 n_pro vWoff WMUL".split()]
    def acc(sub, fb, mb): return ((sub * FBW + fb) * MBW + mb) * 4
    vn = [NACC]
    def valloc(n=1):
        r = vn[0]; vn[0] += n
        assert r + n <= vWoff or r >= vWoff + nW, "collides with vWoff"
        return r
    vLane = valloc()
    if vn[0] % 2: valloc()
    vPre = valloc(cfg.get('pre_regs', 0))
    ubase = vn[0]
    vT0 = valloc(); vT1 = valloc(); vT2 = valloc(); vT3 = valloc()
    vAoff = valloc(nA)
    vX0 = valloc(); vW0 = valloc(NCLS)
    vPF = valloc(); vPF2 = valloc()
    vB = [valloc(1 + NCLS), valloc(1 + NCLS)]
    loop_end = vn[0]
    vn[0] = ubase
    vE = valloc(2)
    vE2 = valloc(cfg.get('etemps', 16))
    NSET = cfg.get("NSET", PD + 1)
    SETSZ = (NSUB * FBW + MBW) * 4
    def wfrag(p, sub, fb): return p * SETSZ + (sub * FBW + fb) * 4
    def xfrag(p, mb): return p * SETSZ + (NSUB * FBW + mb) * 4
    NA_ = NSET * SETSZ
    sW, sX, sO = 4, 8, 12
    sWave = S_WAVE
    sKW, sKX, sCnt, sWB, sAB, sRd, sWr, sT0, sT1, sMT, sNT, sWM, sWN, sIss, sTK = range(17, 32)
    sP = 32
    sE = 48
    sRn = 56
    wk = cfg['wptr']
    A(f"s_load_dwordx2 s[{sP}:{sP+1}], s[0:1], {wk[0]}")
    A(f"s_load_dwordx2 s[{sP+2}:{sP+3}], s[0:1], {wk[-1]}")
    A(f"s_load_dwordx2 s[{sP+4}:{sP+5}], s[0:1], {KA['ws']}")
    A(f"s_load_dwordx2 s[{sP+6}:{sP+7}], s[0:1], {KA['out']}")
    lane_id(A, vLane)
    A(f"s_mov_b32 s{sMT}, s{S_MT}")
    A(f"s_mov_b32 s{sNT}, s{S_NT}")
    A(f"s_lshr_b32 s{sWM}, s{sWave}, {int(math.log2(WN))}")
    A(f"s_and_b32 s{sWN}, s{sWave}, {WN - 1}")
    A(f"s_mul_i32 s{sT0}, s{sMT}, {MT // 16}")
    A(f"s_mul_i32 s{sT1}, s{sWave}, {nA}")
    A(f"s_add_u32 s{sT0}, s{sT0}, s{sT1}")
    A(f"s_mul_i32 s{sT0}, s{sT0}, {KBT * 1024}")
    A(f"v_lshlrev_b32 v{vT0}, 4, v{vLane}")
    for j in range(nA):
        A(f"v_add_u32 v{vAoff + j}, s{sT0}, v{vT0}")
        if j: A(f"v_add_u32 v{vAoff + j}, {j * KBT * 1024}, v{vAoff + j}")
    A(f"s_mul_i32 s{sWB}, s{sWave}, {nW * 1024}")
    A(f"s_add_u32 s{sWB}, s{sWB}, {ACT_BYTES}")
    A(f"s_mul_i32 s{sAB}, s{sWave}, {nA * 1024}")
    A(f"s_waitcnt lgkmcnt(0)")
    srd_off(A, sX, sP + 4, sP + 5, cfg['act_off'], 2048 * K * 2)
    sc = " sc1" if cfg.get('act_sc1') else ""
    def dma_a(u, slot_s, cst0, kX_s):
        res = []
        for j in range(nA):
            cst = cst0 + u * SUB_BYTES + j * 1024
            m0 = [f"s_add_u32 m0, s{sAB}, {cst}"] if slot_s is None else [f"s_add_u32 s{sTK}, s{sAB}, s{slot_s}", f"s_add_u32 m0, s{sTK}, {cst}"]
            res.append((m0, f"buffer_load_dwordx4 v{vAoff + j}, s[{sX}:{sX+3}], s{kX_s} offen{sc} lds"))
        return res
    def dma_w(u, slot_s, cst0, kW_s):
        res = []
        for j in range(nW):
            cst = cst0 + u * SUB_BYTES + j * 1024
            m0 = [f"s_add_u32 s{sTK}, s{sWB}, s{slot_s}", f"s_add_u32 m0, s{sTK}, {cst}"]
            res.append((m0, f"buffer_load_dwordx4 v{vWoff + j}, s[{sW}:{sW+3}], s{kW_s} offen lds"))
        return res
    env = dict(locals())
    if cfg.get('hook_poll'): cfg['hook_poll'](A, env)
    ops = []
    for st in range(n_pro):
        for u in range(KS):
            A(f"s_mov_b32 s{sT1}, {(st * KS + u) * 1024}")
            for m0, d in dma_a(u, None, (st % R) * SLOT, sT1):
                for x in m0: A(x)
                A("s_nop 0"); A(d); ops.append(st)
    A(f"s_mov_b32 s{sKX}, {n_pro * KS * 1024}")
    A(f"s_mov_b32 s{sKW}, {n_pro * KS * 32 * RSG}")
    A(f"s_mov_b32 s{sTK}, {((t0 - 1) % R) * SLOT}")
    if NSUB == 2:
        A(f"s_cmp_ge_u32 s{sWave}, {wps}")
        A(f"s_cselect_b32 s{sT0}, s{sP+2}, s{sP}")
        A(f"s_cselect_b32 s{sT1}, s{sP+3}, s{sP+1}")
        srd(A, sW, sT0, sT1, K * RSG)
    else:
        srd(A, sW, sP, sP + 1, K * RSG)
    A(f"s_mul_i32 s{sT0}, s{sWM}, {MBW * 1024}")
    A(f"v_lshl_add_u32 v{vX0}, v{vLane}, 4, s{sT0}")
    A(f"v_lshrrev_b32 v{vT0}, 2, v{vLane}")
    A(f"v_and_b32 v{vT1}, 3, v{vLane}")
    A(f"v_mul_u32_u24 v{vT2}, {RS}, v{vT0}")
    A(f"v_lshl_add_u32 v{vT2}, v{vT1}, 3, v{vT2}")
    A(f"v_add_u32 v{vT2}, {ACT_BYTES}, v{vT2}")
    A(f"v_lshrrev_b32 v{vT3}, {fs}, v{vT0}")
    A(f"v_and_b32 v{vT3}, {fm}, v{vT3}")
    A(f"s_mul_i32 s{sT0}, s{sWN}, {FBW}")
    for c in range(NCLS):
        A(f"s_add_u32 s{sT1}, s{sT0}, {c}")
        A(f"v_xor_b32 v{vT1}, s{sT1}, v{vT3}")
        A(f"v_lshl_add_u32 v{vW0 + c}, v{vT1}, 5, v{vT2}")
    if cfg.get('hook_pre'):
        n = cfg['hook_pre'](A, env)
        ops += [-1] * n
    pfD = cfg.get('pf_D', 0)
    if pfD:
        A(f"s_load_dwordx2 s[80:81], s[0:1], {KA['w2']}")
        A(f"s_and_b32 s{sT0}, s{sWave}, 1"); A(f"s_lshl_b32 s{sT1}, s2, 1"); A(f"s_add_u32 s{sT0}, s{sT0}, s{sT1}")
        A(f"s_lshl_b32 s{sT0}, s{sT0}, 10")
        A(f"v_lshl_add_u32 v{vPF}, v{vLane}, 4, s{sT0}")
        A(f"s_lshl_b32 s{sT1}, s2, 2"); A(f"s_add_u32 s{sT0}, s{sT1}, s{sWave}"); A(f"s_lshl_b32 s{sT0}, s{sT0}, 10")
        A(f"v_lshl_add_u32 v{vPF2}, v{vLane}, 4, s{sT0}")
        A(f"s_mov_b32 s84, {pfD * 32 * RSG}")
        A(f"s_mov_b32 s85, 0")
        A("s_waitcnt lgkmcnt(0)")
        srd(A, 60, 80, 81, 7340032)
    def ds_reads(p, u, vX, vW):
        res = []
        for mb in range(MBW):
            r = xfrag(p, mb)
            res.append(f"ds_read_b128 a[{r}:{r+3}], v{vX} offset:{u * SUB_BYTES + mb * 1024}")
        for sub in range(NSUB):
            for fb in range(FBW):
                cls = fb % NCLS
                r = wfrag(p, sub, fb)
                off = u * SUB_BYTES + sub * WT_BYTES + 32 * (fb - cls)
                assert off + 16 * RS < 65536
                res.append(f"ds_read_b64_tr_b16 a[{r}:{r+1}], v{vW + cls} offset:{off}")
                res.append(f"ds_read_b64_tr_b16 a[{r+2}:{r+3}], v{vW + cls} offset:{off + 16 * RS}")
        return res
    def allowed(stage):
        idx = max(i for i, t in enumerate(ops) if t == stage)
        return len(ops) - 1 - idx
    for i in range(NACC): A(f"v_mov_b32 v{i}, 0")
    A(f"s_waitcnt vmcnt({allowed(t0)})")
    A("s_barrier")
    stamp(A, cfg.get('stamp0', 2))
    for s in range(PD):
        st, u = s // KS, s % KS
        b = vB[st & 1]
        if u == 0:
            A(f"v_add_u32 v{b}, {st * SLOT}, v{vX0}")
            for c in range(NCLS): A(f"v_add_u32 v{b + 1 + c}, {st * SLOT}, v{vW0 + c}")
        for x in ds_reads(s % NSET, u, b, b + 1): A(x)
    A(f"s_mov_b32 s{sRd}, {t0 * SLOT}")
    b = vB[(t0 + 1) & 1]
    A(f"s_mov_b32 s{sRn}, {((t0 + 1) % R) * SLOT}")
    A(f"v_add_u32 v{b}, s{sRn}, v{vX0}")
    for c in range(NCLS): A(f"v_add_u32 v{b + 1 + c}, s{sRn}, v{vW0 + c}")
    UN = math.lcm(2 * KS, NSET)
    assert S % UN == 0, (S, UN)
    nDS = MBW + 2 * NSUB * FBW

    sWA, sWW = sWr, sIss
    NIT = S // UN

    def body(it, emit):
        vms = []
        for s in range(UN):
            sa = it * UN + s
            p = s % NSET
            pr = (s + PD) % NSET
            ph = (s + PD) % KS
            stg = (s + PD) // KS
            stga = (sa + PD) // KS
            b = vB[stg & 1]
            tgt = stga - 1 - LAG + R
            do_dma = tgt < T
            do_rd = (sa + PD) < S
            pre, g0s = [], []
            if ph == 0 and do_rd:
                lg = 0 if LAG == 0 else min(15, nDS * (PD - 1))
                vm = allowed(stga); vms.append(vm)
                assert vm <= 63
                pre.append(f"s_waitcnt vmcnt({vm}) lgkmcnt({lg})")
                pre.append("s_barrier")
                if do_dma:
                    if LAG == 0:
                        g0s += [f"s_add_u32 s{sWA}, s{sRd}, s{sAB}", f"s_add_u32 s{sWW}, s{sRd}, s{sWB}"]
                    else:
                        g0s += [f"s_add_u32 s{sWA}, s{sTK}, s{sAB}", f"s_add_u32 s{sWW}, s{sTK}, s{sWB}", f"s_mov_b32 s{sTK}, s{sRd}"]
                g0s.append(f"s_mov_b32 s{sRd}, s{sRn}")
                g0s += [f"s_add_u32 s{sRn}, s{sRn}, {SLOT}", f"s_cmp_eq_u32 s{sRn}, {R * SLOT}", f"s_cselect_b32 s{sRn}, 0, s{sRn}"]
            else:
                nl = min(15, nDS * (PD - 1)) if (sa + PD - 1) < S else 0
                pre.append(f"s_waitcnt lgkmcnt({nl})")
            vms.append((do_dma, do_rd))
            late = []
            if do_dma:
                late += [f"s_add_u32 s{sKX}, s{sKX}, 1024", f"s_add_u32 s{sKW}, s{sKW}, {32 * RSG}"]
            if ph == KS - 1 and do_rd:
                bn = vB[(stg + 1) & 1]
                late.append(f"v_add_u32 v{bn}, s{sRn}, v{vX0}")
                for c in range(NCLS): late.append(f"v_add_u32 v{bn + 1 + c}, s{sRn}, v{vW0 + c}")
            mf = []
            for sub in range(NSUB):
                for fb in range(FBW):
                    for mb in range(MBW):
                        a_ = acc(sub, fb, mb); w = wfrag(p, sub, fb); x = xfrag(p, mb)
                        mf.append(f"v_mfma_f32_16x16x32_bf16 v[{a_}:{a_+3}], a[{w}:{w+3}], a[{x}:{x+3}], v[{a_}:{a_+3}]")
            M = len(mf)
            ds = ds_reads(pr, ph, b, b + 1) if do_rd else []
            dm = []
            if do_dma:
                for j in range(nA):
                    dm.append(([f"s_add_u32 m0, s{sWA}, {ph * SUB_BYTES + j * 1024}"],
                               f"buffer_load_dwordx4 v{vAoff + j}, s[{sX}:{sX+3}], s{sKX} offen{sc} lds"))
                for j in range(nW):
                    dm.append(([f"s_add_u32 m0, s{sWW}, {ph * SUB_BYTES + j * 1024}"],
                               f"buffer_load_dwordx4 v{vWoff + j}, s[{sW}:{sW+3}], s{sKW} offen lds"))
            if cfg.get('no_ds'): ds = []
            if cfg.get('no_dma'): dm = dm[:1]
            if cfg.get('no_bar'): pre = [x for x in pre if x != "s_barrier"]
            side = {}
            def put(g, ins): side.setdefault(min(g, M - 1), []).extend(ins)
            dsr = cfg.get('ds_rate', 1)
            for i, d in enumerate(ds): put(i // dsr, [d])
            ng = min(cfg.get('ng', 2), M - 1)
            for i, x in enumerate(g0s): put(i * ng // len(g0s), [x])
            g0 = max(ng if g0s else 0, cfg.get('dma_g0', 0))
            pfnow = pfD and s % 2 == 0 and do_dma
            span = max(1, (M - g0 - 2 - (6 if pfD else 0)) // max(1, len(dm)))
            for i, (m0, d) in enumerate(dm):
                g = g0 + i * span
                if g + 1 <= M - 1:
                    put(g, m0); put(g + 1, [d])
                else:
                    put(g, m0 + ["s_nop 0", d])
                ops.append(tgt)
            if pfnow:
                put(M - 5, [f"buffer_load_dwordx4 a[{NA_}:{NA_+3}], v{vPF}, s[{sW}:{sW+3}], s84 offen", f"s_add_u32 s84, s84, {64 * RSG}"])
                put(M - 3, [f"buffer_load_dwordx4 a[{NA_+4}:{NA_+7}], v{vPF2}, s[60:63], s85 offen", f"s_add_u32 s85, s85, {1 << 20}"])
                ops.extend([-1, -1])
            put(M - 1, late)
            if emit:
                for x in pre: A(x)
                for x in interleave(mf, side): A(x)
        return vms

    saved = list(ops)
    seq = [body(it, False) for it in range(NIT)]
    mid = seq[NIT // 2]
    lo = NIT // 2
    while lo > 0 and seq[lo - 1] == mid: lo -= 1
    hi = NIT // 2
    while hi + 1 < NIT and seq[hi + 1] == mid: hi += 1
    ops[:] = saved
    for it in range(lo): body(it, True)
    A(f"s_mov_b32 s{sCnt}, {hi - lo + 1}")
    Lloop = A.newlabel("Lloop")
    A.label(Lloop)
    body(lo, True)
    A(f"s_sub_u32 s{sCnt}, s{sCnt}, 1")
    A(f"s_cmp_lg_u32 s{sCnt}, 0")
    A(f"s_cbranch_scc1 {Lloop}")
    for it in range(lo + 1, hi + 1): body(it, False)
    for it in range(hi + 1, NIT): body(it, True)
    A("s_waitcnt vmcnt(0) lgkmcnt(0)")
    A("s_nop 7")
    A("s_nop 7")
    stamp(A, cfg.get('stamp0', 2) + 1)
    env = dict(locals())
    if cfg.get('hook_post'): cfg['hook_post'](A, env)
    cfg['epilogue'](A, env)
    return NA_ + 8


def epi1(A, g):
    acc, FBW, MBW = g['acc'], g['FBW'], g['MBW']
    sO, sP, sT0, sT1, sMT, sNT, sWM, sWN, vLane, vE, vE2, sE = [g[k] for k in
        "sO sP sT0 sT1 sMT sNT sWM sWN vLane vE vE2 sE".split()]
    faithful = g['cfg'].get('faithful', True)
    sc = " sc1" if g['cfg'].get('out_sc1') else ""
    srd_off(A, sO, sP + 4, sP + 5, WS_HH, 2048 * 3584 * 2)
    A(f"s_mul_i32 s{sT0}, s{sNT}, 14")
    A(f"s_mul_i32 s{sT1}, s{sWN}, 7")
    A(f"s_add_u32 s{sT0}, s{sT0}, s{sT1}")
    A(f"s_lshr_b32 s{sT0}, s{sT0}, 1")
    A(f"s_lshl_b32 s{sT0}, s{sT0}, 10")
    A(f"s_lshl_b32 s{sT1}, s{sMT}, 3")
    A(f"s_lshl_b32 s{sE}, s{sWM}, 2")
    A(f"s_add_u32 s{sT1}, s{sT1}, s{sE}")
    A(f"s_mul_i32 s{sT1}, s{sT1}, {112 * 1024}")
    A(f"s_add_u32 s{sT0}, s{sT0}, s{sT1}")
    A(f"v_lshl_add_u32 v{vE}, v{vLane}, 4, s{sT0}")
    A(f"s_mov_b32 s{sE+2}, 0xbfb8aa3b"); A(f"s_mov_b32 s{sE+3}, 0xbfb8aa3b")

    def compute(blocks):
        for fb, mb, t in blocks:
            G = acc(0, fb, mb); U = acc(1, fb, mb)
            if faithful:
                for h in range(2):
                    A(f"v_cvt_pk_bf16_f32 v{t+h}, v{G+2*h}, v{G+2*h+1}")
                    A(f"v_cvt_pk_bf16_f32 v{t+2+h}, v{U+2*h}, v{U+2*h+1}")
        for fb, mb, t in blocks:
            G = acc(0, fb, mb); U = acc(1, fb, mb)
            if faithful:
                for h in range(2):
                    A(f"v_lshlrev_b32 v{G+2*h}, 16, v{t+h}")
                    A(f"v_and_b32 v{G+2*h+1}, {MASK}, v{t+h}")
                    A(f"v_lshlrev_b32 v{U+2*h}, 16, v{t+2+h}")
                    A(f"v_and_b32 v{U+2*h+1}, {MASK}, v{t+2+h}")
        for fb, mb, t in blocks:
            G = acc(0, fb, mb)
            for h in range(2):
                A(f"v_pk_mul_f32 v[{t+2*h}:{t+2*h+1}], v[{G+2*h}:{G+2*h+1}], s[{sE+2}:{sE+3}]")
        for fb, mb, t in blocks:
            for i in range(4): A(f"v_exp_f32 v{t+i}, v{t+i}")
        for fb, mb, t in blocks:
            for h in range(2):
                A(f"v_pk_add_f32 v[{t+2*h}:{t+2*h+1}], v[{t+2*h}:{t+2*h+1}], 1.0 op_sel_hi:[1,0]")
        for fb, mb, t in blocks:
            for i in range(4): A(f"v_rcp_f32 v{t+i}, v{t+i}")
        for fb, mb, t in blocks:
            G = acc(0, fb, mb)
            for h in range(2):
                A(f"v_pk_mul_f32 v[{t+2*h}:{t+2*h+1}], v[{t+2*h}:{t+2*h+1}], v[{G+2*h}:{G+2*h+1}]")
        if faithful:
            for fb, mb, t in blocks:
                G = acc(0, fb, mb)
                for h in range(2):
                    A(f"v_cvt_pk_bf16_f32 v{G+h}, v{t+2*h}, v{t+2*h+1}")
            for fb, mb, t in blocks:
                G = acc(0, fb, mb)
                for h in range(2):
                    A(f"v_lshlrev_b32 v{t+2*h}, 16, v{G+h}")
                    A(f"v_and_b32 v{t+2*h+1}, {MASK}, v{G+h}")
        for fb, mb, t in blocks:
            U = acc(1, fb, mb)
            for h in range(2):
                A(f"v_pk_mul_f32 v[{t+2*h}:{t+2*h+1}], v[{t+2*h}:{t+2*h+1}], v[{U+2*h}:{U+2*h+1}]")

    def path(par):
        fbs = list(range(FBW))
        groups = []
        i = 0
        while i < FBW:
            if (par + i) % 2 == 0 and i + 1 < FBW:
                groups.append((i, i + 1)); i += 2
            else:
                groups.append((i,)); i += 1
        for grp in groups:
            kb = (par + grp[0]) >> 1
            for mb in range(MBW):
                blocks = [(fb, mb, vE2 + 4 * n + 8 * (mb & 1)) for n, fb in enumerate(grp)]
                compute(blocks)
                D = acc(0, grp[0], mb)
                for n, (fb, _, t) in enumerate(blocks):
                    A(f"v_cvt_pk_bf16_f32 v{D + 2*n}, v{t}, v{t+1}")
                    A(f"v_cvt_pk_bf16_f32 v{D + 2*n + 1}, v{t+2}, v{t+3}")
                A(f"s_mov_b32 s{sE+5}, {mb * 112 * 1024 + kb * 1024}")
                if len(grp) == 2:
                    A(f"buffer_store_dwordx4 v[{D}:{D+3}], v{vE}, s[{sO}:{sO+3}], s{sE+5} offen{sc}")
                else:
                    off = 8 * ((par + grp[0]) & 1)
                    A(f"buffer_store_dwordx2 v[{D}:{D+1}], v{vE}, s[{sO}:{sO+3}], s{sE+5} offen offset:{off}{sc}")
    L1 = A.newlabel("Lodd"); L2 = A.newlabel("Ljoin")
    A(f"s_cmp_lg_u32 s{sWN}, 0"); A(f"s_cbranch_scc1 {L1}")
    path(0)
    A(f"s_branch {L2}")
    A.label(L1)
    path(1)
    A.label(L2)


def pre2(A, g):
    FBW, MBW, MT, NW = g['FBW'], g['MBW'], g['MT'], g['NW']
    sP, sT0, sT1, sMT, sNT, sWM, sWN, vLane, sE, vPre, vT0, vT1 = [g[k] for k in
        "sP sT0 sT1 sMT sNT sWM sWN vLane sE vPre vT0 vT1".split()]
    srd_off(A, 60, sP + 4, sP + 5, WS_X1, 2048 * 1024 * 2)
    srd_off(A, 64, sP + 4, sP + 5, WS_MOD, 2 * 6144 * 4)
    A(f"s_mul_i32 s{sT0}, s{sNT}, {NW}")
    A(f"s_mul_i32 s{sE}, s{sWN}, {FBW * 16}")
    A(f"s_add_u32 s{sT0}, s{sT0}, s{sE}")
    A(f"s_mul_i32 s{sT1}, s{sMT}, {MT}")
    A(f"s_mul_i32 s{sE}, s{sWM}, {MBW * 16}")
    A(f"s_add_u32 s{sT1}, s{sT1}, s{sE}")
    vo = vPre
    A(f"v_lshrrev_b32 v{vT0}, 4, v{vLane}")
    A(f"v_lshlrev_b32 v{vT0}, 2, v{vT0}")
    A(f"v_add_u32 v{vT0}, s{sT0}, v{vT0}")
    A(f"v_and_b32 v{vo}, 15, v{vLane}")
    A(f"v_add_u32 v{vo}, s{sT1}, v{vo}")
    A(f"v_lshlrev_b32 v{vo}, 11, v{vo}")
    A(f"v_lshl_add_u32 v{vo}, v{vT0}, 1, v{vo}")
    A(f"v_lshlrev_b32 v{vT0}, 2, v{vT0}")
    A(f"v_add_u32 v{vT0}, {5 * 4096}, v{vT0}")
    gbr = vPre + 2; gb2 = gbr + FBW * 4; xr = gb2 + FBW * 4
    A(f"s_mov_b32 s{sE}, 24576")
    for fb in range(FBW):
        A(f"buffer_load_dwordx4 v[{gbr+4*fb}:{gbr+4*fb+3}], v{vT0}, s[64:67], 0 offen offset:{fb * 64}")
        A(f"buffer_load_dwordx4 v[{gb2+4*fb}:{gb2+4*fb+3}], v{vT0}, s[64:67], s{sE} offen offset:{fb * 64}")
    for fb in range(FBW):
        for mb in range(MBW):
            r = xr + (fb * MBW + mb) * 2
            A(f"s_mov_b32 s{sE}, {mb * 16 * 2048}")
            A(f"buffer_load_dwordx2 v[{r}:{r+1}], v{vo}, s[60:63], s{sE} offen offset:{fb * 32} sc1")
    return 2 * FBW + FBW * MBW


def epi2(A, g):
    acc, FBW, MBW = g['acc'], g['FBW'], g['MBW']
    sO, sP, sE, vE, vPre = [g[k] for k in "sO sP sE vE2 vPre".split()]
    srd(A, sO, sP + 6, sP + 7, 2048 * 1024 * 2)
    vo = vPre
    gbr = vPre + 2; gb2 = gbr + FBW * 4; xr = gb2 + FBW * 4
    t = vE
    for i in range(0, FBW * 4, 2):
        A(f"v_pk_add_f32 v[{gbr+i}:{gbr+i+1}], v[{gbr+i}:{gbr+i+1}], v[{gb2+i}:{gb2+i+1}]")
        rnd2(A, gbr + i, gbr + i + 1, t)
    for fb in range(FBW):
        for mb in range(MBW):
            a_ = acc(0, fb, mb)
            r = xr + (fb * MBW + mb) * 2
            for h in range(2):
                tt = t + 4 * h
                rnd2(A, a_ + 2*h, a_ + 2*h + 1, tt)
                A(f"v_pk_mul_f32 v[{a_+2*h}:{a_+2*h+1}], v[{a_+2*h}:{a_+2*h+1}], v[{gbr+4*fb+2*h}:{gbr+4*fb+2*h+1}]")
                rnd2(A, a_ + 2*h, a_ + 2*h + 1, tt)
                unpack2(A, tt + 2, r + h)
                A(f"v_pk_add_f32 v[{a_+2*h}:{a_+2*h+1}], v[{a_+2*h}:{a_+2*h+1}], v[{tt+2}:{tt+3}]")
                A(f"v_cvt_pk_bf16_f32 v{r+h}, v{a_+2*h}, v{a_+2*h+1}")
            A(f"s_mov_b32 s{sE}, {mb * 16 * 2048}")
            A(f"buffer_store_dwordx2 v[{r}:{r+1}], v{vo}, s[{sO}:{sO+3}], s{sE} offen offset:{fb * 32}")


def ln_part(A, LBUF, pfw):
    A(f"s_load_dwordx2 s[32:33], s[0:1], {KA['q']}")
    A(f"s_load_dwordx2 s[34:35], s[0:1], {KA['ws']}")
    A(f"s_load_dwordx4 s[36:39], s[0:1], {KA['w1']}")
    A("v_and_b32 v2, 63, v0")
    A("s_waitcnt lgkmcnt(0)")
    srd(A, 4, 32, 33, 4 << 20)
    srd_off(A, 8, 34, 35, WS_YP, 4 << 20)
    srd_off(A, 12, 34, 35, WS_MOD, 2 * 6144 * 4)
    srd_off(A, 20, 34, 35, WS_X1, 4 << 20)
    srd_off(A, 24, 34, 35, WS_H2, 4 << 20)
    A(f"s_lshl_b32 s17, s{S_MT}, 4"); A(f"s_add_u32 s17, s17, s{S_NT}")
    A("s_lshl_b32 s19, s17, 3"); A("s_lshl_b32 s18, s16, 1"); A("s_add_u32 s19, s19, s18")
    A("s_lshl_b32 s19, s19, 11")
    A("v_lshlrev_b32 v3, 4, v2")
    A("v_add_u32 v4, s19, v3")
    XP, YP = 8, 24
    for r in range(2):
        for h in range(2):
            A(f"buffer_load_dwordx4 v[{XP + r*8 + h*4}:{XP + r*8 + h*4 + 3}], v4, s[4:7], 0 offen offset:{r * 2048 + h * 1024}")
    for r in range(2):
        for h in range(2):
            A(f"buffer_load_dwordx4 v[{YP + r*8 + h*4}:{YP + r*8 + h*4 + 3}], v4, s[8:11], 0 offen offset:{r * 2048 + h * 1024}")
    MV = 40
    A("v_lshlrev_b32 v5, 5, v2")
    for part in range(2):
        for vec in range(5):
            A(f"s_mov_b32 s18, {vec * 4096 + part * 24576}")
            for h in range(2):
                for q in range(2):
                    r = (MV if part == 0 else 120) + vec * 16 + h * 8 + q * 4
                    A(f"buffer_load_dwordx4 v[{r}:{r+3}], v5, s[12:15], s18 offen offset:{h * 2048 + q * 16}")
    A("v_mov_b32 v6, 0")
    A("buffer_load_dword v223, v6, s[72:75], 0 offen sc1")
    npf = 0
    if pfw:
        A(f"s_mul_i32 s18, s2, {pfw * 4096}")
        A("v_lshlrev_b32 v6, 4, v0"); A("v_add_u32 v6, s18, v6")
        for bi in range(2):
            srd(A, 28, 36 + 2 * bi, 37 + 2 * bi, 7340032)
            for j in range(pfw):
                A(f"s_mov_b32 s18, {j * 4096}")
                A(f"buffer_load_dwordx4 a[{4 * npf}:{4 * npf + 3}], v6, s[28:31], s18 offen")
                npf += 1
    A(f"s_waitcnt vmcnt({npf + 1})")
    for i in range(0, 80, 2):
        A(f"v_pk_add_f32 v[{MV+i}:{MV+i+1}], v[{MV+i}:{MV+i+1}], v[{120+i}:{121+i}]")
        rnd2(A, MV + i, MV + i + 1, 200 + (i >> 1 & 3))
    X, D, T, ST = 120, 152, 184, 200
    for r in range(2):
        for i in range(8):
            unpack2(A, X + r * 16 + 2 * i, XP + r * 8 + i)

    def layernorm(src, dst):
        for r in range(2):
            A(f"v_pk_add_f32 v[{T + 2*r}:{T + 2*r + 1}], v[{src + r*16}:{src + r*16 + 1}], v[{src + r*16 + 2}:{src + r*16 + 3}]")
        for i in range(2, 8):
            for r in range(2):
                A(f"v_pk_add_f32 v[{T + 2*r}:{T + 2*r + 1}], v[{T + 2*r}:{T + 2*r + 1}], v[{src + r*16 + 2*i}:{src + r*16 + 2*i + 1}]")
        for r in range(2):
            A(f"v_add_f32 v{T + 2*r}, v{T + 2*r}, v{T + 2*r + 1}")
        wave_sum_multi(A, [T, T + 2], 44)
        A("s_nop 1")
        for r in range(2):
            A(f"v_mov_b32 v{ST + 2*r}, s{44 + r}")
            A(f"v_mul_f32 v{ST + 2*r}, 0x3a800000, v{ST + 2*r}")
        for r in range(2):
            for i in range(8):
                A(f"v_pk_add_f32 v[{dst + r*16 + 2*i}:{dst + r*16 + 2*i + 1}], v[{src + r*16 + 2*i}:{src + r*16 + 2*i + 1}], v[{ST + 2*r}:{ST + 2*r + 1}] op_sel_hi:[1,0] neg_lo:[0,1] neg_hi:[0,1]")
        for r in range(2):
            A(f"v_pk_mul_f32 v[{T + 2*r}:{T + 2*r + 1}], v[{dst + r*16}:{dst + r*16 + 1}], v[{dst + r*16}:{dst + r*16 + 1}]")
        for i in range(1, 8):
            for r in range(2):
                A(f"v_pk_fma_f32 v[{T + 2*r}:{T + 2*r + 1}], v[{dst + r*16 + 2*i}:{dst + r*16 + 2*i + 1}], v[{dst + r*16 + 2*i}:{dst + r*16 + 2*i + 1}], v[{T + 2*r}:{T + 2*r + 1}]")
        for r in range(2):
            A(f"v_add_f32 v{T + 2*r}, v{T + 2*r}, v{T + 2*r + 1}")
        wave_sum_multi(A, [T, T + 2], 44)
        A("s_nop 1")
        for r in range(2):
            A(f"v_mov_b32 v{ST + 4 + r}, s{44 + r}")
            A(f"v_mul_f32 v{ST + 4 + r}, 0x3a800000, v{ST + 4 + r}")
        rnd2(A, ST + 4, ST + 5, T)
        rnd2(A, ST, ST + 2, T)
        A(f"v_add_f32 v{ST + 4}, 0x3727c5ac, v{ST + 4}")
        A(f"v_add_f32 v{ST + 5}, 0x3727c5ac, v{ST + 5}")
        rnd2(A, ST + 4, ST + 5, T)
        A(f"v_sqrt_f32 v{ST + 4}, v{ST + 4}")
        A(f"v_sqrt_f32 v{ST + 5}, v{ST + 5}")
        A("s_nop 0")
        rnd2(A, ST + 4, ST + 5, T)
        A(f"v_rcp_f32 v{ST + 6}, v{ST + 4}")
        A(f"v_rcp_f32 v{ST + 8}, v{ST + 5}")
        A("s_nop 0")
        for r in range(2):
            for i in range(8):
                d = dst + r * 16 + 2 * i
                s_ = src + r * 16 + 2 * i
                A(f"v_pk_add_f32 v[{d}:{d+1}], v[{s_}:{s_+1}], v[{ST + 2*r}:{ST + 2*r + 1}] op_sel_hi:[1,0] neg_lo:[0,1] neg_hi:[0,1]")
                rnd2(A, d, d + 1, T + (i & 3))
                A(f"v_pk_mul_f32 v[{d}:{d+1}], v[{d}:{d+1}], v[{ST + 6 + 2*r}:{ST + 7 + 2*r}] op_sel_hi:[1,0]")
                rnd2(A, d, d + 1, T + 4 + (i & 3))

    layernorm(X, D)
    SA, CA, GA, SB, CB = [MV + 16 * i for i in range(5)]
    for base in (CA, CB):
        for i in range(8):
            r = base + 2 * i
            A(f"v_pk_add_f32 v[{r}:{r+1}], v[{r}:{r+1}], 1.0 op_sel_hi:[1,0]")
            rnd2(A, r, r + 1, T + (i & 3))
    for r in range(2):
        for i in range(8):
            d = D + r * 16 + 2 * i
            x = X + r * 16 + 2 * i
            t = T + (i & 3)
            u = T + 8 + 2 * (i & 3)
            A(f"v_pk_mul_f32 v[{d}:{d+1}], v[{d}:{d+1}], v[{CA + 2*i}:{CA + 2*i + 1}]")
            rnd2(A, d, d + 1, t)
            A(f"v_pk_add_f32 v[{d}:{d+1}], v[{d}:{d+1}], v[{SA + 2*i}:{SA + 2*i + 1}]")
            rnd2(A, d, d + 1, t)
            unpack2(A, u, YP + r * 8 + i)
            A(f"v_pk_mul_f32 v[{d}:{d+1}], v[{d}:{d+1}], v[{u}:{u+1}]")
            rnd2(A, d, d + 1, t)
            A(f"v_pk_mul_f32 v[{d}:{d+1}], v[{d}:{d+1}], v[{GA + 2*i}:{GA + 2*i + 1}]")
            rnd2(A, d, d + 1, t)
            A(f"v_pk_add_f32 v[{x}:{x+1}], v[{x}:{x+1}], v[{d}:{d+1}]")
            A(f"v_cvt_pk_bf16_f32 v{XP + r*8 + i}, v{x}, v{x+1}")
            unpack2(A, x, XP + r * 8 + i)
    for r in range(2):
        for h in range(2):
            A(f"buffer_store_dwordx4 v[{XP + r*8 + h*4}:{XP + r*8 + h*4 + 3}], v4, s[20:23], 0 offen offset:{r * 2048 + h * 1024} sc1")
    if LNST[0]: stamp(A, 4)
    layernorm(X, D)
    for r in range(2):
        for i in range(8):
            d = D + r * 16 + 2 * i
            t = T + (i & 3)
            A(f"v_pk_mul_f32 v[{d}:{d+1}], v[{d}:{d+1}], v[{CB + 2*i}:{CB + 2*i + 1}]")
            rnd2(A, d, d + 1, t)
            A(f"v_pk_add_f32 v[{d}:{d+1}], v[{d}:{d+1}], v[{SB + 2*i}:{SB + 2*i + 1}]")
            A(f"v_cvt_pk_bf16_f32 v{YP + r*8 + i}, v{d}, v{d+1}")
    A("v_lshrrev_b32 v5, 2, v2")
    A("v_lshlrev_b32 v5, 9, v5")
    A("v_and_b32 v6, 1, v2"); A("v_lshl_add_u32 v5, v6, 8, v5")
    A("v_bfe_u32 v6, v2, 1, 1"); A("v_lshl_add_u32 v5, v6, 3, v5")
    A("s_lshl_b32 s18, s16, 5"); A(f"s_add_u32 s18, s18, {LBUF}")
    A("v_add_u32 v5, s18, v5")
    for r in range(2):
        for h in range(2):
            for e in range(2):
                src = YP + r * 8 + h * 4 + e * 2
                A(f"ds_write_b64 v5, v[{src}:{src+1}] offset:{h * 8192 + e * 128 + r * 16}")
    A("s_waitcnt lgkmcnt(0)")
    A("s_barrier")
    A("v_lshrrev_b32 v5, 5, v0")
    A(f"v_lshlrev_b32 v6, 4, v0"); A(f"v_add_u32 v6, {LBUF}, v6")
    A("v_lshlrev_b32 v7, 10, v5")
    A("v_bfe_u32 v5, v0, 3, 2"); A("v_lshl_add_u32 v7, v5, 8, v7")
    A("v_and_b32 v5, 7, v0"); A("v_lshl_add_u32 v7, v5, 4, v7")
    A("s_lshr_b32 s18, s17, 1"); A("s_lshl_b32 s18, s18, 15")
    A("s_and_b32 s19, s17, 1"); A("s_lshl_b32 s19, s19, 7"); A("s_add_u32 s18, s18, s19")
    A("v_add_u32 v7, s18, v7")
    for j in range(4):
        A(f"ds_read_b128 v[{40 + 4*j}:{43 + 4*j}], v6 offset:{j * 4096}")
    for j in range(4):
        A(f"s_waitcnt lgkmcnt({3 - j})")
        A(f"s_mov_b32 s19, {j * 8192}")
        A(f"buffer_store_dwordx4 v[{40 + 4*j}:{43 + 4*j}], v7, s[24:27], s19 offen sc1")


LNST = [0]
XE = 224


def ln_rowoff(A, vdst, vlane):
    A(f"s_lshl_b32 s17, s{S_MT}, 4"); A(f"s_add_u32 s17, s17, s{S_NT}")
    A("s_lshl_b32 s19, s17, 3"); A("s_lshl_b32 s18, s16, 1"); A("s_add_u32 s19, s19, s18")
    A("s_lshl_b32 s19, s19, 11")
    A(f"v_lshlrev_b32 v{vdst}, 4, v{vlane}")
    A(f"v_add_u32 v{vdst}, s19, v{vdst}")


def ln_xload(A):
    A(f"s_load_dwordx2 s[80:81], s[0:1], {KA['q']}")
    A(f"s_lshl_b32 s82, s{S_MT}, 4"); A(f"s_add_u32 s82, s82, s{S_NT}")
    A("s_lshl_b32 s82, s82, 3"); A("s_lshl_b32 s83, s16, 1"); A("s_add_u32 s82, s82, s83")
    A("s_lshl_b32 s82, s82, 11")
    A("v_lshlrev_b32 v240, 4, v2"); A("v_add_u32 v240, s82, v240")
    A("s_waitcnt lgkmcnt(0)")
    A("s_and_b32 s81, s81, 0xffff"); A(f"s_mov_b32 s82, {4 << 20}"); A("s_mov_b32 s83, 0x00020000")
    for r in range(2):
        for h in range(2):
            A(f"buffer_load_dwordx4 v[{XE + r*8 + h*4}:{XE + r*8 + h*4 + 3}], v240, s[80:83], 0 offen offset:{r * 2048 + h * 1024}")


MBO = [0, 4096, 36864, 40960, 73728]


def ln_split(A, LBUF, MBUF, pfw, poll_hook, mid_hook=None):
    A(f"s_load_dwordx2 s[34:35], s[0:1], {KA['ws']}")
    A(f"s_load_dwordx4 s[36:39], s[0:1], {KA['w1']}")
    A("s_waitcnt lgkmcnt(0)")
    srd_off(A, 8, 34, 35, WS_YP, 4 << 20)
    srd_off(A, 12, 34, 35, WS_MOD, 2 * 6144 * 4)
    srd_off(A, 20, 34, 35, WS_X1, 4 << 20)
    srd_off(A, 24, 34, 35, WS_H2, 4 << 20)
    ln_rowoff(A, 4, 2)
    XP, YP = 8, 24
    MV = 40
    X, D, T, ST = 120, 152, 184, 200
    for r in range(2):
        for i in range(8):
            unpack2(A, X + r * 16 + 2 * i, XE + r * 8 + i)

    def layernorm(src, dst):
        for r in range(2):
            A(f"v_pk_add_f32 v[{T + 2*r}:{T + 2*r + 1}], v[{src + r*16}:{src + r*16 + 1}], v[{src + r*16 + 2}:{src + r*16 + 3}]")
        for i in range(2, 8):
            for r in range(2):
                A(f"v_pk_add_f32 v[{T + 2*r}:{T + 2*r + 1}], v[{T + 2*r}:{T + 2*r + 1}], v[{src + r*16 + 2*i}:{src + r*16 + 2*i + 1}]")
        for r in range(2):
            A(f"v_add_f32 v{T + 2*r}, v{T + 2*r}, v{T + 2*r + 1}")
        wave_sum_multi(A, [T, T + 2], 44)
        A("s_nop 1")
        for r in range(2):
            A(f"v_mov_b32 v{ST + 2*r}, s{44 + r}")
            A(f"v_mul_f32 v{ST + 2*r}, 0x3a800000, v{ST + 2*r}")
        for r in range(2):
            for i in range(8):
                A(f"v_pk_add_f32 v[{dst + r*16 + 2*i}:{dst + r*16 + 2*i + 1}], v[{src + r*16 + 2*i}:{src + r*16 + 2*i + 1}], v[{ST + 2*r}:{ST + 2*r + 1}] op_sel_hi:[1,0] neg_lo:[0,1] neg_hi:[0,1]")
        for r in range(2):
            A(f"v_pk_mul_f32 v[{T + 2*r}:{T + 2*r + 1}], v[{dst + r*16}:{dst + r*16 + 1}], v[{dst + r*16}:{dst + r*16 + 1}]")
        for i in range(1, 8):
            for r in range(2):
                A(f"v_pk_fma_f32 v[{T + 2*r}:{T + 2*r + 1}], v[{dst + r*16 + 2*i}:{dst + r*16 + 2*i + 1}], v[{dst + r*16 + 2*i}:{dst + r*16 + 2*i + 1}], v[{T + 2*r}:{T + 2*r + 1}]")
        for r in range(2):
            A(f"v_add_f32 v{T + 2*r}, v{T + 2*r}, v{T + 2*r + 1}")
        wave_sum_multi(A, [T, T + 2], 44)
        A("s_nop 1")
        for r in range(2):
            A(f"v_mov_b32 v{ST + 4 + r}, s{44 + r}")
            A(f"v_mul_f32 v{ST + 4 + r}, 0x3a800000, v{ST + 4 + r}")
        rnd2(A, ST + 4, ST + 5, T)
        rnd2(A, ST, ST + 2, T)
        A(f"v_add_f32 v{ST + 4}, 0x3727c5ac, v{ST + 4}")
        A(f"v_add_f32 v{ST + 5}, 0x3727c5ac, v{ST + 5}")
        rnd2(A, ST + 4, ST + 5, T)
        A(f"v_sqrt_f32 v{ST + 4}, v{ST + 4}")
        A(f"v_sqrt_f32 v{ST + 5}, v{ST + 5}")
        A("s_nop 0")
        rnd2(A, ST + 4, ST + 5, T)
        A(f"v_rcp_f32 v{ST + 6}, v{ST + 4}")
        A(f"v_rcp_f32 v{ST + 8}, v{ST + 5}")
        A("s_nop 0")
        for r in range(2):
            for i in range(8):
                d = dst + r * 16 + 2 * i
                s_ = src + r * 16 + 2 * i
                A(f"v_pk_add_f32 v[{d}:{d+1}], v[{s_}:{s_+1}], v[{ST + 2*r}:{ST + 2*r + 1}] op_sel_hi:[1,0] neg_lo:[0,1] neg_hi:[0,1]")
                rnd2(A, d, d + 1, T + (i & 3))
                A(f"v_pk_mul_f32 v[{d}:{d+1}], v[{d}:{d+1}], v[{ST + 6 + 2*r}:{ST + 7 + 2*r}] op_sel_hi:[1,0]")
                rnd2(A, d, d + 1, T + 4 + (i & 3))

    layernorm(X, D)
    poll_hook(A)
    A("v_lshlrev_b32 v5, 14, v0"); A("s_lshl_b32 s18, s17, 4"); A("v_add_u32 v5, s18, v5")
    for c in range(4):
        A(f"s_mov_b32 s18, {c * 4096}")
        A(f"buffer_load_dwordx4 v[{84 + 4*c}:{87 + 4*c}], v5, s[8:11], s18 offen sc1")
    A("v_lshlrev_b32 v5, 4, v0")
    for j in range(5):
        A(f"s_mov_b32 s18, {j * 4096}"); A(f"s_mov_b32 s19, {j * 4096 + 24576}")
        A(f"buffer_load_dwordx4 v[{40 + 4*j}:{43 + 4*j}], v5, s[12:15], s18 offen sc1")
        A(f"buffer_load_dwordx4 v[{60 + 4*j}:{63 + 4*j}], v5, s[12:15], s19 offen sc1")
    npf = 0
    if pfw:
        A(f"s_mul_i32 s18, s2, {pfw * 4096}")
        A("v_lshlrev_b32 v6, 4, v0"); A("v_add_u32 v6, s18, v6")
        for bi in range(2):
            srd(A, 28, 36 + 2 * bi, 37 + 2 * bi, 7340032)
            for j in range(pfw):
                A(f"s_mov_b32 s18, {j * 4096}")
                A(f"buffer_load_dwordx4 a[{4 * npf}:{4 * npf + 3}], v6, s[28:31], s18 offen")
                npf += 1
    A(f"s_waitcnt vmcnt({npf})")
    if LNST[0]: stamp(A, 3)
    if mid_hook: mid_hook(A)
    A(f"v_add_u32 v6, 65536, v5")
    for j in range(5):
        for h in range(2):
            r = 40 + 4 * j + 2 * h
            A(f"v_pk_add_f32 v[{r}:{r+1}], v[{r}:{r+1}], v[{r+20}:{r+21}]")
            rnd2(A, r, r + 1, 80 + h)
            if j in (1, 4):
                A(f"v_pk_add_f32 v[{r}:{r+1}], v[{r}:{r+1}], 1.0 op_sel_hi:[1,0]")
                rnd2(A, r, r + 1, 80 + h)
        A(f"ds_write_b128 v{5 if MBO[j] < 65536 else 6}, v[{40 + 4*j}:{43 + 4*j}] offset:{MBO[j] & 0xffff}")
    YB = LBUF
    A("s_mov_b32 s18, 0x05040100"); A("s_mov_b32 s19, 0x07060302")
    A(f"v_lshlrev_b32 v6, 3, v0"); A(f"v_add_u32 v6, {YB}, v6")
    for rr in range(8):
        sel = "s18" if rr % 2 == 0 else "s19"
        dw = rr >> 1
        o = 100 + 2 * (rr & 3)
        A(f"v_perm_b32 v{o}, v{88 + dw}, v{84 + dw}, {sel}")
        A(f"v_perm_b32 v{o + 1}, v{96 + dw}, v{92 + dw}, {sel}")
        A(f"ds_write_b64 v6, v[{o}:{o+1}] offset:{rr * 2048}")
    A("s_waitcnt lgkmcnt(0)")
    A("s_barrier")
    A(f"s_mul_i32 s18, s16, {2 * 2048}"); A(f"s_add_u32 s18, s18, {YB}")
    A("v_lshlrev_b32 v6, 4, v2"); A("v_add_u32 v6, s18, v6")
    for r in range(2):
        for h in range(2):
            A(f"ds_read_b128 v[{YP + r*8 + h*4}:{YP + r*8 + h*4 + 3}], v6 offset:{r * 2048 + h * 1024}")
    A(f"v_lshlrev_b32 v5, 5, v2"); A(f"v_add_u32 v6, 65536, v5")
    for vec in range(5):
        for h in range(2):
            for q in range(2):
                r = MV + vec * 16 + h * 8 + q * 4
                A(f"ds_read_b128 v[{r}:{r+3}], v{5 if MBO[vec] < 65536 else 6} offset:{(MBO[vec] & 0xffff) + h * 2048 + q * 16}")
    A("s_waitcnt lgkmcnt(0)")
    A("s_barrier")
    SA, CA, GA, SB, CB = [MV + 16 * i for i in range(5)]
    for r in range(2):
        for i in range(8):
            d = D + r * 16 + 2 * i
            x = X + r * 16 + 2 * i
            t = T + (i & 3)
            u = T + 8 + 2 * (i & 3)
            A(f"v_pk_mul_f32 v[{d}:{d+1}], v[{d}:{d+1}], v[{CA + 2*i}:{CA + 2*i + 1}]")
            rnd2(A, d, d + 1, t)
            A(f"v_pk_add_f32 v[{d}:{d+1}], v[{d}:{d+1}], v[{SA + 2*i}:{SA + 2*i + 1}]")
            rnd2(A, d, d + 1, t)
            unpack2(A, u, YP + r * 8 + i)
            A(f"v_pk_mul_f32 v[{d}:{d+1}], v[{d}:{d+1}], v[{u}:{u+1}]")
            rnd2(A, d, d + 1, t)
            A(f"v_pk_mul_f32 v[{d}:{d+1}], v[{d}:{d+1}], v[{GA + 2*i}:{GA + 2*i + 1}]")
            rnd2(A, d, d + 1, t)
            A(f"v_pk_add_f32 v[{x}:{x+1}], v[{x}:{x+1}], v[{d}:{d+1}]")
            A(f"v_cvt_pk_bf16_f32 v{XP + r*8 + i}, v{x}, v{x+1}")
            unpack2(A, x, XP + r * 8 + i)
    for r in range(2):
        for h in range(2):
            A(f"buffer_store_dwordx4 v[{XP + r*8 + h*4}:{XP + r*8 + h*4 + 3}], v4, s[20:23], 0 offen offset:{r * 2048 + h * 1024} sc1")
    if LNST[0]: stamp(A, 4)
    layernorm(X, D)
    for r in range(2):
        for i in range(8):
            d = D + r * 16 + 2 * i
            t = T + (i & 3)
            A(f"v_pk_mul_f32 v[{d}:{d+1}], v[{d}:{d+1}], v[{CB + 2*i}:{CB + 2*i + 1}]")
            rnd2(A, d, d + 1, t)
            A(f"v_pk_add_f32 v[{d}:{d+1}], v[{d}:{d+1}], v[{SB + 2*i}:{SB + 2*i + 1}]")
            A(f"v_cvt_pk_bf16_f32 v{YP + r*8 + i}, v{d}, v{d+1}")
    A("v_lshrrev_b32 v5, 2, v2")
    A("v_lshlrev_b32 v5, 9, v5")
    A("v_and_b32 v6, 1, v2"); A("v_lshl_add_u32 v5, v6, 8, v5")
    A("v_bfe_u32 v6, v2, 1, 1"); A("v_lshl_add_u32 v5, v6, 3, v5")
    A("s_lshl_b32 s18, s16, 5"); A(f"s_add_u32 s18, s18, {LBUF}")
    A("v_add_u32 v5, s18, v5")
    for r in range(2):
        for h in range(2):
            for e in range(2):
                src = YP + r * 8 + h * 4 + e * 2
                A(f"ds_write_b64 v5, v[{src}:{src+1}] offset:{h * 8192 + e * 128 + r * 16}")
    A("s_waitcnt lgkmcnt(0)")
    A("s_barrier")
    A("v_lshrrev_b32 v5, 5, v0")
    A(f"v_lshlrev_b32 v6, 4, v0"); A(f"v_add_u32 v6, {LBUF}, v6")
    A("v_lshlrev_b32 v7, 10, v5")
    A("v_bfe_u32 v5, v0, 3, 2"); A("v_lshl_add_u32 v7, v5, 8, v7")
    A("v_and_b32 v5, 7, v0"); A("v_lshl_add_u32 v7, v5, 4, v7")
    A("s_lshr_b32 s18, s17, 1"); A("s_lshl_b32 s18, s18, 15")
    A("s_and_b32 s19, s17, 1"); A("s_lshl_b32 s19, s19, 7"); A("s_add_u32 s18, s18, s19")
    A("v_add_u32 v7, s18, v7")
    for j in range(4):
        A(f"ds_read_b128 v[{40 + 4*j}:{43 + 4*j}], v6 offset:{j * 4096}")
    for j in range(4):
        A(f"s_waitcnt lgkmcnt({3 - j})")
        A(f"s_mov_b32 s19, {j * 8192}")
        A(f"buffer_store_dwordx4 v[{40 + 4*j}:{43 + 4*j}], v7, s[24:27], s19 offen sc1")


def mk_poll(phase):
    def hook(A, g):
        vT0, vT1, vLane = g['vT0'], g['vT1'], g['vLane']
        A(f"v_and_b32 v{vT0}, 15, v{vLane}")
        A(f"s_lshl_b32 s58, s{S_MT}, 4")
        A(f"v_add_u32 v{vT0}, s58, v{vT0}"); A(f"v_lshlrev_b32 v{vT0}, 7, v{vT0}")
        poll_flags(A, S_FLAG, S_NONCE, vT0, phase, vT1, 59)
    return hook


def publish_rgi(A, val, vt):
    L = A.newlabel("Lpub")
    A("s_waitcnt vmcnt(0)")
    A("s_barrier")
    A(f"s_cmp_lg_u32 s{S_WAVE}, 0"); A(f"s_cbranch_scc1 {L}")
    A(f"s_lshl_b32 s76, s{S_MT}, 4"); A(f"s_add_u32 s76, s76, s{S_NT}")
    A(f"s_lshl_b32 s76, s76, 7"); A(f"s_add_u32 s77, s{S_NONCE}, {val}")
    A(f"v_mov_b32 v{vt}, s76"); A(f"v_mov_b32 v{vt+1}, s77")
    A("s_mov_b64 exec, 1")
    A(f"buffer_store_dword v{vt+1}, v{vt}, s[{S_FLAG}:{S_FLAG+3}], 0 offen sc1")
    A("s_mov_b64 exec, -1")
    A.label(L)


G1 = dict(MT=128, WM=2, WN=2, NSUB=2, NW=224, K=1024, RSG=7168, KS=1, R=4, PD=1, LAG=0,
          fs=2, fbits=1, wptr=[KA['w1'], KA['w3']], act_off=WS_H2, epilogue=epi1, etemps=16,
          hook_poll=mk_poll(1), act_sc1=1, out_sc1=1, stamp0=2, vWoff=248, pf_D=8)
G2 = dict(MT=128, WM=2, WN=2, NSUB=1, NW=64, K=3584, RSG=2048, KS=2, R=6, PD=2, LAG=1,
          fs=1, fbits=2, wptr=[KA['w2']], act_off=WS_HH, epilogue=epi2, etemps=8, NSET=4,
          hook_poll=mk_poll(2), hook_pre=pre2, pre_regs=34, act_sc1=1, stamp0=4, vWoff=255)


def gen_all(A, name="all_kernel", opts={}):
    import gen_a, gen_front
    g1 = dict(G1); g2 = dict(G2)
    g1['hook_poll'] = mk_poll(3); g2['hook_poll'] = mk_poll(4)
    g1['stamp0'] = 2; g2['stamp0'] = 4
    for k, v in opts.items():
        if k.startswith("g1_"): g1[k[3:]] = v
        if k.startswith("g2_"): g2[k[3:]] = v
    gen_a.TMP[0] = 38; gen_front.STMP[0] = 36
    LNST[0] = opts.get('st4', 0)
    A.begin_kernel(name)
    Lend = A.newlabel("Lend")
    A("s_cmp_ge_u32 s2, 256"); A(f"s_cbranch_scc1 {Lend}")
    A("s_and_b32 s17, s2, 7"); A("s_lshr_b32 s18, s2, 3")
    A(f"s_and_b32 s{S_MT}, s17, 1"); A(f"s_lshl_b32 s{S_MT}, s{S_MT}, 3"); A("s_and_b32 s19, s18, 7"); A(f"s_add_u32 s{S_MT}, s{S_MT}, s19")
    A(f"s_lshr_b32 s{S_NT}, s17, 1"); A(f"s_lshl_b32 s{S_NT}, s{S_NT}, 2"); A("s_lshr_b32 s19, s18, 3"); A(f"s_add_u32 s{S_NT}, s{S_NT}, s19")
    gen_a.gen_front_a(A, prefetch=(opts.get('pfa', 2), opts.get('pfa', 2), 0), pfm=0, merged=True, hook_x=ln_xload)
    publish_flag(A, 32, S_NONCE, 2, S_WAVE, 24)
    if not opts.get('st3'): stamp(A, 1)
    A("s_mov_b64 s[76:77], s[32:33]"); A("s_mov_b64 s[78:79], s[34:35]")
    srd_off(A, S_FLAG, 70, 71, WS_FLAG + 256 * 128, 256 * 128)
    def grid_poll(A):
        A("s_lshl_b32 s18, s16, 6"); A("v_add_u32 v5, s18, v2"); A("v_lshlrev_b32 v5, 7, v5")
        gen_a.TMP[0] = 46
        poll_flags(A, 76, S_NONCE, 5, 2, 6, 55)
        A("s_barrier")
        if opts.get('st2'): gen_front.STMP[0] = 48; stamp(A, 2)
    ln_split(A, 147456, 0, opts.get('pfw', 0), grid_poll, lambda A: early_weights(A, g1, S_NT, 226, 60))
    gen_a.TMP[0] = 76; gen_front.STMP[0] = 78
    publish_rgi(A, 3, 24)
    if opts.get('st4'): stamp(A, 5); g1['stamp0'] = -100; g2['stamp0'] = -100
    elif opts.get('st2'): stamp(A, 3); g1['stamp0'] = 4; g2['stamp0'] = -100
    if opts.get('st3'):
        g1['stamp0'] = -1; g2['stamp0'] = 4
        hp = g2['hook_poll']
        def hp2(A, g):
            hp(A, g); stamp(A, 3)
        g2['hook_poll'] = hp2
    def post1(A, g):
        A("s_barrier")
        A("s_and_b32 s82, s2, 7"); A("s_lshr_b32 s83, s2, 3")
        A("s_and_b32 s85, s82, 3"); A("s_lshl_b32 s85, s85, 2"); A("s_and_b32 s84, s83, 3"); A("s_add_u32 s85, s85, s84")
        A("s_lshr_b32 s86, s82, 2"); A("s_lshl_b32 s86, s86, 3"); A("s_lshr_b32 s84, s83, 2"); A("s_add_u32 s86, s86, s84")
        early_weights(A, g2, 86, 244, 60)
    g1['hook_post'] = post1
    na1 = gemm_body(A, g1)
    if opts.get('st3'): stamp(A, 1)
    publish_rgi(A, 4, 0)
    if opts.get('st3'): stamp(A, 2)
    A(f"s_mov_b32 s{S_MT}, s85"); A(f"s_mov_b32 s{S_NT}, s86")
    na2 = gemm_body(A, g2)
    rt_out(A, Lend, S_WAVE)
    A.label(Lend); A("s_endpgm")
    A.end_kernel(name, 256, max(na1, na2, 176), 102, 256, 256, 163840)
```

```python
import sys, math
from gen import *
import gen
from gen_front import MASK, rnd2, unpack2, wave_sum_multi, stamp, STAMP
from gen2 import lane_id, S_WAVE, S_MT, S_NT, S_FLAG, S_NONCE

NWV = 8
TOP = 147456
TOPD = [147456]


class Geo8:
    def __init__(s, cfg):
        s.cfg = cfg
        for k in "MT WM WN NSUB NW K RSG KS R PD LAG fs fbits".split(): setattr(s, k, cfg[k])
        s.fm = (1 << s.fbits) - 1
        s.KBT = cfg.get('KBT', s.K // 32)
        s.S = s.K // 32; s.T = s.S // s.KS
        s.RS = s.NW * 2; s.CPR = s.RS // 16
        s.WT_BYTES = 32 * s.RS; s.ipt = s.WT_BYTES // 1024
        s.ACT_BYTES = s.MT * 64
        s.SUB_BYTES = s.ACT_BYTES + s.NSUB * s.WT_BYTES
        s.SLOT = s.KS * s.SUB_BYTES
        s.LDS = s.R * s.SLOT
        assert s.LDS <= 163840
        assert s.WM * s.WN * s.NSUB == NWV
        s.MBW = s.MT // 16 // s.WM; s.FBW = s.NW // 16 // s.WN
        s.nA = s.MT // 16 // NWV
        s.wps = NWV // s.NSUB
        s.nW = -(-s.ipt // s.wps)
        base, rem = divmod(s.ipt, s.wps)
        s.cnt = [base + (1 if q < rem else 0) for q in range(s.wps)]
        s.start = [sum(s.cnt[:q]) for q in range(s.wps)]
        s.has_dummy = rem != 0
        s.rem = rem
        s.NCLS = min(1 << s.fbits, s.FBW)
        for b in range(s.NW // 16):
            for k0 in (0, 8, 16, 24):
                segs = set(((k * s.RS + 32 * (b ^ ((k >> s.fs) & s.fm))) // 32) % 8 for k in range(k0, k0 + 8))
                assert len(segs) == 8
        s.NACC = s.FBW * s.MBW * 4
        s.t0 = (s.PD - 1) // s.KS
        assert s.t0 <= s.LAG
        s.n_pro = s.t0 + s.R - s.LAG
        s.vWoff = cfg['vWoff']


def wave_q_start(A, G, sd, st):
    A(f"s_and_b32 s{st}, s{S_WAVE}, {G.wps - 1}")
    base = G.ipt // G.wps
    A(f"s_mul_i32 s{sd}, s{st}, {base}")
    if G.rem:
        A(f"s_min_u32 s{st}, s{st}, {G.rem}")
        A(f"s_add_u32 s{sd}, s{sd}, s{st}")


def woff_calc8(A, G, vLane, vT, s_nt, s0, s1):
    vT0, vT1, vT2, vT3 = vT, vT + 1, vT + 2, vT + 3
    wave_q_start(A, G, s0, s1)
    A(f"s_lshl_b32 s{s0}, s{s0}, 6")
    A(f"s_mul_i32 s{s1}, s{s_nt}, {G.RS}")
    magic = (65536 + G.CPR - 1) // G.CPR
    for Q in range((G.ipt + 1) * 64):
        assert (Q * magic) >> 16 == Q // G.CPR
    for j in range(G.nW):
        A(f"v_add_u32 v{vT0}, s{s0}, v{vLane}")
        if j: A(f"v_add_u32 v{vT0}, {j * 64}, v{vT0}")
        A(f"v_mul_u32_u24 v{vT1}, {magic}, v{vT0}")
        A(f"v_lshrrev_b32 v{vT1}, 16, v{vT1}")
        A(f"v_mul_u32_u24 v{vT2}, {G.CPR}, v{vT1}")
        A(f"v_sub_u32 v{vT2}, v{vT0}, v{vT2}")
        A(f"v_lshrrev_b32 v{vT3}, {G.fs}, v{vT1}")
        A(f"v_and_b32 v{vT3}, {G.fm}, v{vT3}")
        A(f"v_lshlrev_b32 v{vT3}, 1, v{vT3}")
        A(f"v_xor_b32 v{vT2}, v{vT2}, v{vT3}")
        A(f"v_lshlrev_b32 v{vT2}, 4, v{vT2}")
        A(f"v_mul_u32_u24 v{vT1}, {G.RSG}, v{vT1}")
        A(f"v_add3_u32 v{G.vWoff + j}, v{vT1}, v{vT2}, s{s1}")
    if G.has_dummy:
        A(f"s_and_b32 s{s1}, s{S_WAVE}, {G.wps - 1}")
        A(f"s_cmp_ge_u32 s{s1}, {G.rem}")
        A(f"s_cselect_b32 s{s1}, 0x40000000, 0")
        A(f"v_add_u32 v{G.vWoff + G.nW - 1}, s{s1}, v{G.vWoff + G.nW - 1}")


def wb_calc(A, G, sd, st):
    wave_q_start(A, G, sd, st)
    A(f"s_lshl_b32 s{sd}, s{sd}, 10")
    A(f"s_add_u32 s{sd}, s{sd}, {G.ACT_BYTES}")
    if G.NSUB == 2:
        A(f"s_cmp_ge_u32 s{S_WAVE}, {G.wps}")
        A(f"s_cselect_b32 s{st}, {G.WT_BYTES}, 0")
        A(f"s_add_u32 s{sd}, s{sd}, s{st}")


def early_weights8(A, cfg, s_nt, vT, sb, koff_s=None):
    G = Geo8(cfg)
    wk = cfg['wptr']
    A(f"s_load_dwordx2 s[{sb+4}:{sb+5}], s[0:1], {wk[0]}")
    A(f"s_load_dwordx2 s[{sb+6}:{sb+7}], s[0:1], {wk[-1]}")
    lane_id(A, vT + 4)
    woff_calc8(A, G, vT + 4, vT, s_nt, sb + 8, sb + 9)
    A("s_waitcnt lgkmcnt(0)")
    if G.NSUB == 2:
        A(f"s_cmp_ge_u32 s{S_WAVE}, {G.wps}")
        A(f"s_cselect_b32 s{sb+4}, s{sb+6}, s{sb+4}")
        A(f"s_cselect_b32 s{sb+5}, s{sb+7}, s{sb+5}")
    srd(A, sb, sb + 4, sb + 5, cfg.get('wbytes', G.K * G.RSG))
    wb_calc(A, G, sb + 8, sb + 9)
    if G.has_dummy:
        A(f"s_and_b32 s{sb+10}, s{S_WAVE}, {G.wps - 1}")
        A(f"s_cmp_ge_u32 s{sb+10}, {G.rem}")
        A(f"s_cselect_b32 s{sb+10}, 1, 0")
    for st in range(G.n_pro):
        for u in range(G.KS):
            if koff_s is None:
                A(f"s_mov_b32 s{sb+9}, {(st * G.KS + u) * 32 * G.RSG}")
            else:
                A(f"s_add_u32 s{sb+9}, s{koff_s}, {(st * G.KS + u) * 32 * G.RSG}")
            for j in range(G.nW):
                A(f"s_add_u32 m0, s{sb+8}, {(st % G.R) * G.SLOT + u * G.SUB_BYTES + j * 1024}")
                if G.has_dummy and j == G.nW - 1:
                    A(f"s_cmp_eq_u32 s{sb+10}, 1")
                    A(f"s_cselect_b32 m0, {TOPD[0]}, m0")
                A("s_nop 0")
                A(f"buffer_load_dwordx4 v{G.vWoff + j}, s[{sb}:{sb+3}], s{sb+9} offen lds")


def gemm8_body(A, cfg):
    G = Geo8(cfg)
    MT, WM, WN, NSUB, NW, K, RSG, KS, R, PD, LAG, fs, fm = [getattr(G, k) for k in "MT WM WN NSUB NW K RSG KS R PD LAG fs fm".split()]
    KBT, S, T, RS, WT_BYTES, ACT_BYTES, SUB_BYTES, SLOT, LDS = [getattr(G, k) for k in "KBT S T RS WT_BYTES ACT_BYTES SUB_BYTES SLOT LDS".split()]
    MBW, FBW, nA, nW, wps, NCLS, NACC, t0, n_pro, vWoff = [getattr(G, k) for k in "MBW FBW nA nW wps NCLS NACC t0 n_pro vWoff".split()]
    def acc(fb, mb): return (fb * MBW + mb) * 4
    vn = [NACC]
    def valloc(n=1):
        r = vn[0]; vn[0] += n
        assert r + n <= vWoff or r >= vWoff + nW, "collides with vWoff"
        return r
    vLane = valloc()
    if vn[0] % 2: valloc()
    vPre = valloc(cfg.get('pre_regs', 0))
    ubase = vn[0]
    vT0 = valloc(); vT1 = valloc(); vT2 = valloc(); vT3 = valloc()
    vAoff = valloc(nA)
    vX0 = valloc(); vW0 = valloc(NCLS)
    vPF = valloc(); vPF2 = valloc()
    vB = [valloc(1 + NCLS), valloc(1 + NCLS)]
    loop_end = vn[0]
    vn[0] = ubase
    vE = valloc(2)
    vE2 = valloc(cfg.get('etemps', 16))
    NV = max(vn[0], loop_end, vWoff + nW)
    NSET = cfg.get("NSET", PD + 1)
    SETSZ = (FBW + MBW) * 4
    def wfrag(p, fb): return p * SETSZ + fb * 4
    def xfrag(p, mb): return p * SETSZ + (FBW + mb) * 4
    NA_ = NSET * SETSZ
    sW, sX, sO = 4, 8, 12
    sWave = S_WAVE
    sKW, sKX, sCnt, sWB, sAB, sRd, sWA, sT0, sT1, sMT, sNT, sWM, sWN, sWW, sTK = range(17, 32)
    sP = 32
    sE = 48
    sRn, sSub, sDum, sW3 = 56, 57, 41, 42
    wk = cfg['wptr']
    A(f"s_load_dwordx2 s[{sP}:{sP+1}], s[0:1], {wk[0]}")
    A(f"s_load_dwordx2 s[{sP+2}:{sP+3}], s[0:1], {wk[-1]}")
    A(f"s_load_dwordx2 s[{sP+4}:{sP+5}], s[0:1], {KA['ws']}")
    A(f"s_load_dwordx2 s[{sP+6}:{sP+7}], s[0:1], {KA['out']}")
    lane_id(A, vLane)
    A(f"s_mov_b32 s{sMT}, s{S_MT}")
    A(f"s_mov_b32 s{sNT}, s{S_NT}")
    A(f"s_and_b32 s{sT0}, s{sWave}, {wps - 1}")
    A(f"s_lshr_b32 s{sSub}, s{sWave}, {int(math.log2(wps))}")
    A(f"s_lshr_b32 s{sWM}, s{sT0}, {int(math.log2(WN))}")
    A(f"s_and_b32 s{sWN}, s{sT0}, {WN - 1}")
    A(f"s_mul_i32 s{sT0}, s{sMT}, {MT // 16}")
    A(f"s_mul_i32 s{sT1}, s{sWave}, {nA}")
    A(f"s_add_u32 s{sT0}, s{sT0}, s{sT1}")
    A(f"s_mul_i32 s{sT0}, s{sT0}, {KBT * 1024}")
    A(f"v_lshlrev_b32 v{vT0}, 4, v{vLane}")
    for j in range(nA):
        A(f"v_add_u32 v{vAoff + j}, s{sT0}, v{vT0}")
        if j: A(f"v_add_u32 v{vAoff + j}, {j * KBT * 1024}, v{vAoff + j}")
    wb_calc(A, G, sWB, sT0)
    if G.has_dummy:
        A(f"s_and_b32 s{sDum}, s{sWave}, {wps - 1}")
        A(f"s_cmp_ge_u32 s{sDum}, {G.rem}")
        A(f"s_cselect_b32 s{sDum}, 1, 0")
    A(f"s_mul_i32 s{sAB}, s{sWave}, {nA * 1024}")
    A(f"s_waitcnt lgkmcnt(0)")
    srd_off(A, sX, sP + 4, sP + 5, cfg['act_off'], 2048 * KBT * 64)
    sc = " sc1" if cfg.get('act_sc1') else ""
    env = dict(locals())
    koff = cfg.get('koff_s')
    if cfg.get('hook_poll'): cfg['hook_poll'](A, env)
    ops = []
    if koff is None: A(f"s_mov_b32 s{sKX}, 0")
    else: A(f"s_lshl_b32 s{sKX}, s{koff}, 10")
    for st in range(n_pro):
        for u in range(KS):
            for j in range(nA):
                A(f"s_add_u32 m0, s{sAB}, {(st % R) * SLOT + u * SUB_BYTES + j * 1024}")
                A("s_nop 0")
                A(f"buffer_load_dwordx4 v{vAoff + j}, s[{sX}:{sX+3}], s{sKX} offen{sc} lds"); ops.append(st)
            A(f"s_add_u32 s{sKX}, s{sKX}, 1024")
    A(f"s_mul_i32 s{sKW}, s{sKX}, {32 * RSG // 1024}")
    A(f"s_mov_b32 s{sTK}, {((t0 - 1) % R) * SLOT}")
    if NSUB == 2:
        A(f"s_cmp_ge_u32 s{sWave}, {wps}")
        A(f"s_cselect_b32 s{sT0}, s{sP+2}, s{sP}")
        A(f"s_cselect_b32 s{sT1}, s{sP+3}, s{sP+1}")
        srd(A, sW, sT0, sT1, cfg.get('wbytes', K * RSG))
    else:
        srd(A, sW, sP, sP + 1, cfg.get('wbytes', K * RSG))
    A(f"s_mul_i32 s{sT0}, s{sWM}, {MBW * 1024}")
    A(f"v_lshl_add_u32 v{vX0}, v{vLane}, 4, s{sT0}")
    A(f"v_lshrrev_b32 v{vT0}, 2, v{vLane}")
    A(f"v_and_b32 v{vT1}, 3, v{vLane}")
    A(f"v_mul_u32_u24 v{vT2}, {RS}, v{vT0}")
    A(f"v_lshl_add_u32 v{vT2}, v{vT1}, 3, v{vT2}")
    A(f"s_mul_i32 s{sT0}, s{sSub}, {WT_BYTES}")
    A(f"s_add_u32 s{sT0}, s{sT0}, {ACT_BYTES}")
    A(f"v_add_u32 v{vT2}, s{sT0}, v{vT2}")
    A(f"v_lshrrev_b32 v{vT3}, {fs}, v{vT0}")
    A(f"v_and_b32 v{vT3}, {fm}, v{vT3}")
    A(f"s_mul_i32 s{sT0}, s{sWN}, {FBW}")
    for c in range(NCLS):
        A(f"s_add_u32 s{sT1}, s{sT0}, {c}")
        A(f"v_xor_b32 v{vT1}, s{sT1}, v{vT3}")
        A(f"v_lshl_add_u32 v{vW0 + c}, v{vT1}, 5, v{vT2}")
    if cfg.get('hook_pre'):
        n = cfg['hook_pre'](A, env)
        ops += [-1] * n
    pfD = cfg.get('pf_D', 0)
    if pfD:
        A(f"s_load_dwordx2 s[80:81], s[0:1], {KA['w2']}")
        A(f"s_and_b32 s{sT0}, s{sWave}, 3"); A(f"s_lshl_b32 s{sT1}, s2, 2"); A(f"s_add_u32 s{sT0}, s{sT0}, s{sT1}")
        A(f"s_lshl_b32 s{sT0}, s{sT0}, 10")
        A(f"v_lshl_add_u32 v{vPF}, v{vLane}, 4, s{sT0}")
        A(f"s_lshl_b32 s{sT1}, s2, 3"); A(f"s_add_u32 s{sT0}, s{sT1}, s{sWave}"); A(f"s_lshl_b32 s{sT0}, s{sT0}, 10")
        A(f"v_lshl_add_u32 v{vPF2}, v{vLane}, 4, s{sT0}")
        A(f"s_mov_b32 s84, {pfD * 32 * RSG}")
        A(f"s_mov_b32 s85, 0")
        A("s_waitcnt lgkmcnt(0)")
        srd(A, 60, 80, 81, 7340032)
    def ds_reads(p, u, vX, vW):
        res = []
        for mb in range(MBW):
            r = xfrag(p, mb)
            res.append(f"ds_read_b128 a[{r}:{r+3}], v{vX} offset:{u * SUB_BYTES + mb * 1024}")
        for fb in range(FBW):
            cls = fb % NCLS
            r = wfrag(p, fb)
            off = u * SUB_BYTES + 32 * (fb - cls)
            assert off + 16 * RS < 65536
            res.append(f"ds_read_b64_tr_b16 a[{r}:{r+1}], v{vW + cls} offset:{off}")
            res.append(f"ds_read_b64_tr_b16 a[{r+2}:{r+3}], v{vW + cls} offset:{off + 16 * RS}")
        return res
    def allowed(stage):
        idx = max(i for i, t in enumerate(ops) if t == stage)
        return len(ops) - 1 - idx
    for i in range(NACC): A(f"v_mov_b32 v{i}, 0")
    A(f"s_waitcnt vmcnt({allowed(t0)})")
    A("s_barrier")
    stamp(A, cfg.get('stamp0', 2))
    for s in range(PD):
        st, u = s // KS, s % KS
        b = vB[st & 1]
        if u == 0:
            A(f"v_add_u32 v{b}, {st * SLOT}, v{vX0}")
            for c in range(NCLS): A(f"v_add_u32 v{b + 1 + c}, {st * SLOT}, v{vW0 + c}")
        for x in ds_reads(s % NSET, u, b, b + 1): A(x)
    A(f"s_mov_b32 s{sRd}, {t0 * SLOT}")
    b = vB[(t0 + 1) & 1]
    A(f"s_mov_b32 s{sRn}, {((t0 + 1) % R) * SLOT}")
    A(f"v_add_u32 v{b}, s{sRn}, v{vX0}")
    for c in range(NCLS): A(f"v_add_u32 v{b + 1 + c}, s{sRn}, v{vW0 + c}")
    UN = math.lcm(2 * KS, NSET, 4 if pfD else 1)
    assert S % UN == 0, (S, UN)
    nDS = MBW + 2 * FBW
    NIT = S // UN

    def body(it, emit):
        vms = []
        for s in range(UN):
            sa = it * UN + s
            p = s % NSET
            pr = (s + PD) % NSET
            ph = (s + PD) % KS
            stg = (s + PD) // KS
            stga = (sa + PD) // KS
            b = vB[stg & 1]
            tgt = stga - 1 - LAG + R
            do_dma = tgt < T
            do_rd = (sa + PD) < S
            pre, g0s = [], []
            if ph == 0 and do_rd:
                lg = 0 if LAG == 0 else min(15, nDS * (PD - 1))
                vm = allowed(stga); vms.append(vm)
                assert vm <= 63
                pre.append(f"s_waitcnt vmcnt({vm}) lgkmcnt({lg})")
                pre.append("s_barrier")
                if do_dma:
                    src = sRd if LAG == 0 else sTK
                    g0s += [f"s_add_u32 s{sWA}, s{src}, s{sAB}", f"s_add_u32 s{sWW}, s{src}, s{sWB}"]
                    if G.has_dummy:
                        g0s += [f"s_cmp_eq_u32 s{sDum}, 1", f"s_cselect_b32 s{sW3}, {TOP - (nW - 1) * 1024}, s{sWW}"]
                    if LAG: g0s.append(f"s_mov_b32 s{sTK}, s{sRd}")
                g0s.append(f"s_mov_b32 s{sRd}, s{sRn}")
                g0s += [f"s_add_u32 s{sRn}, s{sRn}, {SLOT}", f"s_cmp_eq_u32 s{sRn}, {R * SLOT}", f"s_cselect_b32 s{sRn}, 0, s{sRn}"]
            else:
                nl = min(15, nDS * (PD - 1)) if (sa + PD - 1) < S else 0
                pre.append(f"s_waitcnt lgkmcnt({nl})")
            vms.append((do_dma, do_rd))
            late = []
            if do_dma:
                late += [f"s_add_u32 s{sKX}, s{sKX}, 1024", f"s_add_u32 s{sKW}, s{sKW}, {32 * RSG}"]
            if ph == KS - 1 and do_rd:
                bn = vB[(stg + 1) & 1]
                late.append(f"v_add_u32 v{bn}, s{sRn}, v{vX0}")
                for c in range(NCLS): late.append(f"v_add_u32 v{bn + 1 + c}, s{sRn}, v{vW0 + c}")
            mf = []
            for fb in range(FBW):
                for mb in range(MBW):
                    a_ = acc(fb, mb); w = wfrag(p, fb); x = xfrag(p, mb)
                    mf.append(f"v_mfma_f32_16x16x32_bf16 v[{a_}:{a_+3}], a[{w}:{w+3}], a[{x}:{x+3}], v[{a_}:{a_+3}]")
            M = len(mf)
            ds = ds_reads(pr, ph, b, b + 1) if do_rd else []
            dm = []
            if do_dma:
                for j in range(nA):
                    dm.append(([f"s_add_u32 m0, s{sWA}, {ph * SUB_BYTES + j * 1024}"],
                               f"buffer_load_dwordx4 v{vAoff + j}, s[{sX}:{sX+3}], s{sKX} offen{sc} lds"))
                for j in range(nW):
                    if G.has_dummy and j == nW - 1:
                        assert KS == 1
                        m0 = [f"s_add_u32 m0, s{sW3}, {j * 1024}"]
                    else:
                        m0 = [f"s_add_u32 m0, s{sWW}, {ph * SUB_BYTES + j * 1024}"]
                    dm.append((m0, f"buffer_load_dwordx4 v{vWoff + j}, s[{sW}:{sW+3}], s{sKW} offen lds"))
            side = {}
            def put(g, ins): side.setdefault(min(g, M - 1), []).extend(ins)
            dsr = cfg.get('ds_rate', 1)
            for i, d in enumerate(ds): put(i // dsr, [d])
            ng = min(cfg.get('ng', 2), M - 1)
            for i, x in enumerate(g0s): put(i * ng // len(g0s), [x])
            g0 = max(ng if g0s else 0, cfg.get('dma_g0', 0))
            pfnow = pfD and s % 4 == 0 and do_dma
            span = max(1, (M - g0 - 2 - (4 if pfD else 0)) // max(1, len(dm)))
            for i, (m0, d) in enumerate(dm):
                g = g0 + i * span
                if g + 1 <= M - 1:
                    put(g, m0); put(g + 1, [d])
                else:
                    put(g, m0 + ["s_nop 0", d])
                ops.append(tgt)
            if pfnow:
                put(M - 4, [f"buffer_load_dwordx4 a[{NA_}:{NA_+3}], v{vPF}, s[{sW}:{sW+3}], s84 offen", f"s_add_u32 s84, s84, {128 * RSG}"])
                put(M - 2, [f"buffer_load_dwordx4 a[{NA_+4}:{NA_+7}], v{vPF2}, s[60:63], s85 offen", f"s_add_u32 s85, s85, {2 << 20}"])
                ops.extend([-1, -1])
            put(M - 1, late)
            if emit:
                for x in pre: A(x)
                for x in interleave(mf, side): A(x)
        return vms

    saved = list(ops)
    seq = [body(it, False) for it in range(NIT)]
    mid = seq[NIT // 2]
    lo = NIT // 2
    while lo > 0 and seq[lo - 1] == mid: lo -= 1
    hi = NIT // 2
    while hi + 1 < NIT and seq[hi + 1] == mid: hi += 1
    ops[:] = saved
    for it in range(lo): body(it, True)
    A(f"s_mov_b32 s{sCnt}, {hi - lo + 1}")
    Lloop = A.newlabel("Lloop")
    A.label(Lloop)
    body(lo, True)
    A(f"s_sub_u32 s{sCnt}, s{sCnt}, 1")
    A(f"s_cmp_lg_u32 s{sCnt}, 0")
    A(f"s_cbranch_scc1 {Lloop}")
    for it in range(lo + 1, hi + 1): body(it, False)
    for it in range(hi + 1, NIT): body(it, True)
    A("s_waitcnt vmcnt(0) lgkmcnt(0)")
    A("s_nop 7")
    A("s_nop 7")
    stamp(A, cfg.get('stamp0', 2) + 1)
    env = dict(locals())
    if cfg.get('hook_post'): cfg['hook_post'](A, env)
    cfg['epilogue'](A, env)
    return NV, NA_ + 8


def epi1_8(A, g):
    acc, FBW, MBW = g['acc'], g['FBW'], g['MBW']
    sO, sP, sT0, sT1, sMT, sNT, sWM, sWN, vLane, vE, vE2, sE, sSub = [g[k] for k in
        "sO sP sT0 sT1 sMT sNT sWM sWN vLane vE vE2 sE sSub".split()]
    sc = " sc1" if g['cfg'].get('out_sc1') else ""
    XB = g['cfg'].get('xbuf', 0)
    srd_off(A, sO, sP + 4, sP + 5, WS_HH, 2048 * 3584 * 2)
    A(f"s_mul_i32 s{sT0}, s{sNT}, 14")
    A(f"s_mul_i32 s{sT1}, s{sWN}, 7")
    A(f"s_add_u32 s{sT0}, s{sT0}, s{sT1}")
    A(f"s_lshr_b32 s{sT0}, s{sT0}, 1")
    A(f"s_lshl_b32 s{sT0}, s{sT0}, 10")
    A(f"s_lshl_b32 s{sT1}, s{sMT}, 3")
    A(f"s_lshl_b32 s{sE}, s{sWM}, 2")
    A(f"s_add_u32 s{sT1}, s{sT1}, s{sE}")
    A(f"s_mul_i32 s{sT1}, s{sT1}, {112 * 1024}")
    A(f"s_add_u32 s{sT0}, s{sT0}, s{sT1}")
    A(f"v_lshl_add_u32 v{vE}, v{vLane}, 4, s{sT0}")
    A(f"s_mov_b32 s{sE+2}, 0xbfb8aa3b"); A(f"s_mov_b32 s{sE+3}, 0xbfb8aa3b")
    for fb in range(FBW):
        for mb in range(MBW):
            a_ = acc(fb, mb)
            A(f"v_cvt_pk_bf16_f32 v{a_}, v{a_}, v{a_+1}")
            A(f"v_cvt_pk_bf16_f32 v{a_+1}, v{a_+2}, v{a_+3}")
    XS = g['cfg'].get('xstride', 7168)
    A(f"s_mul_i32 s{sE}, s{S_WAVE}, {XS}"); A(f"s_add_u32 s{sE}, s{sE}, {XB}")
    A(f"v_lshl_add_u32 v{vE+1}, v{vLane}, 3, s{sE}")
    A(f"s_xor_b32 s{sE}, s{S_WAVE}, 4"); A(f"s_mul_i32 s{sE}, s{sE}, {XS}"); A(f"s_add_u32 s{sE}, s{sE}, {XB}")
    vP = vE2 + 16
    A(f"v_lshl_add_u32 v{vP}, v{vLane}, 3, s{sE}")

    def path(sub, par):
        keep = (0, 1) if sub == 0 else (2, 3)
        send = (2, 3) if sub == 0 else (0, 1)
        for fb in range(FBW):
            for i, mb in enumerate(send):
                a_ = acc(fb, mb)
                A(f"ds_write_b64 v{vE+1}, v[{a_}:{a_+1}] offset:{(fb * 2 + i) * 512}")
        A("s_waitcnt lgkmcnt(0)")
        A("s_barrier")
        for fb in range(FBW):
            for i, mb in enumerate(keep):
                a_ = acc(fb, mb)
                A(f"ds_read_b64 v[{a_+2}:{a_+3}], v{vP} offset:{(fb * 2 + i) * 512}")
        A("s_waitcnt lgkmcnt(0)")
        groups = []
        i = 0
        while i < FBW:
            if (par + i) % 2 == 0 and i + 1 < FBW:
                groups.append((i, i + 1)); i += 2
            else:
                groups.append((i,)); i += 1
        for grp in groups:
            kb = (par + grp[0]) >> 1
            for mb in keep:
                blocks = []
                for n, fb in enumerate(grp):
                    a_ = acc(fb, mb)
                    gp, up = (a_, a_ + 2) if sub == 0 else (a_ + 2, a_)
                    Gf = acc(fb, send[keep.index(mb)])
                    t = vE2 + 8 * n
                    blocks.append((gp, up, Gf, t))
                for gp, up, Gf, t in blocks:
                    for h in range(2):
                        A(f"v_lshlrev_b32 v{Gf+2*h}, 16, v{gp+h}")
                        A(f"v_and_b32 v{Gf+2*h+1}, {MASK}, v{gp+h}")
                for gp, up, Gf, t in blocks:
                    for h in range(2):
                        A(f"v_pk_mul_f32 v[{t+2*h}:{t+2*h+1}], v[{Gf+2*h}:{Gf+2*h+1}], s[{sE+2}:{sE+3}]")
                for gp, up, Gf, t in blocks:
                    for i in range(4): A(f"v_exp_f32 v{t+i}, v{t+i}")
                for gp, up, Gf, t in blocks:
                    for h in range(2):
                        A(f"v_lshlrev_b32 v{t+4+2*h}, 16, v{up+h}")
                        A(f"v_and_b32 v{t+5+2*h}, {MASK}, v{up+h}")
                for gp, up, Gf, t in blocks:
                    for h in range(2):
                        A(f"v_pk_add_f32 v[{t+2*h}:{t+2*h+1}], v[{t+2*h}:{t+2*h+1}], 1.0 op_sel_hi:[1,0]")
                for gp, up, Gf, t in blocks:
                    for i in range(4): A(f"v_rcp_f32 v{t+i}, v{t+i}")
                A("s_nop 0")
                for gp, up, Gf, t in blocks:
                    for h in range(2):
                        A(f"v_pk_mul_f32 v[{t+2*h}:{t+2*h+1}], v[{t+2*h}:{t+2*h+1}], v[{Gf+2*h}:{Gf+2*h+1}]")
                for gp, up, Gf, t in blocks:
                    for h in range(2):
                        A(f"v_cvt_pk_bf16_f32 v{Gf+h}, v{t+2*h}, v{t+2*h+1}")
                for gp, up, Gf, t in blocks:
                    for h in range(2):
                        A(f"v_lshlrev_b32 v{t+2*h}, 16, v{Gf+h}")
                        A(f"v_and_b32 v{t+2*h+1}, {MASK}, v{Gf+h}")
                for gp, up, Gf, t in blocks:
                    for h in range(2):
                        A(f"v_pk_mul_f32 v[{t+2*h}:{t+2*h+1}], v[{t+2*h}:{t+2*h+1}], v[{t+4+2*h}:{t+5+2*h}]")
                D = blocks[0][2]
                for n, (gp, up, Gf, t) in enumerate(blocks):
                    A(f"v_cvt_pk_bf16_f32 v{D + 2*n}, v{t}, v{t+1}")
                    A(f"v_cvt_pk_bf16_f32 v{D + 2*n + 1}, v{t+2}, v{t+3}")
                A(f"s_mov_b32 s{sE+5}, {mb * 112 * 1024 + kb * 1024}")
                if len(grp) == 2:
                    A(f"buffer_store_dwordx4 v[{D}:{D+3}], v{vE}, s[{sO}:{sO+3}], s{sE+5} offen{sc}")
                else:
                    off = 8 * ((par + grp[0]) & 1)
                    A(f"buffer_store_dwordx2 v[{D}:{D+1}], v{vE}, s[{sO}:{sO+3}], s{sE+5} offen offset:{off}{sc}")
    Ls = [A.newlabel("Lp") for _ in range(4)]
    Lj = A.newlabel("Ljoin")
    A(f"s_lshl_b32 s{sE}, s{sSub}, 1"); A(f"s_add_u32 s{sE}, s{sE}, s{sWN}")
    for i in range(1, 4):
        A(f"s_cmp_eq_u32 s{sE}, {i}"); A(f"s_cbranch_scc1 {Ls[i]}")
    for i in range(4):
        if i: A.label(Ls[i])
        path(i >> 1, i & 1)
        if i < 3: A(f"s_branch {Lj}")
    A.label(Lj)


G1_8 = dict(MT=128, WM=2, WN=2, NSUB=2, NW=224, K=1024, RSG=7168, KS=1, R=4, PD=1, LAG=0,
            fs=2, fbits=1, wptr=[KA['w1'], KA['w3']], act_off=WS_H2, epilogue=epi1_8, etemps=18,
            stamp0=2, vWoff=140, pf_D=0)


def gen_g8test(A, opts):
    import gen_front
    gen_front.STMP[0] = 78
    g1 = dict(G1_8)
    for k, v in opts.items():
        if k.startswith("g1_"): g1[k[3:]] = v
    name = "g8_kernel"
    A.begin_kernel(name)
    Lend = A.newlabel("Lend")
    A("s_cmp_ge_u32 s2, 256"); A(f"s_cbranch_scc1 {Lend}")
    stamp(A, 0)
    A("v_lshrrev_b32 v1, 6, v0"); A("s_nop 0"); A(f"v_readfirstlane_b32 s{S_WAVE}, v1")
    A(f"s_mov_b32 {MASK}, 0xffff0000")
    A("s_and_b32 s17, s2, 7"); A("s_lshr_b32 s18, s2, 3")
    A(f"s_and_b32 s{S_MT}, s17, 1"); A(f"s_lshl_b32 s{S_MT}, s{S_MT}, 3"); A("s_and_b32 s19, s18, 7"); A(f"s_add_u32 s{S_MT}, s{S_MT}, s19")
    A(f"s_lshr_b32 s{S_NT}, s17, 1"); A(f"s_lshl_b32 s{S_NT}, s{S_NT}, 2"); A("s_lshr_b32 s19, s18, 3"); A(f"s_add_u32 s{S_NT}, s{S_NT}, s19")
    early_weights8(A, g1, S_NT, 120, 60)
    A("s_waitcnt vmcnt(0)")
    stamp(A, 1)
    g1['hook_post'] = lambda A, g: A("s_barrier")
    nv, na = gemm8_body(A, g1)
    stamp(A, 4)
    rt_out(A, Lend, S_WAVE)
    A.label(Lend); A("s_endpgm")
    A.end_kernel(name, 144, na, 102, 256, 512, 163840)


WS_XCH = 64 << 20
S_KH = 47
S_PW = 46


def pre2_8(A, g):
    FBW, MBW, MT, NW = g['FBW'], g['MBW'], g['MT'], g['NW']
    sP, sT0, sT1, sMT, sNT, sWM, sWN, vLane, sE, vPre, vT0, vT1 = [g[k] for k in
        "sP sT0 sT1 sMT sNT sWM sWN vLane sE vPre vT0 vT1".split()]
    HB = MBW // 2
    srd_off(A, 60, sP + 4, sP + 5, WS_X1, 2048 * 1024 * 2)
    srd_off(A, 64, sP + 4, sP + 5, WS_MOD, 2 * 6144 * 4)
    A(f"s_mul_i32 s{sT0}, s{sNT}, {NW}")
    A(f"s_mul_i32 s{sE}, s{sWN}, {FBW * 16}")
    A(f"s_add_u32 s{sT0}, s{sT0}, s{sE}")
    A(f"s_mul_i32 s{sT1}, s{sMT}, {MT}")
    A(f"s_mul_i32 s{sE}, s{sWM}, {MBW * 16}")
    A(f"s_add_u32 s{sT1}, s{sT1}, s{sE}")
    A(f"s_mul_i32 s{sE}, s{S_KH}, {HB * 16}")
    A(f"s_add_u32 s{sT1}, s{sT1}, s{sE}")
    vo = vPre
    A(f"v_lshrrev_b32 v{vT0}, 4, v{vLane}")
    A(f"v_lshlrev_b32 v{vT0}, 2, v{vT0}")
    A(f"v_add_u32 v{vT0}, s{sT0}, v{vT0}")
    A(f"v_and_b32 v{vo}, 15, v{vLane}")
    A(f"v_add_u32 v{vo}, s{sT1}, v{vo}")
    A(f"v_lshlrev_b32 v{vo}, 11, v{vo}")
    A(f"v_lshl_add_u32 v{vo}, v{vT0}, 1, v{vo}")
    A(f"v_lshlrev_b32 v{vT0}, 2, v{vT0}")
    A(f"v_add_u32 v{vT0}, {5 * 4096}, v{vT0}")
    gbr = vPre + 2; gb2 = gbr + FBW * 4; xr = gb2 + FBW * 4
    A(f"s_mov_b32 s{sE}, 24576")
    for fb in range(FBW):
        A(f"buffer_load_dwordx4 v[{gbr+4*fb}:{gbr+4*fb+3}], v{vT0}, s[64:67], 0 offen offset:{fb * 64} sc1")
        A(f"buffer_load_dwordx4 v[{gb2+4*fb}:{gb2+4*fb+3}], v{vT0}, s[64:67], s{sE} offen offset:{fb * 64} sc1")
    for fb in range(FBW):
        for i in range(HB):
            r = xr + (fb * HB + i) * 2
            A(f"s_mov_b32 s{sE}, {i * 16 * 2048}")
            A(f"buffer_load_dwordx2 v[{r}:{r+1}], v{vo}, s[60:63], s{sE} offen offset:{fb * 32} sc1")
    return 2 * FBW + FBW * HB


def epi2_8(A, g):
    from gen_a import poll_flags
    acc, FBW, MBW = g['acc'], g['FBW'], g['MBW']
    sO, sP, sE, vE2, vPre, vLane, vE = [g[k] for k in "sO sP sE vE2 vPre vLane vE".split()]
    HB = MBW // 2
    NSEND = FBW * HB
    phase = g['cfg']['xphase']
    srd_off(A, 60, sP + 4, sP + 5, WS_XCH, 256 * 8 * NSEND * 1024)
    srd(A, sO, sP + 6, sP + 7, 2048 * 1024 * 2)
    A(f"s_lshl_b32 s{sE}, s2, 3"); A(f"s_add_u32 s{sE}, s{sE}, s{S_WAVE}"); A(f"s_mul_i32 s{sE}, s{sE}, {NSEND * 1024}")
    A(f"v_lshl_add_u32 v{vE}, v{vLane}, 4, s{sE}")
    A(f"s_lshl_b32 s{sE}, s{S_PW}, 3"); A(f"s_add_u32 s{sE}, s{sE}, s{S_WAVE}"); A(f"s_mul_i32 s{sE}, s{sE}, {NSEND * 1024}")
    A(f"v_lshl_add_u32 v{vE+1}, v{vLane}, 4, s{sE}")
    vo = vPre
    gbr = vPre + 2; gb2 = gbr + FBW * 4; xr = gb2 + FBW * 4
    t = vE2

    def path(kh):
        keep = list(range(kh * HB, kh * HB + HB))
        send = list(range((1 - kh) * HB, (1 - kh) * HB + HB))
        for fb in range(FBW):
            for i, mb in enumerate(send):
                a_ = acc(fb, mb)
                A(f"buffer_store_dwordx4 v[{a_}:{a_+3}], v{vE}, s[60:63], 0 offen offset:{(fb * HB + i) * 1024} sc1")
        L = A.newlabel("Lpub")
        A("s_waitcnt vmcnt(0)")
        A("s_barrier")
        A(f"s_cmp_lg_u32 s{S_WAVE}, 0"); A(f"s_cbranch_scc1 {L}")
        A(f"s_lshl_b32 s76, s2, 7"); A(f"s_add_u32 s76, s76, {256 * 128}"); A(f"s_add_u32 s77, s{S_NONCE}, {phase}")
        A(f"v_mov_b32 v{t}, s76"); A(f"v_mov_b32 v{t+1}, s77")
        A("s_mov_b64 exec, 1")
        A(f"buffer_store_dword v{t+1}, v{t}, s[{S_FLAG}:{S_FLAG+3}], 0 offen sc1")
        A("s_mov_b64 exec, -1")
        A.label(L)
        for i in range(0, FBW * 4, 2):
            A(f"v_pk_add_f32 v[{gbr+i}:{gbr+i+1}], v[{gbr+i}:{gbr+i+1}], v[{gb2+i}:{gb2+i+1}]")
            rnd2(A, gbr + i, gbr + i + 1, t)
        A(f"s_lshl_b32 s{sE}, s{S_PW}, 7"); A(f"s_add_u32 s{sE}, s{sE}, {256 * 128}"); A(f"v_mov_b32 v{t}, s{sE}")
        poll_flags(A, S_FLAG, S_NONCE, t, phase, t + 1, 59)
        for fb in range(FBW):
            for i, mb in enumerate(send):
                a_ = acc(fb, mb)
                A(f"buffer_load_dwordx4 v[{a_}:{a_+3}], v{vE+1}, s[60:63], 0 offen offset:{(fb * HB + i) * 1024} sc1")
        n = 0
        for fb in range(FBW):
            for i, mb in enumerate(keep):
                a_ = acc(fb, mb); b_ = acc(fb, send[i])
                r = xr + (fb * HB + i) * 2
                A(f"s_waitcnt vmcnt({NSEND - 1})")
                for h in range(2):
                    tt = t + 4 * h
                    A(f"v_pk_add_f32 v[{a_+2*h}:{a_+2*h+1}], v[{a_+2*h}:{a_+2*h+1}], v[{b_+2*h}:{b_+2*h+1}]")
                    rnd2(A, a_ + 2*h, a_ + 2*h + 1, tt)
                    A(f"v_pk_mul_f32 v[{a_+2*h}:{a_+2*h+1}], v[{a_+2*h}:{a_+2*h+1}], v[{gbr+4*fb+2*h}:{gbr+4*fb+2*h+1}]")
                    rnd2(A, a_ + 2*h, a_ + 2*h + 1, tt)
                    unpack2(A, tt + 2, r + h)
                    A(f"v_pk_add_f32 v[{a_+2*h}:{a_+2*h+1}], v[{a_+2*h}:{a_+2*h+1}], v[{tt+2}:{tt+3}]")
                    A(f"v_cvt_pk_bf16_f32 v{r+h}, v{a_+2*h}, v{a_+2*h+1}")
                A(f"s_mov_b32 s{sE}, {i * 16 * 2048}")
                A(f"buffer_store_dwordx2 v[{r}:{r+1}], v{vo}, s[{sO}:{sO+3}], s{sE} offen offset:{fb * 32}")
                n += 1
    L1 = A.newlabel("Lk1"); L2 = A.newlabel("Lkj")
    A(f"s_cmp_lg_u32 s{S_KH}, 0"); A(f"s_cbranch_scc1 {L1}")
    path(0)
    A(f"s_branch {L2}")
    A.label(L1)
    path(1)
    A.label(L2)


G2_8 = dict(MT=128, WM=2, WN=4, NSUB=1, NW=128, K=1792, KBT=112, RSG=2048, KS=2, R=5, PD=2, LAG=1,
            fs=0, fbits=3, wptr=[KA['w2']], act_off=WS_HH, epilogue=epi2_8, etemps=8, NSET=4,
            hook_pre=pre2_8, pre_regs=2 + 16 + 8, act_sc1=1, stamp0=2, vWoff=143, wbytes=3584 * 2048,
            koff_s=45, xphase=5)


def g2_map(A):
    A("s_and_b32 s17, s2, 7"); A("s_lshr_b32 s18, s2, 3")
    A(f"s_and_b32 s{S_KH}, s18, 1")
    A(f"s_and_b32 s{S_MT}, s17, 3"); A(f"s_lshl_b32 s{S_MT}, s{S_MT}, 2"); A("s_lshr_b32 s19, s18, 1"); A("s_and_b32 s19, s19, 3"); A(f"s_add_u32 s{S_MT}, s{S_MT}, s19")
    A(f"s_lshr_b32 s{S_NT}, s17, 2"); A(f"s_lshl_b32 s{S_NT}, s{S_NT}, 2"); A("s_lshr_b32 s19, s18, 3"); A(f"s_add_u32 s{S_NT}, s{S_NT}, s19")
    A(f"s_xor_b32 s{S_PW}, s2, 8")
    A(f"s_mul_i32 s45, s{S_KH}, 56")
    A(f"s_mul_i32 s44, s45, {32 * 2048}")


def gen_g28test(A, opts):
    import gen_front, gen_a
    from gen_a import nonce_write, nonce_read
    gen_front.STMP[0] = 78; gen_a.TMP[0] = 76
    g2 = dict(G2_8)
    for k, v in opts.items():
        if k.startswith("g2_"): g2[k[3:]] = v
    name = "g28_kernel"
    A.begin_kernel(name)
    Lend = A.newlabel("Lend")
    A("s_cmp_ge_u32 s2, 256"); A(f"s_cbranch_scc1 {Lend}")
    stamp(A, 0)
    A(f"s_load_dwordx4 s[68:71], s[0:1], {KA['dbg']}")
    A("v_lshrrev_b32 v1, 6, v0"); A("s_nop 0"); A(f"v_readfirstlane_b32 s{S_WAVE}, v1")
    A(f"s_mov_b32 {MASK}, 0xffff0000")
    A("s_waitcnt lgkmcnt(0)")
    srd(A, 72, 68, 69, 256)
    srd_off(A, S_FLAG, 70, 71, WS_FLAG + 256 * 128, 512 * 128)
    nonce_write(A, 72, 6)
    nonce_read(A, 72, S_NONCE, 6, 55)
    g2_map(A)
    early_weights8(A, g2, S_NT, 120, 60, koff_s=44)
    A("s_waitcnt vmcnt(0)")
    stamp(A, 1)
    nv, na = gemm8_body(A, g2)
    stamp(A, 4)
    rt_out(A, Lend, S_WAVE)
    A.label(Lend); A("s_endpgm")
    A.end_kernel(name, 144, na, 102, 256, 512, 163840)
```

```python
from gen import *
from gen_front import MASK, rnd2, unpack2, stamp, stamp_out, STAMP

POLL_MAX = 200000


TMP = [38]

def nonce_write(A, sdbg, vt):
    L = A.newlabel("Lnw")
    A("s_cmp_lg_u32 s2, 0"); A(f"s_cbranch_scc1 {L}")
    A(f"s_memrealtime s[{TMP[0]}:{TMP[0]+1}]")
    A("s_waitcnt lgkmcnt(0)")
    A(f"s_lshl_b32 s{TMP[0]}, s{TMP[0]}, 3"); A(f"s_or_b32 s{TMP[0]}, s{TMP[0]}, 8")
    A(f"v_mov_b32 v{vt}, 0"); A(f"v_mov_b32 v{vt+1}, s{TMP[0]}")
    A("v_cmp_eq_u32 vcc, 0, v0")
    A(f"s_and_saveexec_b64 s[{TMP[0]}:{TMP[0]+1}], vcc")
    A(f"s_cbranch_execz {L}_r")
    A(f"buffer_store_dword v{vt+1}, v{vt}, s[{sdbg}:{sdbg+3}], 0 offen sc1")
    A.label(f"{L}_r")
    A(f"s_mov_b64 exec, s[{TMP[0]}:{TMP[0]+1}]")
    A.label(L)


def nonce_read(A, sdbg, snonce, vt, scnt):
    L = A.newlabel("Lnr"); Ld = A.newlabel("Lnd")
    A(f"s_mov_b32 s{scnt}, {POLL_MAX}")
    A(f"v_mov_b32 v{vt}, 0")
    A.label(L)
    A(f"buffer_load_dword v{vt+1}, v{vt}, s[{sdbg}:{sdbg+3}], 0 offen sc1")
    A("s_waitcnt vmcnt(0)")
    A(f"v_readfirstlane_b32 s{snonce}, v{vt+1}")
    A("s_nop 3")
    A(f"s_cmp_lg_u32 s{snonce}, 0")
    A(f"s_cbranch_scc1 {Ld}")
    A(f"s_sub_u32 s{scnt}, s{scnt}, 1"); A(f"s_cmp_lg_u32 s{scnt}, 0")
    A("s_sleep 1")
    A(f"s_cbranch_scc1 {L}")
    A.label(Ld)


def publish_flag(A, sflag, snonce, val, swave, vt):
    L = A.newlabel("Lpub")
    A("s_waitcnt vmcnt(0)")
    A("s_barrier")
    A(f"s_cmp_lg_u32 s{swave}, 0"); A(f"s_cbranch_scc1 {L}")
    A(f"s_lshl_b32 s{TMP[0]}, s2, 7"); A(f"s_add_u32 s{TMP[0]+1}, s{snonce}, {val}")
    A(f"v_mov_b32 v{vt}, s{TMP[0]}"); A(f"v_mov_b32 v{vt+1}, s{TMP[0]+1}")
    A("s_mov_b64 exec, 1")
    A(f"buffer_store_dword v{vt+1}, v{vt}, s[{sflag}:{sflag+3}], 0 offen sc1")
    A("s_mov_b64 exec, -1")
    A.label(L)


PIPE = [1]


def poll_flags(A, sflag, snonce, vaddr, val, vt, scnt):
    L = A.newlabel("Lpoll"); Ld = A.newlabel("Lpd")
    A(f"s_mov_b32 s{scnt}, {POLL_MAX}")
    A(f"s_add_u32 s{TMP[0]}, s{snonce}, {val}")
    if PIPE[0] == 1:
        A.label(L)
        A(f"buffer_load_dword v{vt}, v{vaddr}, s[{sflag}:{sflag+3}], 0 offen sc1")
        A("s_waitcnt vmcnt(0)")
        A(f"v_subrev_u32 v{vt}, s{TMP[0]}, v{vt}")
        A(f"v_cmp_gt_u32 vcc, {8 - val}, v{vt}")
        A("s_nop 1")
        A("s_cmp_eq_u64 vcc, -1")
        A(f"s_cbranch_scc1 {Ld}")
        A(f"s_sub_u32 s{scnt}, s{scnt}, 1"); A(f"s_cmp_lg_u32 s{scnt}, 0")
        A("s_sleep 1")
        A(f"s_cbranch_scc1 {L}")
        A.label(Ld)
        return
    A(f"buffer_load_dword a110, v{vaddr}, s[{sflag}:{sflag+3}], 0 offen sc1")
    A("s_sleep 4")
    A.label(L)
    for r0, r1 in ((110, 111), (111, 110)):
        A(f"buffer_load_dword a{r1}, v{vaddr}, s[{sflag}:{sflag+3}], 0 offen sc1")
        A("s_waitcnt vmcnt(1)")
        A(f"v_accvgpr_read_b32 v{vt}, a{r0}")
        A(f"v_subrev_u32 v{vt}, s{TMP[0]}, v{vt}")
        A(f"v_cmp_gt_u32 vcc, {8 - val}, v{vt}")
        A("s_nop 1")
        A("s_cmp_eq_u64 vcc, -1")
        A(f"s_cbranch_scc1 {Ld}")
    A(f"s_sub_u32 s{scnt}, s{scnt}, 1"); A(f"s_cmp_lg_u32 s{scnt}, 0")
    A(f"s_cbranch_scc1 {L}")
    A.label(Ld)
    A("s_waitcnt vmcnt(0)")


def gen_front_a(A, name="fronta_kernel", prefetch=(1, 1, 0), nearly=0, pfm=1, merged=False, hook_x=None):
    CSZ = 4416
    TCH = 4 * CSZ
    RKV = 4 * TCH
    RCH = 8192
    SIL = RKV + 4 * RCH
    GRED = SIL + 2048
    LDS = GRED + 8192
    OUTS = 4096 + 32
    CHS = 128 + 16
    KVB = RKV
    if not merged:
        A.begin_kernel(name)
        Lend = A.newlabel("Lend")
        A("s_cmp_ge_u32 s2, 256"); A(f"s_cbranch_scc1 {Lend}")
    stamp(A, 0)
    A(f"s_load_dwordx4 s[44:47], s[0:1], {KA['k']}")
    A(f"s_load_dwordx4 s[48:51], s[0:1], {KA['shift']}")
    A(f"s_load_dwordx2 s[52:53], s[0:1], {KA['ssmD']}")
    A(f"s_load_dwordx4 s[56:59], s[0:1], {KA['w1']}")
    A(f"s_load_dwordx4 s[60:63], s[0:1], {KA['w2']}")
    A(f"s_load_dwordx2 s[64:65], s[0:1], {KA['wmod']}")
    A(f"s_load_dwordx4 s[68:71], s[0:1], {KA['dbg']}")
    A("v_lshrrev_b32 v1, 6, v0"); A("v_and_b32 v2, 63, v0"); A("s_nop 0"); A("v_readfirstlane_b32 s16, v1")
    A(f"s_mov_b32 {MASK}, 0xffff0000")
    A("s_and_b32 s41, s2, 7")
    A("s_lshr_b32 s42, s2, 3")
    A("s_lshl_b32 s17, s41, 7"); A("s_lshl_b32 s18, s42, 2"); A("s_add_u32 s17, s17, s18")
    A("v_and_b32 v248, 15, v0")
    A("v_lshrrev_b32 v249, 4, v0")
    A("s_waitcnt lgkmcnt(0)")
    srd(A, 4, 44, 45, 4 << 20)
    srd(A, 8, 46, 47, 4 << 20)
    srd(A, 24, 48, 49, 8192)
    srd_off(A, 20, 70, 71, WS_RKV, 1024 * 5120)
    srd(A, 72, 68, 69, 256)
    srd_off(A, 28, 70, 71, WS_FLAG, 256 * 128)
    A("s_mov_b64 s[32:33], s[28:29]"); A("s_mov_b64 s[34:35], s[30:31]")
    nonce_write(A, 72, 6)
    A("s_lshl_b32 s19, s42, 17"); A("s_lshl_b32 s18, s41, 8"); A("s_add_u32 s19, s19, s18")
    A("v_lshlrev_b32 v3, 13, v249"); A("v_lshl_add_u32 v3, v248, 4, v3"); A("v_add_u32 v3, s19, v3")
    KR, VR, WR = 8, 36, 52
    for i in range(-3, 4):
        if i == 0: vo = 3
        else:
            A(f"v_add_u32 v4, {i * 2048}, v3") if i > 0 else A(f"v_subrev_u32 v4, {-i * 2048}, v3")
            vo = 4
        r = KR + 4 * (i + 3)
        A(f"buffer_load_dwordx4 v[{r}:{r+3}], v{vo}, s[4:7], 0 offen")
        if i >= 0:
            r = VR + 4 * i
            A(f"buffer_load_dwordx4 v[{r}:{r+3}], v{vo}, s[8:11], 0 offen")
    A("s_lshl_b32 s18, s41, 10"); A("v_lshlrev_b32 v4, 6, v248"); A("v_add_u32 v4, s18, v4")
    for q in range(4):
        A(f"buffer_load_dwordx4 v[{WR + 4*q}:{WR + 4*q + 3}], v4, s[24:27], 0 offen offset:{16 * q}")
    A("s_add_u32 s18, s17, s16"); A("s_lshl_b32 s18, s18, 12")
    A("s_add_u32 s12, s50, s18"); A("s_addc_u32 s13, s51, 0"); A("s_and_b32 s13, s13, 0xffff")
    A("s_mov_b32 s14, 4096"); A("s_mov_b32 s15, 0x00020000")
    A("s_lshl_b32 s18, s17, 1")
    A("s_add_u32 s18, s52, s18"); A("s_addc_u32 s19, s53, 0")
    A("s_load_dwordx2 s[76:77], s[18:19], 0")
    ER = 200
    A("v_lshlrev_b32 v5, 4, v2")
    for j in range(4):
        for e in range(3):
            r = ER + j * 12 + e * 4
            A(f"buffer_load_dwordx4 v[{r}:{r+3}], v5, s[12:15], 0 offen offset:{j * 1024 + e * 4}")
    A("v_mov_b32 v6, 0")
    A("buffer_load_dwordx2 v[250:251], v6, s[12:15], 0 offen")
    A("s_waitcnt vmcnt(13)")
    if not merged: stamp(A, 1)
    A("v_mov_b32 v6, 0")
    A("buffer_load_dword v255, v6, s[72:75], 0 offen sc1")
    if pfm:
        srd(A, 28, 64, 65, 1024 * 12288)
        A(f"s_mul_i32 s18, s2, {12 * 4096}")
        A("v_lshlrev_b32 v6, 4, v0"); A("v_add_u32 v6, s18, v6")
        for j in range(12):
            A(f"s_mov_b32 s18, {j * 4096}")
            A(f"buffer_load_dwordx4 a[{112 + 4*j}:{115 + 4*j}], v6, s[28:31], s18 offen")
    WF = 68
    for e in range(8):
        for j in range(4):
            src = WR + 2 * e + (j >> 1)
            dst = WF + (j * 4 + (e >> 1)) * 2 + (e & 1)
            if j & 1: A(f"v_and_b32 v{dst}, {MASK}, v{src}")
            else: A(f"v_lshlrev_b32 v{dst}, 16, v{src}")
    KF = 100
    for i in range(7):
        for p in range(4):
            unpack2(A, KF + i * 8 + 2 * p, KR + 4 * i + p)
    KVF = 156
    for i in range(4):
        for p in range(4):
            d = KVF + i * 8 + 2 * p
            P, Q, TT = 188 + 4 * (p & 1), 190 + 4 * (p & 1), 196 + (p & 1)
            kk = lambda row: KF + row * 8 + 2 * p
            ww = lambda j: WF + (j * 4 + p) * 2
            A(f"v_pk_mul_f32 v[{d}:{d+1}], v[{kk(i)}:{kk(i)+1}], v[{ww(3)}:{ww(3)+1}]")
            rnd2(A, d, d + 1, TT)
            for j in (2, 1, 0):
                A(f"v_pk_mul_f32 v[{P}:{P+1}], v[{kk(i + 3 - j)}:{kk(i + 3 - j)+1}], v[{ww(j)}:{ww(j)+1}]")
                rnd2(A, P, P + 1, TT)
                A(f"v_pk_add_f32 v[{d}:{d+1}], v[{d}:{d+1}], v[{P}:{P+1}]")
                rnd2(A, d, d + 1, TT)
            unpack2(A, Q, VR + 4 * i + p)
            A(f"v_pk_mul_f32 v[{d}:{d+1}], v[{d}:{d+1}], v[{Q}:{Q+1}]")
    A(f"v_mul_u32_u24 v4, {8 * CHS}, v248")
    A("v_lshlrev_b32 v6, 3, v249"); A("v_sub_u32 v4, v4, v6"); A(f"v_add_u32 v4, {KVB + 120}, v4")
    for e in range(8):
        A(f"v_cvt_pk_bf16_f32 v{8 + 2*e}, v{KVF + 3*8 + e}, v{KVF + 2*8 + e}")
        A(f"v_cvt_pk_bf16_f32 v{9 + 2*e}, v{KVF + 1*8 + e}, v{KVF + 0*8 + e}")
        A(f"ds_write_b64 v4, v[{8 + 2*e}:{9 + 2*e}] offset:{e * CHS}")
    A("s_waitcnt lgkmcnt(0)")
    A("s_barrier")
    A("v_lshrrev_b32 v4, 3, v0"); A("v_and_b32 v3, 7, v0")
    A(f"v_mul_u32_u24 v6, {CHS}, v4"); A("v_lshl_add_u32 v6, v3, 4, v6"); A(f"v_add_u32 v6, {KVB}, v6")
    A("v_mul_u32_u24 v7, 5120, v4"); A("v_lshl_add_u32 v7, v3, 4, v7")
    A(f"s_mul_i32 s18, s41, {128 * 5120}")
    A("s_sub_u32 s19, 31, s42"); A("s_mul_i32 s19, s19, 160"); A("s_add_u32 s18, s18, s19")
    A("v_add_u32 v7, s18, v7")
    for j in range(4):
        A(f"ds_read_b128 v[{8 + 4*j}:{11 + 4*j}], v6 offset:{j * 32 * CHS}")
    for j in range(4):
        A(f"s_waitcnt lgkmcnt({3 - j})")
        A(f"s_mov_b32 s18, {j * 32 * 5120}")
        A(f"buffer_store_dwordx4 v[{8 + 4*j}:{11 + 4*j}], v7, s[20:23], s18 offen sc1")
    Lgot = A.newlabel("Lgot")
    A("s_waitcnt vmcnt(0)")
    A("v_readfirstlane_b32 s93, v255")
    A("s_nop 3")
    A("s_cmp_lg_u32 s93, 0"); A(f"s_cbranch_scc1 {Lgot}")
    nonce_read(A, 72, 93, 24, 55)
    A.label(Lgot)
    publish_flag(A, 32, 93, 1, 16, 24)
    if not merged: stamp(A, 2)
    GV = 112
    A("s_cmp_ge_u32 s2, 96"); A("s_cselect_b32 s43, 1, 0")
    A("s_mul_i32 s18, s43, 96"); A("s_sub_u32 s54, s2, s18")
    srd(A, 24, 62, 63, 2048)
    srd(A, 28, 64, 65, 1024 * 12288)
    A("s_cmp_ge_u32 s2, 192"); A("s_cselect_b32 s30, 0, s30"); A("s_cselect_b32 s26, 0, s26")
    A("s_lshl_b32 s18, s43, 10"); A("v_lshlrev_b32 v6, 2, v0"); A("v_add_u32 v6, s18, v6")
    A("buffer_load_dword v252, v6, s[24:27], 0 offen")
    A("v_lshrrev_b32 v125, 3, v0"); A("v_mul_u32_u24 v125, 12288, v125")
    A("v_and_b32 v7, 7, v0"); A("v_lshl_add_u32 v125, v7, 4, v125")
    A("s_lshl_b32 s18, s54, 7"); A(f"s_mul_i32 s19, s43, {512 * 12288}"); A("s_add_u32 s18, s18, s19")
    A("v_add_u32 v125, s18, v125")
    gvl = []
    for j in range(16):
        gvl.append([f"s_mov_b32 s55, {j * 32 * 12288}",
                    f"buffer_load_dwordx4 a[{GV + 4*j}:{GV + 4*j + 3}], v125, s[28:31], s55 offen"])
    pfl = []
    for bi, lo in enumerate((56, 58, 60)):
        npc = prefetch[bi]
        if not npc: continue
        if npc == 1: npc = 7
        A(f"s_mul_i32 s18, s2, {npc * 4096}")
        A(f"v_lshlrev_b32 v{120 + bi}, 4, v0"); A(f"v_add_u32 v{120 + bi}, s18, v{120 + bi}")
        srd(A, 80 + 4 * (bi & 1), lo, lo + 1, 7340032)
        for j in range(npc):
            n = len(pfl)
            pfl.append([f"s_mov_b32 s55, {j * 4096}",
                        f"buffer_load_dwordx4 v[{128 + 4 * (n % 8)}:{131 + 4 * (n % 8)}], v{120 + bi}, s[{80 + 4*(bi & 1)}:{83 + 4*(bi & 1)}], s55 offen"])
    for x in pfl[:nearly]:
        for y in x: A(y)
    pfl = pfl[nearly:]
    A(f"s_mul_i32 s18, s16, {TCH}")
    A("v_add_u32 v6, s18, v5")
    W = 100
    for j in range(4):
        e0, e1, e2 = ER + j * 12, ER + j * 12 + 4, ER + j * 12 + 8
        off = 128 + j * 1024
        Wj = W + (j & 1) * 8
        for q in range(4):
            A(f"v_alignbit_b32 v{Wj + q}, v{e1 + q}, v{e0 + q}, 16")
            A(f"v_alignbit_b32 v{Wj + 4 + q}, v{e2 + q}, v{e1 + q}, 16")
        A(f"ds_write_b128 v6, v[{e0}:{e0+3}] offset:{off}")
        A(f"ds_write_b128 v6, v[{Wj}:{Wj+3}] offset:{off + CSZ}")
        A(f"ds_write_b128 v6, v[{e1}:{e1+3}] offset:{off + 2 * CSZ}")
        A(f"ds_write_b128 v6, v[{Wj+4}:{Wj+7}] offset:{off + 3 * CSZ}")
    Z = 40
    for i in range(16): A(f"v_mov_b32 v{Z + i}, 0")
    A("v_cmp_eq_u32 vcc, 7, v2")
    A("v_lshlrev_b32 v116, 16, v250")
    A("v_alignbit_b32 v117, v251, v250, 16")
    A(f"v_cndmask_b32 v{Z + 7}, 0, v116, vcc")
    A(f"v_cndmask_b32 v{Z + 11}, 0, v250, vcc")
    A(f"v_cndmask_b32 v{Z + 14}, 0, v116, vcc")
    A(f"v_cndmask_b32 v{Z + 15}, 0, v117, vcc")
    A("v_cmp_gt_u32 vcc, 8, v2")
    A("s_and_saveexec_b64 s[22:23], vcc")
    for c in range(4):
        A(f"ds_write_b128 v6, v[{Z + 4*c}:{Z + 4*c + 3}] offset:{c * CSZ}")
    A("s_mov_b64 exec, s[22:23]")
    srd_off(A, 20, 70, 71, WS_RKV, 1024 * 5120)
    A(f"s_mul_i32 s18, s16, {RCH}"); A(f"s_add_u32 s18, s18, {RKV}")
    A("v_add_u32 v7, s18, v5")
    for j in range(3):
        A(f"ds_write_b128 v7, v[{Z}:{Z+3}] offset:{5120 + j * 1024}")
    vTB, vKB = 3, 4
    A("v_and_b32 v253, 15, v2"); A("v_lshrrev_b32 v254, 4, v2")
    A("v_add_u32 v1, 1, v253"); A("v_and_b32 v1, 3, v1")
    A(f"v_mul_u32_u24 v{vTB}, {CSZ - 2}, v1")
    A(f"v_lshl_add_u32 v{vTB}, v253, 1, v{vTB}")
    A(f"v_lshl_add_u32 v{vTB}, v254, 4, v{vTB}")
    A(f"s_mul_i32 s18, s16, {TCH}"); A(f"s_add_u32 s18, s18, 2")
    A(f"v_add_u32 v{vTB}, s18, v{vTB}")
    A("v_sub_u32 v1, 15, v253"); A(f"v_mul_u32_u24 v{vKB}, 160, v1")
    A(f"v_lshl_add_u32 v{vKB}, v254, 4, v{vKB}")
    A(f"s_mul_i32 s18, s16, {RCH}"); A(f"s_add_u32 s18, s18, {RKV}")
    A(f"v_add_u32 v{vKB}, s18, v{vKB}")
    A("v_and_b32 v1, 31, v2"); A("v_lshlrev_b32 v1, 3, v1"); A("v_add_u32 v1, s41, v1"); A("v_lshlrev_b32 v1, 7, v1")
    poll_flags(A, 32, 93, 1, 1, 6, 55)
    if not merged: stamp(A, 3)
    A("s_add_u32 s18, s17, s16"); A("s_mul_i32 s18, s18, 5120")
    for j in range(5):
        A(f"s_add_u32 s19, s18, {j * 1024}")
        A(f"buffer_load_dwordx4 v[{56 + 4*j}:{59 + 4*j}], v5, s[20:23], s19 offen sc1")
    ACC = 8
    for i in range(32): A(f"v_mov_b32 v{ACC + i}, 0")
    for j in range(5):
        A(f"s_waitcnt vmcnt({4 - j})")
        A(f"ds_write_b128 v7, v[{56 + 4*j}:{59 + 4*j}] offset:{j * 1024}")
    npre = max(0, len(pfl) - 16)
    for x in pfl[:npre]:
        for y in x: A(y)
    pfl = pfl[npre:]
    A("s_waitcnt lgkmcnt(0)")
    NR = 10
    def tf(stream, tau): return stream * NR * 4 + ((tau + 2) % NR) * 4
    KVA = 2 * NR * 4
    def kf(p, which, kb): return KVA + p * 16 + (which * 2 + kb) * 4
    NAG = KVA + 32
    def rd_t(stream, tau):
        r = tf(stream, tau)
        off = 32 * (tau + 2)
        return [f"ds_read_b64 a[{r}:{r+1}], v{vTB} offset:{off}", f"ds_read_b64 a[{r+2}:{r+3}], v{vTB} offset:{off + 8}"]
    def rd_kv(p, j):
        res = []
        for which in range(2):
            dm = j + 16 * which
            for kb in range(2):
                r = kf(p, which, kb)
                res.append(f"ds_read_b128 a[{r}:{r+3}], v{vKB} offset:{160 * dm + 64 * (1 - kb)}")
        return res
    def reads_for(j, first=False):
        res = rd_kv(j & 1, j)
        for st in range(2):
            d = j + 16 * st
            for tau in range(4 * d - (2 if first else 0), 4 * d + 4):
                res += rd_t(st, tau)
        return res
    for x in reads_for(0, True): A(x)
    for j in range(16):
        A("s_waitcnt lgkmcnt(0)")
        mf = []
        p = j & 1
        for kb in range(2):
            for mb in range(4):
                t_lo = tf(0, 4 * j + mb - 2 * kb); t_hi = tf(1, 4 * (j + 16) + mb - 2 * kb)
                a1 = ACC + (mb * 2 + 1) * 4; a0 = ACC + (mb * 2) * 4
                k0 = kf(p, 0, kb); k1 = kf(p, 1, kb)
                mf.append(f"v_mfma_f32_16x16x32_bf16 v[{a1}:{a1+3}], a[{t_lo}:{t_lo+3}], a[{k0}:{k0+3}], v[{a1}:{a1+3}]")
                mf.append(f"v_mfma_f32_16x16x32_bf16 v[{a0}:{a0+3}], a[{t_lo}:{t_lo+3}], a[{k1}:{k1+3}], v[{a0}:{a0+3}]")
                mf.append(f"v_mfma_f32_16x16x32_bf16 v[{a1}:{a1+3}], a[{t_hi}:{t_hi+3}], a[{k1}:{k1+3}], v[{a1}:{a1+3}]")
        side = {}
        if j < 15:
            for i, x in enumerate(reads_for(j + 1)):
                side.setdefault(i, []).append(x)
        side.setdefault(20, []).extend(gvl[j])
        if j < len(pfl):
            side.setdefault(22, []).extend(pfl[j])
        for x in interleave(mf, side): A(x)
    A("s_nop 7"); A("s_nop 7")
    if not merged: stamp(A, 4)
    if hook_x: hook_x(A)
    if not merged: A("s_barrier")
    A("v_mul_u32_u24 v1, 24, v254")
    A(f"v_sub_u32 v5, v{vKB}, v1"); A("v_add_u32 v5, 24, v5")
    KVR = 48
    for mb in range(4):
        for nb in range(2):
            r = KVR + (mb * 2 + nb) * 2
            A(f"ds_read_b64 v[{r}:{r+1}], v5 offset:{2560 * (1 - nb) + 32 * (3 - mb)}")
    A("s_lshr_b32 s18, s16, 1"); A("s_cmp_eq_u32 s18, 0"); A("s_cselect_b32 s78, s76, s77")
    A("s_and_b32 s18, s16, 1")
    A("s_lshl_b32 s19, s78, 16"); A("s_and_b32 s78, s78, 0xffff0000"); A("s_cmp_eq_u32 s18, 0"); A("s_cselect_b32 s78, s19, s78")
    A("s_mov_b32 s79, s78")
    A("v_lshlrev_b32 v1, 7, v253"); A("v_lshl_add_u32 v1, v254, 3, v1")
    A(f"s_mul_i32 s18, s16, {TCH if merged else OUTS}"); A("v_add_u32 v1, s18, v1")
    A("s_waitcnt lgkmcnt(0)")
    for mb in range(4):
        for nb in range(2):
            a_ = ACC + (mb * 2 + nb) * 4
            r = KVR + (mb * 2 + nb) * 2
            u = 64 + ((mb * 2 + nb) & 1) * 8
            rnd2(A, a_, a_ + 1, u + 4); rnd2(A, a_ + 2, a_ + 3, u + 5)
            A(f"v_and_b32 v{u}, {MASK}, v{r+1}"); A(f"v_lshlrev_b32 v{u+1}, 16, v{r+1}")
            A(f"v_and_b32 v{u+2}, {MASK}, v{r}"); A(f"v_lshlrev_b32 v{u+3}, 16, v{r}")
            A(f"v_pk_mul_f32 v[{u}:{u+1}], v[{u}:{u+1}], s[78:79]")
            A(f"v_pk_mul_f32 v[{u+2}:{u+3}], v[{u+2}:{u+3}], s[78:79]")
            rnd2(A, u, u + 1, u + 4); rnd2(A, u + 2, u + 3, u + 5)
            A(f"v_pk_add_f32 v[{a_}:{a_+1}], v[{a_}:{a_+1}], v[{u}:{u+1}]")
            A(f"v_pk_add_f32 v[{a_+2}:{a_+3}], v[{a_+2}:{a_+3}], v[{u+2}:{u+3}]")
            A(f"v_cvt_pk_bf16_f32 v{u+6}, v{a_}, v{a_+1}")
            A(f"v_cvt_pk_bf16_f32 v{u+7}, v{a_+2}, v{a_+3}")
            A(f"ds_write_b64 v1, v[{u+6}:{u+7}] offset:{2048 * nb + 32 * mb}")
    if merged:
        srd_off(A, 4, 70, 71, WS_YP, 4 << 20)
        A(f"s_mul_i32 s18, s16, {TCH}"); A("v_lshlrev_b32 v5, 4, v2"); A("v_add_u32 v1, s18, v5")
        A("s_waitcnt lgkmcnt(0)")
        for j in range(4):
            A(f"ds_read_b128 v[{48 + 4*j}:{51 + 4*j}], v1 offset:{j * 1024}")
        A("s_add_u32 s18, s17, s16"); A("s_lshl_b32 s18, s18, 12")
        for j in range(4):
            A(f"s_waitcnt lgkmcnt({3 - j})")
            A(f"buffer_store_dwordx4 v[{48 + 4*j}:{51 + 4*j}], v5, s[4:7], s18 offen offset:{j * 1024} sc1")
    Lns = A.newlabel("Lns")
    A("s_cmp_ge_u32 s2, 192"); A(f"s_cbranch_scc1 {Lns}")
    unpack2(A, 80, 252)
    for i in range(2): A(f"v_mul_f32 v{82 + i}, 0xbfb8aa3b, v{80 + i}")
    for i in range(2): A(f"v_exp_f32 v{82 + i}, v{82 + i}")
    A("s_nop 0")
    for i in range(2): A(f"v_add_f32 v{82 + i}, 1.0, v{82 + i}")
    for i in range(2): A(f"v_rcp_f32 v{82 + i}, v{82 + i}")
    A("s_nop 0")
    for i in range(2): A(f"v_mul_f32 v{82 + i}, v{82 + i}, v{80 + i}")
    rnd2(A, 82, 83, 84)
    A("v_lshlrev_b32 v80, 1, v0"); A("v_and_b32 v81, 31, v80"); A("v_lshlrev_b32 v81, 6, v81")
    A("v_lshrrev_b32 v80, 5, v80"); A("v_lshl_add_u32 v81, v80, 2, v81"); A(f"v_add_u32 v81, {SIL}, v81")
    for i in range(2): A(f"ds_write_b32 v81, v{82 + i} offset:{i * 64}")
    A.label(Lns)
    A("s_waitcnt lgkmcnt(0)")
    A("s_barrier")
    if not merged:
        srd_off(A, 4, 70, 71, WS_YP, 4 << 20)
        A("v_lshlrev_b32 v1, 3, v0")
        for j in range(2):
            for c in range(4):
                r = 48 + (j * 4 + c) * 2
                A(f"ds_read_b64 v[{r}:{r+1}], v1 offset:{c * OUTS + j * 2048}")
        A("v_lshlrev_b32 v5, 13, v0")
        A("s_lshl_b32 s18, s17, 1"); A("v_add_u32 v5, s18, v5")
        A("s_mov_b32 s18, 0x05040100"); A("s_mov_b32 s19, 0x07060302")
        A("s_waitcnt lgkmcnt(0)")
        for j in range(2):
            b = 48 + j * 8
            o = 64 + j * 8
            for rr in range(4):
                sel = "s18" if rr % 2 == 0 else "s19"
                dw = rr >> 1
                A(f"v_perm_b32 v{o + 2*rr}, v{b + 2 + dw}, v{b + dw}, {sel}")
                A(f"v_perm_b32 v{o + 2*rr + 1}, v{b + 6 + dw}, v{b + 4 + dw}, {sel}")
            for rr in range(4):
                A(f"s_mov_b32 s20, {j * 1024 * 2048 + (rr >> 1) * 4096}")
                A(f"buffer_store_dwordx2 v[{o + 2*rr}:{o + 2*rr + 1}], v5, s[4:7], s20 offen offset:{(rr & 1) * 2048}{' sc1' if merged else ''}")
    if not merged: stamp(A, 5)
    Lfin = A.newlabel("Lfin")
    A("s_cmp_ge_u32 s2, 192"); A(f"s_cbranch_scc1 {Lfin}")
    A("v_lshrrev_b32 v1, 3, v0"); A("v_lshlrev_b32 v1, 6, v1"); A(f"v_add_u32 v1, {SIL}, v1")
    SV = 80
    for q in range(4):
        A(f"ds_read_b128 v[{SV + 4*q}:{SV + 4*q + 3}], v1 offset:{16 * q}")
    GA_ = 96
    for i in range(8): A(f"v_mov_b32 v{GA_ + i}, 0")
    A("s_waitcnt vmcnt(0) lgkmcnt(0)")
    for j in range(16):
        sj = SV + j
        base = sj & ~1
        sel = "op_sel:[0,0,0] op_sel_hi:[1,0,1]" if sj % 2 == 0 else "op_sel:[0,1,0] op_sel_hi:[1,1,1]"
        for q in range(4):
            A(f"v_accvgpr_read_b32 v{112 + q}, a{GV + 4 * j + q}")
        for q in range(4):
            unpack2(A, 104 + 2 * q, 112 + q)
        for q in range(4):
            u = 104 + 2 * q
            A(f"v_pk_fma_f32 v[{GA_ + 2*q}:{GA_ + 2*q + 1}], v[{u}:{u+1}], v[{base}:{base+1}], v[{GA_ + 2*q}:{GA_ + 2*q + 1}] {sel}")
    A("v_lshlrev_b32 v1, 5, v0"); A(f"v_add_u32 v1, {GRED}, v1")
    A(f"ds_write_b128 v1, v[{GA_}:{GA_+3}]")
    A(f"ds_write_b128 v1, v[{GA_+4}:{GA_+7}] offset:16")
    A("s_waitcnt lgkmcnt(0)")
    A("s_barrier")
    A("s_cmp_lg_u32 s16, 0"); A(f"s_cbranch_scc1 {Lfin}")
    A("v_lshlrev_b32 v1, 2, v2"); A(f"v_add_u32 v6, {GRED}, v1")
    for rg in range(32):
        A(f"ds_read_b32 v{80 + rg}, v6 offset:{rg * 256}")
    A("s_waitcnt lgkmcnt(0)")
    for st in (16, 8, 4, 2, 1):
        for i in range(st):
            A(f"v_add_f32 v{80 + i}, v{80 + i}, v{80 + i + st}")
    srd_off(A, 8, 70, 71, WS_MOD, 2 * 6144 * 4)
    A("s_lshl_b32 s18, s54, 8"); A("s_mul_i32 s19, s43, 24576"); A("s_add_u32 s18, s18, s19")
    A("v_add_u32 v1, s18, v1")
    A(f"buffer_store_dword v80, v1, s[8:11], 0 offen{' sc1' if merged else ''}")
    A.label(Lfin)
    if merged: return
    rt_out(A, Lend, 16)
    A.label(Lend); A("s_endpgm")
    A.end_kernel(name, 256, 176, 102, 256, 256, LDS)
```

```python
from gen import *
import gen_front, gen_a
from gen_front import MASK, rnd2, unpack2, wave_sum_multi, stamp
from gen_a import nonce_write, nonce_read, publish_flag, poll_flags, POLL_MAX
from gen2 import lane_id, S_WAVE, S_MT, S_NT, S_FLAG, S_NONCE, MBO
from gen8 import *

CSZ = 4416
TCH = 4 * CSZ
RKV = 4 * TCH
RCH = 8192
SIL = RKV + 4 * RCH
GRED = SIL + 2048
GCNT = GRED + 8192
CHS = 128 + 16
XE = 128


def lds_sync(A, cnt_addr, n, va, vb, sc):
    L = A.newlabel("Lls"); Ld = A.newlabel("Llsd")
    A(f"v_mov_b32 v{va}, {cnt_addr}"); A(f"v_mov_b32 v{vb}, 1")
    A("s_mov_b64 exec, 1")
    A(f"ds_add_u32 v{va}, v{vb}")
    A("s_mov_b64 exec, -1")
    A(f"s_mov_b32 s{sc}, {POLL_MAX * 8}")
    A.label(L)
    A(f"ds_read_b32 v{vb}, v{va}")
    A("s_waitcnt lgkmcnt(0)")
    A(f"v_readfirstlane_b32 s{sc+1}, v{vb}")
    A("s_nop 3")
    A(f"s_cmp_ge_u32 s{sc+1}, {n}"); A(f"s_cbranch_scc1 {Ld}")
    A(f"s_sub_u32 s{sc}, s{sc}, 1"); A(f"s_cmp_lg_u32 s{sc}, 0"); A(f"s_cbranch_scc1 {L}")
    A.label(Ld)


def x_load(A, vlane):
    A(f"s_load_dwordx2 s[80:81], s[0:1], {KA['q']}")
    A(f"s_lshl_b32 s82, s{S_MT}, 4"); A(f"s_add_u32 s82, s82, s{S_NT}")
    A("s_lshl_b32 s82, s82, 3"); A(f"s_add_u32 s82, s82, s{S_WAVE}")
    A("s_lshl_b32 s82, s82, 11")
    A(f"v_lshlrev_b32 v136, 4, v{vlane}"); A("v_add_u32 v136, s82, v136")
    A("s_waitcnt lgkmcnt(0)")
    A("s_and_b32 s81, s81, 0xffff"); A(f"s_mov_b32 s82, {4 << 20}"); A("s_mov_b32 s83, 0x00020000")
    for h in range(2):
        A(f"buffer_load_dwordx4 v[{XE + h*4}:{XE + h*4 + 3}], v136, s[80:83], 0 offen offset:{h * 1024}")


def part_a_main(A, opts):
    KVB = RKV
    A("v_and_b32 v130, 15, v0")
    A("v_lshrrev_b32 v131, 4, v0")
    A("s_lshl_b32 s19, s42, 17"); A("s_lshl_b32 s18, s41, 8"); A("s_add_u32 s19, s19, s18")
    A("v_lshlrev_b32 v3, 13, v131"); A("v_lshl_add_u32 v3, v130, 4, v3"); A("v_add_u32 v3, s19, v3")
    KR, VR, WR = 8, 36, 52
    for i in range(-3, 4):
        if i == 0: vo = 3
        else:
            A(f"v_add_u32 v4, {i * 2048}, v3") if i > 0 else A(f"v_subrev_u32 v4, {-i * 2048}, v3")
            vo = 4
        r = KR + 4 * (i + 3)
        A(f"buffer_load_dwordx4 v[{r}:{r+3}], v{vo}, s[4:7], 0 offen")
        if i >= 0:
            r = VR + 4 * i
            A(f"buffer_load_dwordx4 v[{r}:{r+3}], v{vo}, s[8:11], 0 offen")
    A("s_lshl_b32 s18, s41, 10"); A("v_lshlrev_b32 v4, 6, v130"); A("v_add_u32 v4, s18, v4")
    for q in range(4):
        A(f"buffer_load_dwordx4 v[{WR + 4*q}:{WR + 4*q + 3}], v4, s[24:27], 0 offen offset:{16 * q}")
    A("s_add_u32 s18, s17, s16"); A("s_lshl_b32 s18, s18, 12")
    A("s_add_u32 s12, s50, s18"); A("s_addc_u32 s13, s51, 0"); A("s_and_b32 s13, s13, 0xffff")
    A("s_mov_b32 s14, 4096"); A("s_mov_b32 s15, 0x00020000")
    A("s_lshl_b32 s18, s17, 1")
    A("s_add_u32 s18, s52, s18"); A("s_addc_u32 s19, s53, 0")
    A("s_load_dwordx2 s[76:77], s[18:19], 0")
    A("v_lshlrev_b32 v5, 4, v2")
    for j in range(4):
        for e in range(3):
            r = j * 12 + e * 4
            A(f"buffer_load_dwordx4 a[{r}:{r+3}], v5, s[12:15], 0 offen offset:{j * 1024 + e * 4}")
    A("v_mov_b32 v6, 0")
    A("buffer_load_dwordx2 v[132:133], v6, s[12:15], 0 offen")
    A("s_waitcnt vmcnt(13)")
    if opts.get('st5'): stamp(A, 1)
    A("buffer_load_dword v137, v6, s[72:75], 0 offen sc1")
    WF, KF, KVF = 68, 76, 98
    for p in range(4):
        for e in (2 * p, 2 * p + 1):
            for j in range(4):
                src = WR + 2 * e + (j >> 1)
                dst = WF + j * 2 + (e & 1)
                if j & 1: A(f"v_and_b32 v{dst}, {MASK}, v{src}")
                else: A(f"v_lshlrev_b32 v{dst}, 16, v{src}")
        for i in range(7):
            unpack2(A, KF + i * 2, KR + 4 * i + p)
        for i in range(4):
            d = KVF + i * 8 + 2 * p
            P, Q, TT = 90 + 4 * (i & 1), 92 + 4 * (i & 1), 138 + (i & 1)
            kk = lambda row: KF + row * 2
            ww = lambda j: WF + j * 2
            A(f"v_pk_mul_f32 v[{d}:{d+1}], v[{kk(i)}:{kk(i)+1}], v[{ww(3)}:{ww(3)+1}]")
            rnd2(A, d, d + 1, TT)
            for j in (2, 1, 0):
                A(f"v_pk_mul_f32 v[{P}:{P+1}], v[{kk(i + 3 - j)}:{kk(i + 3 - j)+1}], v[{ww(j)}:{ww(j)+1}]")
                rnd2(A, P, P + 1, TT)
                A(f"v_pk_add_f32 v[{d}:{d+1}], v[{d}:{d+1}], v[{P}:{P+1}]")
                rnd2(A, d, d + 1, TT)
            unpack2(A, Q, VR + 4 * i + p)
            A(f"v_pk_mul_f32 v[{d}:{d+1}], v[{d}:{d+1}], v[{Q}:{Q+1}]")
    A(f"v_mul_u32_u24 v4, {8 * CHS}, v130")
    A("v_lshlrev_b32 v6, 3, v131"); A("v_sub_u32 v4, v4, v6"); A(f"v_add_u32 v4, {KVB + 120}, v4")
    for e in range(8):
        A(f"v_cvt_pk_bf16_f32 v{8 + 2*e}, v{KVF + 3*8 + e}, v{KVF + 2*8 + e}")
        A(f"v_cvt_pk_bf16_f32 v{9 + 2*e}, v{KVF + 1*8 + e}, v{KVF + 0*8 + e}")
        A(f"ds_write_b64 v4, v[{8 + 2*e}:{9 + 2*e}] offset:{e * CHS}")
    A("s_waitcnt lgkmcnt(0)")
    lds_sync(A, GCNT + 4, 4, 6, 7, 18)
    A("v_lshrrev_b32 v4, 3, v0"); A("v_and_b32 v3, 7, v0")
    A(f"v_mul_u32_u24 v6, {CHS}, v4"); A("v_lshl_add_u32 v6, v3, 4, v6"); A(f"v_add_u32 v6, {KVB}, v6")
    A("v_mul_u32_u24 v7, 5120, v4"); A("v_lshl_add_u32 v7, v3, 4, v7")
    A(f"s_mul_i32 s18, s41, {128 * 5120}")
    A("s_sub_u32 s19, 31, s42"); A("s_mul_i32 s19, s19, 160"); A("s_add_u32 s18, s18, s19")
    A("v_add_u32 v7, s18, v7")
    for j in range(4):
        A(f"ds_read_b128 v[{8 + 4*j}:{11 + 4*j}], v6 offset:{j * 32 * CHS}")
    for j in range(4):
        A(f"s_waitcnt lgkmcnt({3 - j})")
        A(f"s_mov_b32 s18, {j * 32 * 5120}")
        A(f"buffer_store_dwordx4 v[{8 + 4*j}:{11 + 4*j}], v7, s[20:23], s18 offen sc1")
    Lgot = A.newlabel("Lgot")
    A("s_waitcnt vmcnt(0)")
    A(f"v_readfirstlane_b32 s{S_NONCE}, v137")
    A("s_nop 3")
    A(f"s_cmp_lg_u32 s{S_NONCE}, 0"); A(f"s_cbranch_scc1 {Lgot}")
    nonce_read(A, 72, S_NONCE, 24, 55)
    A.label(Lgot)
    lds_sync(A, GCNT + 8, 4, 6, 7, 18)
    Lp1 = A.newlabel("Lp1")
    A(f"s_cmp_lg_u32 s16, 0"); A(f"s_cbranch_scc1 {Lp1}")
    A(f"s_lshl_b32 s38, s2, 7"); A(f"s_add_u32 s39, s{S_NONCE}, 1")
    A("v_mov_b32 v24, s38"); A("v_mov_b32 v25, s39")
    A("s_mov_b64 exec, 1")
    A("buffer_store_dword v25, v24, s[32:35], 0 offen sc1")
    A("s_mov_b64 exec, -1")
    A.label(Lp1)
    if opts.get('st5'): stamp(A, 2)
    A(f"s_mul_i32 s18, s16, {TCH}")
    A("v_add_u32 v6, s18, v5")
    for j in range(4):
        E = 40 + (j & 1) * 24
        for q in range(12): A(f"v_accvgpr_read_b32 v{E + q}, a{j * 12 + q}")
        e0, e1, e2, Wj = E, E + 4, E + 8, E + 12
        off = 128 + j * 1024
        for q in range(4):
            A(f"v_alignbit_b32 v{Wj + q}, v{e1 + q}, v{e0 + q}, 16")
            A(f"v_alignbit_b32 v{Wj + 4 + q}, v{e2 + q}, v{e1 + q}, 16")
        A(f"ds_write_b128 v6, v[{e0}:{e0+3}] offset:{off}")
        A(f"ds_write_b128 v6, v[{Wj}:{Wj+3}] offset:{off + CSZ}")
        A(f"ds_write_b128 v6, v[{e1}:{e1+3}] offset:{off + 2 * CSZ}")
        A(f"ds_write_b128 v6, v[{Wj+4}:{Wj+7}] offset:{off + 3 * CSZ}")
    Z = 96
    for i in range(16): A(f"v_mov_b32 v{Z + i}, 0")
    A("v_cmp_eq_u32 vcc, 7, v2")
    A("v_lshlrev_b32 v116, 16, v132")
    A("v_alignbit_b32 v117, v133, v132, 16")
    A(f"v_cndmask_b32 v{Z + 7}, 0, v116, vcc")
    A(f"v_cndmask_b32 v{Z + 11}, 0, v132, vcc")
    A(f"v_cndmask_b32 v{Z + 14}, 0, v116, vcc")
    A(f"v_cndmask_b32 v{Z + 15}, 0, v117, vcc")
    A("v_cmp_gt_u32 vcc, 8, v2")
    A("s_and_saveexec_b64 s[38:39], vcc")
    for c in range(4):
        A(f"ds_write_b128 v6, v[{Z + 4*c}:{Z + 4*c + 3}] offset:{c * CSZ}")
    A("s_mov_b64 exec, s[38:39]")
    A(f"s_mul_i32 s18, s16, {RCH}"); A(f"s_add_u32 s18, s18, {RKV}")
    A("v_add_u32 v7, s18, v5")
    for j in range(3):
        A(f"ds_write_b128 v7, v[{Z}:{Z+3}] offset:{5120 + j * 1024}")
    vTB, vKB = 3, 4
    A("v_and_b32 v134, 15, v2"); A("v_lshrrev_b32 v135, 4, v2")
    A("v_add_u32 v1, 1, v134"); A("v_and_b32 v1, 3, v1")
    A(f"v_mul_u32_u24 v{vTB}, {CSZ - 2}, v1")
    A(f"v_lshl_add_u32 v{vTB}, v134, 1, v{vTB}")
    A(f"v_lshl_add_u32 v{vTB}, v135, 4, v{vTB}")
    A(f"s_mul_i32 s18, s16, {TCH}"); A(f"s_add_u32 s18, s18, 2")
    A(f"v_add_u32 v{vTB}, s18, v{vTB}")
    A("v_sub_u32 v1, 15, v134"); A(f"v_mul_u32_u24 v{vKB}, 160, v1")
    A(f"v_lshl_add_u32 v{vKB}, v135, 4, v{vKB}")
    A(f"s_mul_i32 s18, s16, {RCH}"); A(f"s_add_u32 s18, s18, {RKV}")
    A(f"v_add_u32 v{vKB}, s18, v{vKB}")
    A("v_mov_b32 v120, v134"); A("v_mov_b32 v121, v135")
    A("v_and_b32 v1, 31, v2"); A("v_lshlrev_b32 v1, 3, v1"); A("v_add_u32 v1, s41, v1"); A("v_lshlrev_b32 v1, 7, v1")
    poll_flags(A, 32, S_NONCE, 1, 1, 6, 55)
    if opts.get('st5'): stamp(A, 3)
    A("s_add_u32 s18, s17, s16"); A("s_mul_i32 s18, s18, 5120")
    for j in range(5):
        A(f"s_add_u32 s19, s18, {j * 1024}")
        A(f"buffer_load_dwordx4 v[{56 + 4*j}:{59 + 4*j}], v5, s[20:23], s19 offen sc1")
    x_load(A, 2)
    ACC = 8
    for i in range(32): A(f"v_mov_b32 v{ACC + i}, 0")
    for j in range(5):
        A(f"s_waitcnt vmcnt({6 - j})")
        A(f"ds_write_b128 v7, v[{56 + 4*j}:{59 + 4*j}] offset:{j * 1024}")
    A("s_waitcnt lgkmcnt(0)")
    NR = 10
    def tf(stream, tau): return stream * NR * 4 + ((tau + 2) % NR) * 4
    KVA = 2 * NR * 4
    def kf(p, which, kb): return KVA + p * 16 + (which * 2 + kb) * 4
    def rd_t(stream, tau):
        r = tf(stream, tau)
        off = 32 * (tau + 2)
        return [f"ds_read_b64 a[{r}:{r+1}], v{vTB} offset:{off}", f"ds_read_b64 a[{r+2}:{r+3}], v{vTB} offset:{off + 8}"]
    def rd_kv(p, j):
        res = []
        for which in range(2):
            dm = j + 16 * which
            for kb in range(2):
                r = kf(p, which, kb)
                res.append(f"ds_read_b128 a[{r}:{r+3}], v{vKB} offset:{160 * dm + 64 * (1 - kb)}")
        return res
    def reads_for(j, first=False):
        res = rd_kv(j & 1, j)
        for st in range(2):
            d = j + 16 * st
            for tau in range(4 * d - (2 if first else 0), 4 * d + 4):
                res += rd_t(st, tau)
        return res
    for x in reads_for(0, True): A(x)
    for j in range(16):
        A("s_waitcnt lgkmcnt(0)")
        mf = []
        p = j & 1
        for kb in range(2):
            for mb in range(4):
                t_lo = tf(0, 4 * j + mb - 2 * kb); t_hi = tf(1, 4 * (j + 16) + mb - 2 * kb)
                a1 = ACC + (mb * 2 + 1) * 4; a0 = ACC + (mb * 2) * 4
                k0 = kf(p, 0, kb); k1 = kf(p, 1, kb)
                mf.append(f"v_mfma_f32_16x16x32_bf16 v[{a1}:{a1+3}], a[{t_lo}:{t_lo+3}], a[{k0}:{k0+3}], v[{a1}:{a1+3}]")
                mf.append(f"v_mfma_f32_16x16x32_bf16 v[{a0}:{a0+3}], a[{t_lo}:{t_lo+3}], a[{k1}:{k1+3}], v[{a0}:{a0+3}]")
                mf.append(f"v_mfma_f32_16x16x32_bf16 v[{a1}:{a1+3}], a[{t_hi}:{t_hi+3}], a[{k1}:{k1+3}], v[{a1}:{a1+3}]")
        side = {}
        if j < 15:
            for i, x in enumerate(reads_for(j + 1)):
                side.setdefault(i, []).append(x)
        for x in interleave(mf, side): A(x)
    A("s_nop 7"); A("s_nop 7")
    if opts.get('st5'): stamp(A, 4)
    A("v_mul_u32_u24 v1, 24, v121")
    A(f"v_sub_u32 v5, v{vKB}, v1"); A("v_add_u32 v5, 24, v5")
    KVR = 48
    for mb in range(4):
        for nb in range(2):
            r = KVR + (mb * 2 + nb) * 2
            A(f"ds_read_b64 v[{r}:{r+1}], v5 offset:{2560 * (1 - nb) + 32 * (3 - mb)}")
    A("s_lshr_b32 s18, s16, 1"); A("s_cmp_eq_u32 s18, 0"); A("s_cselect_b32 s78, s76, s77")
    A("s_and_b32 s18, s16, 1")
    A("s_lshl_b32 s19, s78, 16"); A("s_and_b32 s78, s78, 0xffff0000"); A("s_cmp_eq_u32 s18, 0"); A("s_cselect_b32 s78, s19, s78")
    A("s_mov_b32 s79, s78")
    A("v_lshlrev_b32 v1, 7, v120"); A("v_lshl_add_u32 v1, v121, 3, v1")
    A(f"s_mul_i32 s18, s16, {TCH}"); A("v_add_u32 v1, s18, v1")
    A("s_waitcnt lgkmcnt(0)")
    for mb in range(4):
        for nb in range(2):
            a_ = ACC + (mb * 2 + nb) * 4
            r = KVR + (mb * 2 + nb) * 2
            u = 64 + ((mb * 2 + nb) & 1) * 8
            rnd2(A, a_, a_ + 1, u + 4); rnd2(A, a_ + 2, a_ + 3, u + 5)
            A(f"v_and_b32 v{u}, {MASK}, v{r+1}"); A(f"v_lshlrev_b32 v{u+1}, 16, v{r+1}")
            A(f"v_and_b32 v{u+2}, {MASK}, v{r}"); A(f"v_lshlrev_b32 v{u+3}, 16, v{r}")
            A(f"v_pk_mul_f32 v[{u}:{u+1}], v[{u}:{u+1}], s[78:79]")
            A(f"v_pk_mul_f32 v[{u+2}:{u+3}], v[{u+2}:{u+3}], s[78:79]")
            rnd2(A, u, u + 1, u + 4); rnd2(A, u + 2, u + 3, u + 5)
            A(f"v_pk_add_f32 v[{a_}:{a_+1}], v[{a_}:{a_+1}], v[{u}:{u+1}]")
            A(f"v_pk_add_f32 v[{a_+2}:{a_+3}], v[{a_+2}:{a_+3}], v[{u+2}:{u+3}]")
            A(f"v_cvt_pk_bf16_f32 v{u+6}, v{a_}, v{a_+1}")
            A(f"v_cvt_pk_bf16_f32 v{u+7}, v{a_+2}, v{a_+3}")
            A(f"ds_write_b64 v1, v[{u+6}:{u+7}] offset:{2048 * nb + 32 * mb}")
    srd_off(A, 4, 70, 71, WS_YP, 4 << 20)
    A(f"s_mul_i32 s18, s16, {TCH}"); A("v_lshlrev_b32 v5, 4, v2"); A("v_add_u32 v1, s18, v5")
    A("s_waitcnt lgkmcnt(0)")
    for j in range(4):
        A(f"ds_read_b128 v[{48 + 4*j}:{51 + 4*j}], v1 offset:{j * 1024}")
    A("s_add_u32 s18, s17, s16"); A("s_lshl_b32 s18, s18, 12")
    for j in range(4):
        A(f"s_waitcnt lgkmcnt({3 - j})")
        A(f"buffer_store_dwordx4 v[{48 + 4*j}:{51 + 4*j}], v5, s[4:7], s18 offen offset:{j * 1024} sc1")


def part_a_aux(A, opts):
    GV = 64
    A("v_subrev_u32 v3, 256, v0")
    A("s_sub_u32 s43, s16, 4")
    A("s_cmp_ge_u32 s2, 96"); A("s_cselect_b32 s54, 1, 0")
    A("s_mul_i32 s18, s54, 96"); A("s_sub_u32 s55, s2, s18")
    srd(A, 24, 62, 63, 2048)
    srd(A, 28, 64, 65, 1024 * 12288)
    A("s_cmp_ge_u32 s2, 192"); A("s_cselect_b32 s30, 0, s30"); A("s_cselect_b32 s26, 0, s26")
    if opts.get('aux_sleep', 0):
        for _ in range(opts['aux_sleep']): A("s_sleep 16")
    A("v_lshlrev_b32 v4, 1, v2")
    for e in range(2):
        A(f"v_add_u32 v5, {e}, v4")
        A("v_lshrrev_b32 v6, 4, v5"); A("v_and_b32 v5, 15, v5"); A("v_lshl_add_u32 v5, v5, 5, v6")
        A("s_lshl_b32 s18, s43, 3"); A("s_lshl_b32 s19, s54, 9"); A("s_add_u32 s18, s18, s19")
        A("v_add_u32 v5, s18, v5"); A("v_lshlrev_b32 v5, 1, v5")
        A(f"buffer_load_ushort v{8 + e}, v5, s[24:27], 0 offen")
    x_load(A, 2)
    A("s_waitcnt vmcnt(0)")
    A("v_lshrrev_b32 v6, 3, v3"); A("v_mul_u32_u24 v6, 12288, v6")
    A("v_and_b32 v7, 7, v3"); A("v_lshl_add_u32 v6, v7, 4, v6")
    A("s_lshl_b32 s18, s55, 7"); A(f"s_mul_i32 s19, s54, {512 * 12288}"); A("s_add_u32 s18, s18, s19")
    A("v_add_u32 v6, s18, v6")
    A("v_mov_b32 v138, v6")
    A("v_mov_b32 v6, 0")
    A("buffer_load_dword v137, v6, s[72:75], 0 offen sc1")
    gq = opts.get('gq', 16)
    def gload(j):
        A(f"s_mov_b32 s18, {j * 32 * 12288}")
        A(f"buffer_load_dwordx4 v[{GV + 4*j}:{GV + 4*j + 3}], v138, s[28:31], s18 offen")
    for j in range(gq): gload(j)
    for e in range(2): A(f"v_lshlrev_b32 v{8 + e}, 16, v{8 + e}")
    for e in range(2): A(f"v_mul_f32 v{10 + e}, 0xbfb8aa3b, v{8 + e}")
    for e in range(2): A(f"v_exp_f32 v{10 + e}, v{10 + e}")
    A("s_nop 0")
    for e in range(2): A(f"v_add_f32 v{10 + e}, 1.0, v{10 + e}")
    for e in range(2): A(f"v_rcp_f32 v{10 + e}, v{10 + e}")
    A("s_nop 0")
    for e in range(2): A(f"v_mul_f32 v{10 + e}, v{10 + e}, v{8 + e}")
    rnd2(A, 10, 11, 12)
    A("s_lshl_b32 s18, s43, 9"); A(f"s_add_u32 s18, s18, {SIL}")
    A("v_lshlrev_b32 v4, 3, v2"); A("v_add_u32 v4, s18, v4")
    A("ds_write_b64 v4, v[10:11]")
    A("v_lshrrev_b32 v5, 3, v2"); A("v_lshlrev_b32 v5, 6, v5"); A("v_add_u32 v5, s18, v5")
    A("s_waitcnt lgkmcnt(0)")
    SV = 16
    for q in range(4):
        A(f"ds_read_b128 v[{SV + 4*q}:{SV + 4*q + 3}], v5 offset:{16 * q}")
    GA_ = 32
    for i in range(8): A(f"v_mov_b32 v{GA_ + i}, 0")
    A("s_waitcnt lgkmcnt(0)")
    for j in range(16):
        A(f"s_waitcnt vmcnt({min(gq, 16 - j) - 1})")
        if j + gq < 16 and not opts.get('glate'): gload(j + gq)
        sj = SV + j
        base = sj & ~1
        sel = "op_sel:[0,0,0] op_sel_hi:[1,0,1]" if sj % 2 == 0 else "op_sel:[0,1,0] op_sel_hi:[1,1,1]"
        for q in range(4):
            unpack2(A, 40 + 2 * q, GV + 4 * j + q)
        for q in range(4):
            u = 40 + 2 * q
            if opts.get('nopk'):
                A(f"v_fmac_f32 v{GA_ + 2*q}, v{u}, v{sj}"); A(f"v_fmac_f32 v{GA_ + 2*q + 1}, v{u+1}, v{sj}")
            else:
                A(f"v_pk_fma_f32 v[{GA_ + 2*q}:{GA_ + 2*q + 1}], v[{u}:{u+1}], v[{base}:{base+1}], v[{GA_ + 2*q}:{GA_ + 2*q + 1}] {sel}")
        if j + gq < 16 and opts.get('glate'): gload(j + gq)
    A("v_lshlrev_b32 v1, 5, v3"); A(f"v_add_u32 v1, {GRED}, v1")
    A(f"ds_write_b128 v1, v[{GA_}:{GA_+3}]")
    A(f"ds_write_b128 v1, v[{GA_+4}:{GA_+7}] offset:16")
    A("s_waitcnt lgkmcnt(0)")
    A(f"v_mov_b32 v4, {GCNT}"); A("v_mov_b32 v5, 1")
    A("s_mov_b64 exec, 1")
    A("ds_add_u32 v4, v5")
    A("s_mov_b64 exec, -1")
    pfa = opts.get('pfa', 2)
    if pfa:
        A(f"s_mul_i32 s18, s2, {pfa * 4096}")
        A("v_lshlrev_b32 v6, 4, v3"); A("v_add_u32 v6, s18, v6")
        for bi in range(2):
            srd(A, 8, 56 + 2 * bi, 57 + 2 * bi, 7340032)
            for j in range(pfa):
                A(f"s_mov_b32 s18, {j * 4096}")
                A(f"buffer_load_dwordx4 v[{GV + 4 * (bi * pfa + j)}:{GV + 4 * (bi * pfa + j) + 3}], v6, s[8:11], s18 offen")
    Ld = A.newlabel("Lauxd")
    A("s_cmp_lg_u32 s43, 0"); A(f"s_cbranch_scc1 {Ld}")
    A("s_cmp_ge_u32 s2, 192"); A(f"s_cbranch_scc1 {Ld}")
    Lsp = A.newlabel("Lsp"); Lsd = A.newlabel("Lsd")
    A(f"s_mov_b32 s18, {POLL_MAX}")
    A.label(Lsp)
    A("ds_read_b32 v5, v4")
    A("s_waitcnt lgkmcnt(0)")
    A("v_readfirstlane_b32 s19, v5")
    A("s_nop 3")
    A("s_cmp_ge_u32 s19, 4"); A(f"s_cbranch_scc1 {Lsd}")
    A("s_sub_u32 s18, s18, 1"); A("s_cmp_lg_u32 s18, 0"); A("s_sleep 1"); A(f"s_cbranch_scc1 {Lsp}")
    A.label(Lsd)
    A("v_lshlrev_b32 v1, 2, v2"); A(f"v_add_u32 v6, {GRED}, v1")
    for rg in range(32):
        A(f"ds_read_b32 v{16 + rg}, v6 offset:{rg * 256}")
    A("s_waitcnt lgkmcnt(0)")
    for st in (16, 8, 4, 2, 1):
        for i in range(st):
            A(f"v_add_f32 v{16 + i}, v{16 + i}, v{16 + i + st}")
    srd_off(A, 8, 70, 71, WS_MOD, 2 * 6144 * 4)
    A("s_lshl_b32 s18, s55, 8"); A("s_mul_i32 s19, s54, 24576"); A("s_add_u32 s18, s18, s19")
    A("v_add_u32 v1, s18, v1")
    A("buffer_store_dword v16, v1, s[8:11], 0 offen sc1")
    A.label(Ld)
    Lgot = A.newlabel("Lgot")
    A("s_waitcnt vmcnt(0)")
    A(f"v_readfirstlane_b32 s{S_NONCE}, v137")
    A("s_nop 3")
    A(f"s_cmp_lg_u32 s{S_NONCE}, 0"); A(f"s_cbranch_scc1 {Lgot}")
    nonce_read(A, 72, S_NONCE, 24, 55)
    A.label(Lgot)


def ln8(A, poll_hook, mid_hook):
    LBUF = TOP
    A(f"s_load_dwordx2 s[34:35], s[0:1], {KA['ws']}")
    A("s_waitcnt lgkmcnt(0)")
    srd_off(A, 8, 34, 35, WS_YP, 4 << 20)
    srd_off(A, 12, 34, 35, WS_MOD, 2 * 6144 * 4)
    srd_off(A, 20, 34, 35, WS_X1, 4 << 20)
    srd_off(A, 24, 34, 35, WS_H2, 4 << 20)
    A(f"s_lshl_b32 s17, s{S_MT}, 4"); A(f"s_add_u32 s17, s17, s{S_NT}")
    A("s_lshl_b32 s19, s17, 3"); A("s_add_u32 s19, s19, s16"); A("s_lshl_b32 s19, s19, 11")
    A("v_lshlrev_b32 v4, 4, v2"); A("v_add_u32 v4, s19, v4")
    XP, YP, MV, X, D, T, ST = 8, 16, 24, 72, 88, 104, 120
    for i in range(8): unpack2(A, X + 2 * i, XE + i)

    def layernorm(src, dst):
        A(f"v_pk_add_f32 v[{T}:{T+1}], v[{src}:{src+1}], v[{src+2}:{src+3}]")
        A(f"v_pk_add_f32 v[{T+2}:{T+3}], v[{src+4}:{src+5}], v[{src+6}:{src+7}]")
        for i in (4, 6):
            A(f"v_pk_add_f32 v[{T}:{T+1}], v[{T}:{T+1}], v[{src+2*i}:{src+2*i+1}]")
            A(f"v_pk_add_f32 v[{T+2}:{T+3}], v[{T+2}:{T+3}], v[{src+2*i+2}:{src+2*i+3}]")
        A(f"v_pk_add_f32 v[{T}:{T+1}], v[{T}:{T+1}], v[{T+2}:{T+3}]")
        A(f"v_add_f32 v{T}, v{T}, v{T+1}")
        wave_sum_multi(A, [T], 44)
        A("s_nop 1")
        A(f"v_mov_b32 v{ST}, s44")
        A(f"v_mul_f32 v{ST}, 0x3a800000, v{ST}")
        for i in range(8):
            A(f"v_pk_add_f32 v[{dst+2*i}:{dst+2*i+1}], v[{src+2*i}:{src+2*i+1}], v[{ST}:{ST+1}] op_sel_hi:[1,0] neg_lo:[0,1] neg_hi:[0,1]")
        A(f"v_pk_mul_f32 v[{T}:{T+1}], v[{dst}:{dst+1}], v[{dst}:{dst+1}]")
        A(f"v_pk_mul_f32 v[{T+2}:{T+3}], v[{dst+2}:{dst+3}], v[{dst+2}:{dst+3}]")
        for i in (2, 4, 6):
            A(f"v_pk_fma_f32 v[{T}:{T+1}], v[{dst+2*i}:{dst+2*i+1}], v[{dst+2*i}:{dst+2*i+1}], v[{T}:{T+1}]")
            A(f"v_pk_fma_f32 v[{T+2}:{T+3}], v[{dst+2*i+2}:{dst+2*i+3}], v[{dst+2*i+2}:{dst+2*i+3}], v[{T+2}:{T+3}]")
        A(f"v_pk_add_f32 v[{T}:{T+1}], v[{T}:{T+1}], v[{T+2}:{T+3}]")
        A(f"v_add_f32 v{T}, v{T}, v{T+1}")
        wave_sum_multi(A, [T], 44)
        A("s_nop 1")
        A(f"v_mov_b32 v{ST+4}, s44")
        A(f"v_mul_f32 v{ST+4}, 0x3a800000, v{ST+4}")
        rnd2(A, ST + 4, ST, T)
        A(f"v_add_f32 v{ST+4}, 0x3727c5ac, v{ST+4}")
        rnd2(A, ST + 4, ST + 5, T)
        A(f"v_sqrt_f32 v{ST+4}, v{ST+4}")
        A("s_nop 0")
        rnd2(A, ST + 4, ST + 5, T)
        A(f"v_rcp_f32 v{ST+6}, v{ST+4}")
        A("s_nop 0")
        for i in range(8):
            d = dst + 2 * i; s_ = src + 2 * i
            A(f"v_pk_add_f32 v[{d}:{d+1}], v[{s_}:{s_+1}], v[{ST}:{ST+1}] op_sel_hi:[1,0] neg_lo:[0,1] neg_hi:[0,1]")
            rnd2(A, d, d + 1, T + (i & 3))
            A(f"v_pk_mul_f32 v[{d}:{d+1}], v[{d}:{d+1}], v[{ST+6}:{ST+7}] op_sel_hi:[1,0]")
            rnd2(A, d, d + 1, T + 4 + (i & 3))

    A(f"v_mov_b32 v{ST+5}, 0")
    layernorm(X, D)
    poll_hook(A)
    YB = LBUF
    Laux = A.newlabel("Llna"); Lj = A.newlabel("Llnj")
    A("s_cmp_ge_u32 s16, 4"); A(f"s_cbranch_scc1 {Laux}")
    A("v_lshlrev_b32 v5, 4, v0")
    for j in range(5):
        A(f"s_mov_b32 s18, {j * 4096}"); A(f"s_mov_b32 s19, {j * 4096 + 24576}")
        A(f"buffer_load_dwordx4 v[{24 + 4*j}:{27 + 4*j}], v5, s[12:15], s18 offen sc1")
        A(f"buffer_load_dwordx4 v[{44 + 4*j}:{47 + 4*j}], v5, s[12:15], s19 offen sc1")
    A("s_waitcnt vmcnt(0)")
    A(f"v_add_u32 v6, 65536, v5")
    for j in range(5):
        for h in range(2):
            r = 24 + 4 * j + 2 * h
            A(f"v_pk_add_f32 v[{r}:{r+1}], v[{r}:{r+1}], v[{r+20}:{r+21}]")
            rnd2(A, r, r + 1, 64 + h)
            if j in (1, 4):
                A(f"v_pk_add_f32 v[{r}:{r+1}], v[{r}:{r+1}], 1.0 op_sel_hi:[1,0]")
                rnd2(A, r, r + 1, 64 + h)
        A(f"ds_write_b128 v{5 if MBO[j] < 65536 else 6}, v[{24 + 4*j}:{27 + 4*j}] offset:{MBO[j] & 0xffff}")
    A(f"s_branch {Lj}")
    A.label(Laux)
    A("v_subrev_u32 v3, 256, v0")
    A("v_lshlrev_b32 v5, 14, v3"); A("s_lshl_b32 s18, s17, 4"); A("v_add_u32 v5, s18, v5")
    for c in range(4):
        A(f"s_mov_b32 s18, {c * 4096}")
        A(f"buffer_load_dwordx4 v[{24 + 4*c}:{27 + 4*c}], v5, s[8:11], s18 offen sc1")
    A("s_mov_b32 s18, 0x05040100"); A("s_mov_b32 s19, 0x07060302")
    A(f"v_lshlrev_b32 v6, 3, v3"); A(f"v_add_u32 v6, {YB}, v6")
    A("s_waitcnt vmcnt(0)")
    for rr in range(8):
        sel = "s18" if rr % 2 == 0 else "s19"
        dw = rr >> 1
        o = 40 + 2 * (rr & 3)
        A(f"v_perm_b32 v{o}, v{28 + dw}, v{24 + dw}, {sel}")
        A(f"v_perm_b32 v{o + 1}, v{36 + dw}, v{32 + dw}, {sel}")
        A(f"ds_write_b64 v6, v[{o}:{o+1}] offset:{rr * 2048}")
    A.label(Lj)
    A("s_waitcnt lgkmcnt(0)")
    A("s_barrier")
    A(f"s_lshl_b32 s18, s16, 11"); A(f"s_add_u32 s18, s18, {YB}")
    A("v_lshlrev_b32 v6, 4, v2"); A("v_add_u32 v6, s18, v6")
    for h in range(2):
        A(f"ds_read_b128 v[{YP + h*4}:{YP + h*4 + 3}], v6 offset:{h * 1024}")
    A(f"v_lshlrev_b32 v5, 5, v2"); A(f"v_add_u32 v7, 65536, v5")
    def rd_mod(vecs):
        for n, vec in enumerate(vecs):
            for h in range(2):
                for q in range(2):
                    r = MV + n * 16 + h * 8 + q * 4
                    A(f"ds_read_b128 v[{r}:{r+3}], v{5 if MBO[vec] < 65536 else 7} offset:{(MBO[vec] & 0xffff) + h * 2048 + q * 16}")
    rd_mod([0, 1, 2])
    mid_hook(A)
    A("s_waitcnt lgkmcnt(0)")
    A("s_barrier")
    SA, CA, GA = MV, MV + 16, MV + 32
    for i in range(8):
        d = D + 2 * i; x = X + 2 * i
        t = T + (i & 3); u = T + 8 + 2 * (i & 3)
        A(f"v_pk_mul_f32 v[{d}:{d+1}], v[{d}:{d+1}], v[{CA + 2*i}:{CA + 2*i + 1}]")
        rnd2(A, d, d + 1, t)
        A(f"v_pk_add_f32 v[{d}:{d+1}], v[{d}:{d+1}], v[{SA + 2*i}:{SA + 2*i + 1}]")
        rnd2(A, d, d + 1, t)
        unpack2(A, u, YP + i)
        A(f"v_pk_mul_f32 v[{d}:{d+1}], v[{d}:{d+1}], v[{u}:{u+1}]")
        rnd2(A, d, d + 1, t)
        A(f"v_pk_mul_f32 v[{d}:{d+1}], v[{d}:{d+1}], v[{GA + 2*i}:{GA + 2*i + 1}]")
        rnd2(A, d, d + 1, t)
        A(f"v_pk_add_f32 v[{x}:{x+1}], v[{x}:{x+1}], v[{d}:{d+1}]")
        A(f"v_cvt_pk_bf16_f32 v{XP + i}, v{x}, v{x+1}")
        unpack2(A, x, XP + i)
    for h in range(2):
        A(f"buffer_store_dwordx4 v[{XP + h*4}:{XP + h*4 + 3}], v4, s[20:23], 0 offen offset:{h * 1024} sc1")
    rd_mod([3, 4])
    layernorm(X, D)
    A("s_waitcnt lgkmcnt(0)")
    SB, CB = MV, MV + 16
    for i in range(8):
        d = D + 2 * i; t = T + (i & 3)
        A(f"v_pk_mul_f32 v[{d}:{d+1}], v[{d}:{d+1}], v[{CB + 2*i}:{CB + 2*i + 1}]")
        rnd2(A, d, d + 1, t)
        A(f"v_pk_add_f32 v[{d}:{d+1}], v[{d}:{d+1}], v[{SB + 2*i}:{SB + 2*i + 1}]")
        A(f"v_cvt_pk_bf16_f32 v{YP + i}, v{d}, v{d+1}")
    A("v_lshrrev_b32 v5, 2, v2")
    A("v_lshlrev_b32 v5, 9, v5")
    A("v_and_b32 v6, 1, v2"); A("v_lshl_add_u32 v5, v6, 8, v5")
    A("v_bfe_u32 v6, v2, 1, 1"); A("v_lshl_add_u32 v5, v6, 3, v5")
    A("s_lshl_b32 s18, s16, 4"); A(f"s_add_u32 s18, s18, {LBUF}")
    A("v_add_u32 v5, s18, v5")
    for h in range(2):
        for e in range(2):
            src = YP + h * 4 + e * 2
            A(f"ds_write_b64 v5, v[{src}:{src+1}] offset:{h * 8192 + e * 128}")
    A("s_waitcnt lgkmcnt(0)")
    A("s_barrier")
    A("v_lshrrev_b32 v5, 5, v0")
    A(f"v_lshlrev_b32 v6, 4, v0"); A(f"v_add_u32 v6, {LBUF}, v6")
    A("v_lshlrev_b32 v7, 10, v5")
    A("v_bfe_u32 v5, v0, 3, 2"); A("v_lshl_add_u32 v7, v5, 8, v7")
    A("v_and_b32 v5, 7, v0"); A("v_lshl_add_u32 v7, v5, 4, v7")
    A("s_lshr_b32 s18, s17, 1"); A("s_lshl_b32 s18, s18, 15")
    A("s_and_b32 s19, s17, 1"); A("s_lshl_b32 s19, s19, 7"); A("s_add_u32 s18, s18, s19")
    A("v_add_u32 v7, s18, v7")
    for j in range(2):
        A(f"ds_read_b128 v[{24 + 4*j}:{27 + 4*j}], v6 offset:{j * 8192}")
    for j in range(2):
        A(f"s_waitcnt lgkmcnt({1 - j})")
        A(f"s_mov_b32 s19, {j * 16384}")
        A(f"buffer_store_dwordx4 v[{24 + 4*j}:{27 + 4*j}], v7, s[24:27], s19 offen sc1")


def gen_all8(A, name="all8_kernel", opts={}):
    from gen2 import mk_poll, publish_rgi
    import gen8
    g1 = dict(G1_8); g2 = dict(G2_8)
    g1.update(hook_poll=mk_poll(3), act_sc1=1, out_sc1=1, pf_D=8, stamp0=2)
    g2.update(hook_poll=mk_poll(4), stamp0=4)
    for k, v in opts.items():
        if k.startswith("g1_"): g1[k[3:]] = v
        if k.startswith("g2_"): g2[k[3:]] = v
    gen_a.TMP[0] = 38; gen_front.STMP[0] = 36
    gen_a.PIPE[0] = opts.get('pipe', 1)
    A.begin_kernel(name)
    Lend = A.newlabel("Lend")
    A("s_cmp_ge_u32 s2, 256"); A(f"s_cbranch_scc1 {Lend}")
    stamp(A, 0)
    A(f"s_load_dwordx4 s[44:47], s[0:1], {KA['k']}")
    A(f"s_load_dwordx4 s[48:51], s[0:1], {KA['shift']}")
    A(f"s_load_dwordx2 s[52:53], s[0:1], {KA['ssmD']}")
    A(f"s_load_dwordx4 s[56:59], s[0:1], {KA['w1']}")
    A(f"s_load_dwordx4 s[60:63], s[0:1], {KA['w2']}")
    A(f"s_load_dwordx2 s[64:65], s[0:1], {KA['wmod']}")
    A(f"s_load_dwordx4 s[68:71], s[0:1], {KA['dbg']}")
    A("v_lshrrev_b32 v1, 6, v0"); A("v_and_b32 v2, 63, v0"); A("s_nop 0"); A("v_readfirstlane_b32 s16, v1")
    A(f"s_mov_b32 {MASK}, 0xffff0000")
    A("s_and_b32 s41, s2, 7"); A("s_lshr_b32 s42, s2, 3")
    A(f"s_and_b32 s{S_MT}, s41, 1"); A(f"s_lshl_b32 s{S_MT}, s{S_MT}, 3"); A("s_and_b32 s19, s42, 7"); A(f"s_add_u32 s{S_MT}, s{S_MT}, s19")
    A(f"s_lshr_b32 s{S_NT}, s41, 1"); A(f"s_lshl_b32 s{S_NT}, s{S_NT}, 2"); A("s_lshr_b32 s19, s42, 3"); A(f"s_add_u32 s{S_NT}, s{S_NT}, s19")
    A("s_lshl_b32 s17, s41, 7"); A("s_lshl_b32 s18, s42, 2"); A("s_add_u32 s17, s17, s18")
    A("s_waitcnt lgkmcnt(0)")
    srd(A, 4, 44, 45, 4 << 20)
    srd(A, 8, 46, 47, 4 << 20)
    srd(A, 24, 48, 49, 8192)
    srd_off(A, 20, 70, 71, WS_RKV, 1024 * 5120)
    srd(A, 72, 68, 69, 256)
    srd_off(A, 32, 70, 71, WS_FLAG, 256 * 128)
    nonce_write(A, 72, 6)
    A(f"v_mov_b32 v4, {GCNT}"); A("v_mov_b32 v6, 0"); A("v_mov_b32 v7, 0"); A("v_mov_b32 v8, 0"); A("v_mov_b32 v9, 0")
    A("ds_write_b128 v4, v[6:9]")
    A("s_waitcnt lgkmcnt(0)")
    A("s_barrier")
    Laux = A.newlabel("Laux"); Ljoin = A.newlabel("Ljoin")
    A("s_cmp_ge_u32 s16, 4"); A(f"s_cbranch_scc1 {Laux}")
    part_a_main(A, opts)
    if opts.get('st5'): A("s_waitcnt vmcnt(0)"); stamp(A, 5)
    A(f"s_branch {Ljoin}")
    A.label(Laux)
    part_a_aux(A, opts)
    A.label(Ljoin)
    publish_flag(A, 32, S_NONCE, 2, S_WAVE, 24)
    if not opts.get('st3') and not opts.get('st5'): stamp(A, 1)
    A("s_mov_b64 s[76:77], s[32:33]"); A("s_mov_b64 s[78:79], s[34:35]")
    srd_off(A, S_FLAG, 70, 71, WS_FLAG + 256 * 128, 512 * 128)
    def grid_poll(A):
        A("s_lshl_b32 s18, s16, 5"); A("v_and_b32 v5, 31, v2"); A("v_add_u32 v5, s18, v5"); A("v_lshlrev_b32 v5, 7, v5")
        gen_a.TMP[0] = 46
        poll_flags(A, 76, S_NONCE, 5, 2, 6, 55)
        A("s_barrier")
        if opts.get('st2'): gen_front.STMP[0] = 48; stamp(A, 2)
    def mid(A):
        gen8.TOPD[0] = 110592
        early_weights8(A, g1, S_NT, 130, 60)
        gen8.TOPD[0] = TOP
    ln8(A, grid_poll, mid)
    gen_a.TMP[0] = 76; gen_front.STMP[0] = 78
    publish_rgi(A, 3, 24)
    if opts.get('st2'): stamp(A, 3); g1['stamp0'] = 4; g2['stamp0'] = -100
    def post1(A, g):
        A("s_barrier")
        A("s_and_b32 s82, s2, 7"); A("s_lshr_b32 s83, s2, 3")
        A(f"s_and_b32 s{S_KH}, s83, 1")
        A("s_and_b32 s85, s82, 3"); A("s_lshl_b32 s85, s85, 2"); A("s_lshr_b32 s84, s83, 1"); A("s_and_b32 s84, s84, 3"); A("s_add_u32 s85, s85, s84")
        A("s_lshr_b32 s86, s82, 2"); A("s_lshl_b32 s86, s86, 2"); A("s_lshr_b32 s84, s83, 3"); A("s_add_u32 s86, s86, s84")
        A(f"s_xor_b32 s{S_PW}, s2, 8")
        A(f"s_mul_i32 s45, s{S_KH}, 56")
        A(f"s_mul_i32 s44, s45, {32 * 2048}")
        early_weights8(A, g2, 86, 134, 60, koff_s=44)
    g1['hook_post'] = post1
    g1['xstride'] = 16384
    if opts.get('st5'): g1['stamp0'] = -100; g2['stamp0'] = -100
    if opts.get('st3'):
        g1['stamp0'] = -1; g2['stamp0'] = 4
        hp = g2['hook_poll']
        def hp2(A, g):
            hp(A, g); stamp(A, 3)
        g2['hook_poll'] = hp2
    nv1, na1 = gemm8_body(A, g1)
    if opts.get('st3'): stamp(A, 1)
    publish_rgi(A, 4, 0)
    if opts.get('st3'): stamp(A, 2)
    A(f"s_mov_b32 s{S_MT}, s85"); A(f"s_mov_b32 s{S_NT}, s86")
    nv2, na2 = gemm8_body(A, g2)
    rt_out(A, Lend, S_WAVE)
    A.label(Lend); A("s_endpgm")
    A.end_kernel(name, 144, 112, 102, 256, 512, 163840)
```

```python
import sys, math

NAME = "adaLN_cond__ssm_conv_h3__glu_gated_swiglu__prompt"

WS_MOD = 0
WS_YP = 1 << 20
WS_X1 = WS_YP + (4 << 20)
WS_H2 = WS_X1 + (4 << 20)
WS_HH = WS_H2 + (4 << 20)
WS_RKV = WS_HH + 2048 * 3584 * 2
WS_FLAG = WS_RKV + 1024 * 5120
WS_END = WS_FLAG + 512 * 128

KA = dict(q=0, k=8, v=16, shift=24, ssmk=32, ssmD=40, bx=48, w1=56, w3=64, w2=72, c=80, wmod=88, out=96, dbg=104, ws=112)


RT = [0]

WS_DBG = 200 << 20

def rt_out(A, Lend, swave):
    if not RT[0]: return
    A("s_waitcnt vmcnt(0) lgkmcnt(0)")
    A("s_memrealtime s[38:39]")
    A(f"s_load_dwordx2 s[36:37], s[0:1], {KA['ws']}")
    A("s_waitcnt lgkmcnt(0)")
    srd_off(A, 8, 36, 37, WS_DBG + 512 * len(A.launch), 512)
    A(f"s_and_b32 s36, s2, 31"); A(f"s_add_u32 s36, s36, s{swave}"); A("s_cmp_lg_u32 s36, 0"); A(f"s_cbranch_scc1 {Lend}")
    A("s_lshr_b32 s36, s2, 5"); A("s_lshl_b32 s36, s36, 5")
    A("s_mov_b64 exec, 1")
    A("v_mov_b32 v0, s36"); A("v_mov_b32 v2, s100"); A("v_mov_b32 v3, s38")
    A("buffer_store_dwordx2 v[2:3], v0, s[8:11], 0 offen")
    for i in range(6):
        A(f"v_mov_b32 v2, s{94 + i}")
        A(f"buffer_store_dword v2, v0, s[8:11], 0 offen offset:{8 + 4 * i}")


class Asm:
    def __init__(self):
        self.lines = []
        self.launch = []
        self.kd = []
        self.uid = 0

    def __call__(self, s):
        self.lines.append("    " + s)

    def label(self, l):
        self.lines.append(l + ":")

    def newlabel(self, p="L"):
        self.uid += 1
        return f"{p}_{self.uid}"

    def begin_kernel(self, name):
        self.lines.append(f".globl {name}")
        self.lines.append(".p2align 8")
        self.lines.append(f".type {name},@function")
        self.lines.append(f"{name}:")
        if RT[0]:
            self("s_memrealtime s[100:101]")
            self("v_lshrrev_b32 v255, 6, v0") if False else None

    def end_kernel(self, name, nvgpr, nagpr, nsgpr, grid, block, lds):
        acc_off = (nvgpr + 3) // 4 * 4
        nfv = acc_off + nagpr if nagpr else nvgpr
        self.kd.append(f""".p2align 6
.amdhsa_kernel {name}
  .amdhsa_next_free_vgpr {nfv}
  .amdhsa_next_free_sgpr {nsgpr}
  .amdhsa_accum_offset {acc_off}
  .amdhsa_group_segment_fixed_size 0
  .amdhsa_kernarg_size 120
  .amdhsa_user_sgpr_count 2
  .amdhsa_user_sgpr_kernarg_segment_ptr 1
  .amdhsa_system_sgpr_workgroup_id_x 1
  .amdhsa_float_denorm_mode_32 3
.end_amdhsa_kernel""")
        if name == NAME + "_kernel":
            self.launch.append(f"; @launch grid=({grid},1,1) block=({block},1,1) lds={lds}")
        else:
            self.launch.append(f"; @launch kernel={name} grid=({grid},1,1) block=({block},1,1) lds={lds}")

    def text(self):
        out = list(self.launch)
        out.append('.amdgcn_target "amdgcn-amd-amdhsa--gfx950"')
        out.append(".text")
        out += self.lines
        out.append('.section .rodata,"a"')
        out += self.kd
        return "\n".join(out) + "\n"


def srd(A, d, lo, hi, nbytes):
    A(f"s_mov_b32 s{d}, s{lo}")
    A(f"s_and_b32 s{d+1}, s{hi}, 0xffff")
    A(f"s_mov_b32 s{d+2}, {nbytes}")
    A(f"s_mov_b32 s{d+3}, 0x00020000")


def srd_off(A, d, lo, hi, off, nbytes):
    A(f"s_add_u32 s{d}, s{lo}, {off}")
    A(f"s_addc_u32 s{d+1}, s{hi}, 0")
    A(f"s_and_b32 s{d+1}, s{d+1}, 0xffff")
    A(f"s_mov_b32 s{d+2}, {nbytes}")
    A(f"s_mov_b32 s{d+3}, 0x00020000")


def interleave(main, side_at):
    out = []
    for i, m in enumerate(main):
        out.append(m)
        out += side_at.get(i, [])
    return out


def gen_gemm(A, cfg):
    name = cfg['name']
    MT, WM, WN = cfg['MT'], cfg['WM'], cfg['WN']
    NSUB, NW = cfg['NSUB'], cfg['NW']
    K, RSG = cfg['K'], cfg['RSG']
    KS, R, PD, LAG = cfg['KS'], cfg['R'], cfg['PD'], cfg['LAG']
    fs, fbits = cfg['fs'], cfg['fbits']
    fm = (1 << fbits) - 1
    KBT = K // 32
    S = KBT
    T = S // KS
    RS = NW * 2
    CPR = RS // 16
    WT_BYTES = 32 * RS
    assert WT_BYTES % 1024 == 0
    ipt = WT_BYTES // 1024
    ACT_BYTES = MT * 64
    SUB_BYTES = ACT_BYTES + NSUB * WT_BYTES
    SLOT = KS * SUB_BYTES
    LDS = R * SLOT
    assert LDS <= 163840, LDS
    NWAVE = 4
    assert WM * WN == NWAVE
    MBW = MT // 16 // WM
    FBW = NW // 16 // WN
    nA = MT // 16 // NWAVE
    assert (NSUB * ipt) % NWAVE == 0
    nW = NSUB * ipt // NWAVE
    wps = NWAVE // NSUB
    assert ipt % nW == 0 or True
    n_dma = KS * (nA + nW)
    NCLS = min(1 << fbits, FBW)
    for b in range(NW // 16):
        for k0 in (0, 8, 16, 24):
            segs = set(((k * RS + 32 * (b ^ ((k >> fs) & fm))) // 32) % 8 for k in range(k0, k0 + 8))
            assert len(segs) == 8, (b, k0, segs)
    assert fs + fbits <= 4
    NACC = NSUB * FBW * MBW * 4
    def acc(sub, fb, mb):
        return ((sub * FBW + fb) * MBW + mb) * 4
    vn = [NACC]
    def valloc(n=1):
        r = vn[0]; vn[0] += n; return r
    vLane = valloc()
    if vn[0] % 2: valloc()
    ubase = vn[0]
    vT0 = valloc(); vT1 = valloc(); vT2 = valloc(); vT3 = valloc()
    vWoff = valloc(nW); vAoff = valloc(nA)
    vX0 = valloc(); vW0 = valloc(NCLS)
    vXc = valloc(); vWc = valloc(NCLS)
    loop_end = vn[0]
    vn[0] = ubase
    vE = valloc(8)
    vE2 = valloc(cfg.get('etemps', 16))
    NV = max(vn[0], loop_end)
    assert NV <= 256, NV
    NSET = cfg.get("NSET", PD + 1)
    SETSZ = (NSUB * FBW + MBW) * 4
    def wfrag(p, sub, fb): return p * SETSZ + (sub * FBW + fb) * 4
    def xfrag(p, mb): return p * SETSZ + (NSUB * FBW + mb) * 4
    NA_ = NSET * SETSZ
    assert NA_ <= 256
    sW, sX, sO = 4, 8, 12
    sWave, sKW, sKX, sCnt, sWB, sAB, sRd, sWr, sT0, sT1, sMT, sNT, sWM, sWN, sKXe, sTK = range(16, 32)
    sP = 32
    sE = 48

    A.begin_kernel(name)
    Lend = A.newlabel("Lend")
    A(f"s_cmp_ge_u32 s2, 256")
    A(f"s_cbranch_scc1 {Lend}")
    wk = cfg['wptr']
    if cfg.get('stamp'): A("s_memtime s[56:57]"); A("s_memrealtime s[64:65]")
    A(f"s_load_dwordx2 s[{sP}:{sP+1}], s[0:1], {wk[0]}")
    A(f"s_load_dwordx2 s[{sP+2}:{sP+3}], s[0:1], {wk[-1]}")
    A(f"s_load_dwordx2 s[{sP+4}:{sP+5}], s[0:1], {KA['ws']}")
    A(f"s_load_dwordx2 s[{sP+6}:{sP+7}], s[0:1], {KA['out']}")
    A(f"v_lshrrev_b32 v{vT0}, 6, v0")
    A(f"v_and_b32 v{vLane}, 63, v0")
    A(f"s_nop 0")
    A(f"v_readfirstlane_b32 s{sWave}, v{vT0}")
    xm_bits, = (cfg['xm_bits'],)
    qm_bits = cfg['qm_bits']
    A(f"s_and_b32 s{sT0}, s2, 7")
    A(f"s_lshr_b32 s{sT1}, s2, 3")
    A(f"s_and_b32 s{sMT}, s{sT0}, {(1 << xm_bits) - 1}")
    A(f"s_lshl_b32 s{sMT}, s{sMT}, {qm_bits}")
    A(f"s_and_b32 s{sTK}, s{sT1}, {(1 << qm_bits) - 1}")
    A(f"s_add_u32 s{sMT}, s{sMT}, s{sTK}")
    A(f"s_lshr_b32 s{sNT}, s{sT0}, {xm_bits}")
    A(f"s_lshl_b32 s{sNT}, s{sNT}, {5 - qm_bits}")
    A(f"s_lshr_b32 s{sTK}, s{sT1}, {qm_bits}")
    A(f"s_add_u32 s{sNT}, s{sNT}, s{sTK}")
    A(f"s_lshr_b32 s{sWM}, s{sWave}, {int(math.log2(WN))}")
    A(f"s_and_b32 s{sWN}, s{sWave}, {WN - 1}")
    A(f"s_waitcnt lgkmcnt(0)")
    if NSUB == 2:
        A(f"s_cmp_ge_u32 s{sWave}, {wps}")
        A(f"s_cselect_b32 s{sT0}, s{sP+2}, s{sP}")
        A(f"s_cselect_b32 s{sT1}, s{sP+3}, s{sP+1}")
        srd(A, sW, sT0, sT1, K * RSG)
    else:
        srd(A, sW, sP, sP + 1, K * RSG)
    srd_off(A, sX, sP + 4, sP + 5, cfg['act_off'], 2048 * K * 2)
    A(f"s_and_b32 s{sT0}, s{sWave}, {wps - 1}")
    A(f"s_mul_i32 s{sT0}, s{sT0}, {nW * 64}")
    A(f"s_mul_i32 s{sT1}, s{sNT}, {RS}")
    magic = (65536 + CPR - 1) // CPR
    for Q in range(ipt * 64):
        assert (Q * magic) >> 16 == Q // CPR
    for j in range(nW):
        A(f"v_add_u32 v{vT0}, s{sT0}, v{vLane}")
        if j: A(f"v_add_u32 v{vT0}, {j * 64}, v{vT0}")
        A(f"v_mul_u32_u24 v{vT1}, {magic}, v{vT0}")
        A(f"v_lshrrev_b32 v{vT1}, 16, v{vT1}")
        A(f"v_mul_u32_u24 v{vT2}, {CPR}, v{vT1}")
        A(f"v_sub_u32 v{vT2}, v{vT0}, v{vT2}")
        A(f"v_lshrrev_b32 v{vT3}, {fs}, v{vT1}")
        A(f"v_and_b32 v{vT3}, {fm}, v{vT3}")
        A(f"v_lshlrev_b32 v{vT3}, 1, v{vT3}")
        A(f"v_xor_b32 v{vT2}, v{vT2}, v{vT3}")
        A(f"v_lshlrev_b32 v{vT2}, 4, v{vT2}")
        A(f"v_mul_u32_u24 v{vT1}, {RSG}, v{vT1}")
        A(f"v_add3_u32 v{vWoff + j}, v{vT1}, v{vT2}, s{sT1}")
    A(f"s_mul_i32 s{sT0}, s{sMT}, {MT // 16}")
    A(f"s_mul_i32 s{sT1}, s{sWave}, {nA}")
    A(f"s_add_u32 s{sT0}, s{sT0}, s{sT1}")
    A(f"s_mul_i32 s{sT0}, s{sT0}, {KBT * 1024}")
    A(f"v_lshlrev_b32 v{vT0}, 4, v{vLane}")
    for j in range(nA):
        A(f"v_add_u32 v{vAoff + j}, s{sT0}, v{vT0}")
        if j: A(f"v_add_u32 v{vAoff + j}, {j * KBT * 1024}, v{vAoff + j}")
    A(f"s_mul_i32 s{sWB}, s{sWave}, {nW * 1024}")
    A(f"s_add_u32 s{sWB}, s{sWB}, {ACT_BYTES}")
    A(f"s_mul_i32 s{sAB}, s{sWave}, {nA * 1024}")
    A(f"s_mul_i32 s{sT0}, s{sWM}, {MBW * 1024}")
    A(f"v_lshl_add_u32 v{vX0}, v{vLane}, 4, s{sT0}")
    A(f"v_lshrrev_b32 v{vT0}, 2, v{vLane}")
    A(f"v_and_b32 v{vT1}, 3, v{vLane}")
    A(f"v_mul_u32_u24 v{vT2}, {RS}, v{vT0}")
    A(f"v_lshl_add_u32 v{vT2}, v{vT1}, 3, v{vT2}")
    A(f"v_add_u32 v{vT2}, {ACT_BYTES}, v{vT2}")
    A(f"v_lshrrev_b32 v{vT3}, {fs}, v{vT0}")
    A(f"v_and_b32 v{vT3}, {fm}, v{vT3}")
    A(f"s_mul_i32 s{sT0}, s{sWN}, {FBW}")
    for c in range(NCLS):
        A(f"s_add_u32 s{sT1}, s{sT0}, {c}")
        A(f"v_xor_b32 v{vT1}, s{sT1}, v{vT3}")
        A(f"v_lshl_add_u32 v{vW0 + c}, v{vT1}, 5, v{vT2}")

    def dma_instrs(u, slot_s, slot_const, kW_s, kX_s):
        res = []
        for j in range(nA):
            cst = slot_const + u * SUB_BYTES + j * 1024
            if slot_s is None:
                m0 = [f"s_add_u32 m0, s{sAB}, {cst}"]
            else:
                m0 = [f"s_add_u32 s{sTK}, s{sAB}, s{slot_s}", f"s_add_u32 m0, s{sTK}, {cst}"]
            res.append((m0, f"buffer_load_dwordx4 v{vAoff + j}, s[{sX}:{sX+3}], s{kX_s} offen lds"))
        for j in range(nW):
            cst = slot_const + u * SUB_BYTES + j * 1024
            if slot_s is None:
                m0 = [f"s_add_u32 m0, s{sWB}, {cst}"]
            else:
                m0 = [f"s_add_u32 s{sTK}, s{sWB}, s{slot_s}", f"s_add_u32 m0, s{sTK}, {cst}"]
            res.append((m0, f"buffer_load_dwordx4 v{vWoff + j}, s[{sW}:{sW+3}], s{kW_s} offen lds"))
        return res

    def ds_reads(p, u, vX, vW, extra=0):
        res = []
        for mb in range(MBW):
            r = xfrag(p, mb)
            res.append(f"ds_read_b128 a[{r}:{r+3}], v{vX} offset:{extra + u * SUB_BYTES + mb * 1024}")
        for sub in range(NSUB):
            for fb in range(FBW):
                cls = fb % NCLS
                r = wfrag(p, sub, fb)
                off = extra + u * SUB_BYTES + sub * WT_BYTES + 32 * (fb - cls)
                assert off + 16 * RS < 65536
                res.append(f"ds_read_b64_tr_b16 a[{r}:{r+1}], v{vW + cls} offset:{off}")
                res.append(f"ds_read_b64_tr_b16 a[{r+2}:{r+3}], v{vW + cls} offset:{off + 16 * RS}")
        return res

    t0 = (PD - 1) // KS
    assert t0 <= LAG
    n_pro = t0 + R - LAG
    for st in range(n_pro):
        for u in range(KS):
            A(f"s_mov_b32 s{sT0}, {(st * KS + u) * 32 * RSG}")
            A(f"s_mov_b32 s{sT1}, {(st * KS + u) * 1024}")
            for m0, d in dma_instrs(u, None, (st % R) * SLOT, sT0, sT1):
                for x in m0: A(x)
                A("s_nop 0")
                A(d)
    A(f"s_mov_b32 s{sKW}, {n_pro * KS * 32 * RSG}")
    A(f"s_mov_b32 s{sKX}, {n_pro * KS * 1024}")
    for i in range(NACC):
        A(f"v_mov_b32 v{i}, 0")
    nst = t0 + 1
    A(f"s_waitcnt vmcnt({n_dma * (n_pro - nst)})")
    A("s_barrier")
    for s in range(PD):
        st, u = s // KS, s % KS
        if st == 0:
            for x in ds_reads(s % NSET, u, vX0, vW0): A(x)
        else:
            A(f"v_add_u32 v{vXc}, {st * SLOT}, v{vX0}")
            for c in range(NCLS): A(f"v_add_u32 v{vWc + c}, {st * SLOT}, v{vW0 + c}")
            for x in ds_reads(s % NSET, u, vXc, vWc): A(x)
    A(f"s_mov_b32 s{sRd}, {t0 * SLOT}")
    A(f"v_add_u32 v{vXc}, {t0 * SLOT}, v{vX0}")
    for c in range(NCLS): A(f"v_add_u32 v{vWc + c}, {t0 * SLOT}, v{vW0 + c}")
    UN = KS * NSET // math.gcd(KS, NSET)
    assert S % UN == 0, (S, UN)
    A(f"s_mov_b32 s{sCnt}, {S // UN}")
    if cfg.get('stamp'): A("s_waitcnt lgkmcnt(0)"); A("s_memtime s[58:59]"); A("s_waitcnt lgkmcnt(0)")
    Lloop = A.newlabel("Lloop")
    A.label(Lloop)
    nDS = MBW + 2 * NSUB * FBW
    for s in range(UN):
        p = s % NSET
        pr = (s + PD) % NSET
        ph = (s + PD) % KS
        pre = []
        if ph == 0:
            lg = 0 if LAG == 0 else min(15, nDS * (PD - 1))
            pre.append(f"s_waitcnt vmcnt({n_dma * (R - LAG - 2)}) lgkmcnt({lg})")
            pre.append("s_barrier")
            if LAG == 0:
                pre.append(f"s_mov_b32 s{sWr}, s{sRd}")
            else:
                pre.append(f"s_sub_u32 s{sWr}, s{sRd}, {SLOT}")
                pre.append(f"s_cmp_eq_u32 s{sRd}, 0")
                pre.append(f"s_cselect_b32 s{sWr}, {(R - 1) * SLOT}, s{sWr}")
            pre.append(f"s_add_u32 s{sRd}, s{sRd}, {SLOT}")
            pre.append(f"s_cmp_eq_u32 s{sRd}, {R * SLOT}")
            pre.append(f"s_cselect_b32 s{sRd}, 0, s{sRd}")
            pre.append(f"v_add_u32 v{vXc}, s{sRd}, v{vX0}")
            for c in range(NCLS): pre.append(f"v_add_u32 v{vWc + c}, s{sRd}, v{vW0 + c}")
        else:
            pre.append(f"s_waitcnt lgkmcnt({min(15, nDS * (PD - 1))})")
        pre2 = []
        if ph:
            pre2.append(f"s_add_u32 s{sT0}, s{sKW}, {ph * 32 * RSG}")
            pre2.append(f"s_add_u32 s{sT1}, s{sKX}, {ph * 1024}")
        else:
            pre2.append(f"s_mov_b32 s{sT0}, s{sKW}")
            pre2.append(f"s_mov_b32 s{sT1}, s{sKX}")
        pre2.append(f"s_cmp_ge_u32 s{sT1}, {KBT * 1024}")
        pre2.append(f"s_cselect_b32 s{sT1}, 0x40000000, s{sT1}")
        if ph == KS - 1:
            pre2.append(f"s_add_u32 s{sKW}, s{sKW}, {KS * 32 * RSG}")
            pre2.append(f"s_add_u32 s{sKX}, s{sKX}, {KS * 1024}")
        mf = []
        for sub in range(NSUB):
            for fb in range(FBW):
                for mb in range(MBW):
                    a_ = acc(sub, fb, mb); w = wfrag(p, sub, fb); x = xfrag(p, mb)
                    mf.append(f"v_mfma_f32_16x16x32_bf16 v[{a_}:{a_+3}], a[{w}:{w+3}], a[{x}:{x+3}], v[{a_}:{a_+3}]")
        M = len(mf)
        ds = ds_reads(pr, ph, vXc, vWc)
        dm = dma_instrs(ph, sWr, 0, sT0, sT1)
        if cfg.get('no_ds'): ds = []
        if cfg.get('no_dma'): dm = []
        if cfg.get('no_dma_a'): dm = dm[nA:] + dm[nA:nA + nA]
        if cfg.get('no_dma_w'): dm = (dm[:nA] * 16)[:nA + nW]
        if cfg.get('no_mfma'): mf = ["s_nop 0"] * M
        if cfg.get('no_bar'): pre = [x for x in pre if x != "s_barrier"]
        side = {}
        def put(g, ins):
            side.setdefault(min(g, M - 1), []).extend(ins)
        dsr = cfg.get('ds_rate', 1)
        for i, d in enumerate(ds):
            put(i // dsr, [d])
        put(0, pre2)
        g0 = cfg.get('dma_g0', 2)
        span = max(1, (M - g0 - 2) // max(1, len(dm)))
        for i, (m0, d) in enumerate(dm):
            g = g0 + i * span
            put(g, m0)
            if g + 1 <= M - 1:
                put(g + 1, [d])
            else:
                put(g, ["s_nop 0", d])
        for x in pre: A(x)
        for x in interleave(mf, side): A(x)
    A(f"s_sub_u32 s{sCnt}, s{sCnt}, 1")
    A(f"s_cmp_lg_u32 s{sCnt}, 0")
    A(f"s_cbranch_scc1 {Lloop}")
    A("s_waitcnt vmcnt(0) lgkmcnt(0)")
    A("s_nop 7")
    A("s_nop 7")
    env = dict(locals())
    if cfg.get('stamp'): A("s_memtime s[60:61]"); A("s_waitcnt lgkmcnt(0)")
    cfg['epilogue'](A, env)
    if cfg.get('stamp'):
        A("s_waitcnt vmcnt(0)")
        A("s_memtime s[62:63]")
        A("s_memrealtime s[66:67]")
        A(f"s_load_dwordx2 s[{sP}:{sP+1}], s[0:1], {KA['dbg']}")
        A("s_waitcnt lgkmcnt(0)")
        srd(A, sO, sP, sP + 1, 256)
        A("s_sub_u32 s58, s58, s56"); A("s_sub_u32 s60, s60, s56"); A("s_sub_u32 s62, s62, s56")
        A("v_mov_b32 v0, s58"); A("v_mov_b32 v1, s60"); A("v_mov_b32 v2, s62"); A("s_sub_u32 s66, s66, s64"); A("v_mov_b32 v3, s66")
        A(f"s_and_b32 s{sT0}, s2, 63")
        A(f"s_add_u32 s{sT0}, s{sT0}, s{sWave}")
        A(f"s_cmp_lg_u32 s{sT0}, 0")
        A(f"s_cbranch_scc1 {Lend}")
        A(f"s_lshr_b32 s{sT0}, s2, 6")
        A(f"s_lshl_b32 s{sT0}, s{sT0}, 4")
        A(f"v_mov_b32 v4, s{sT0}")
        A(f"buffer_store_dwordx4 v[0:3], v4, s[{sO}:{sO+3}], 0 offen")
    rt_out(A, Lend, sWave)
    A.label(Lend)
    A("s_endpgm")
    A.end_kernel(name, NV, NA_, 102, 256, 256, LDS)


def epi_gemm1(A, e):
    g = e
    acc, FBW, MBW = g['acc'], g['FBW'], g['MBW']
    sO, sP, sT0, sT1, sMT, sNT, sWM, sWN, vLane, vE, vE2, sE = [g[k] for k in
        "sO sP sT0 sT1 sMT sNT sWM sWN vLane vE vE2 sE".split()]
    faithful = g['cfg'].get('faithful', True)
    srd_off(A, sO, sP + 4, sP + 5, WS_HH, 2048 * 3584 * 2)
    A(f"s_mul_i32 s{sT0}, s{sNT}, 14")
    A(f"s_mul_i32 s{sT1}, s{sWN}, 7")
    A(f"s_add_u32 s{sT0}, s{sT0}, s{sT1}")
    A(f"s_lshl_b32 s{sT1}, s{sMT}, 3")
    A(f"s_lshl_b32 s{sE}, s{sWM}, 2")
    A(f"s_add_u32 s{sT1}, s{sT1}, s{sE}")
    A(f"s_mul_i32 s{sT1}, s{sT1}, {112 * 1024}")
    A(f"s_mov_b32 s{sE+2}, 0xbfb8aa3b")
    A(f"s_mov_b32 s{sE+3}, 0xbfb8aa3b")
    A(f"s_mov_b32 s{sE+4}, 0xffff0000")
    for fb in range(FBW):
        A(f"s_add_u32 s{sE}, s{sT0}, {fb}")
        A(f"s_lshr_b32 s{sE+1}, s{sE}, 1")
        A(f"s_lshl_b32 s{sE+1}, s{sE+1}, 10")
        A(f"s_and_b32 s{sE}, s{sE}, 1")
        A(f"s_lshl_b32 s{sE}, s{sE}, 3")
        A(f"s_add_u32 s{sE}, s{sE}, s{sE+1}")
        A(f"s_add_u32 s{sE}, s{sE}, s{sT1}")
        A(f"v_lshl_add_u32 v{vE}, v{vLane}, 4, s{sE}")
        for mb in range(MBW):
            G = acc(0, fb, mb); U = acc(1, fb, mb)
            t = vE2 + (mb % 2) * 8
            if faithful:
                for h in range(2):
                    A(f"v_cvt_pk_bf16_f32 v{t}, v{G+2*h}, v{G+2*h+1}")
                    A(f"v_cvt_pk_bf16_f32 v{t+1}, v{U+2*h}, v{U+2*h+1}")
                    A(f"v_lshlrev_b32 v{G+2*h}, 16, v{t}")
                    A(f"v_and_b32 v{G+2*h+1}, s{sE+4}, v{t}")
                    A(f"v_lshlrev_b32 v{U+2*h}, 16, v{t+1}")
                    A(f"v_and_b32 v{U+2*h+1}, s{sE+4}, v{t+1}")
            for h in range(2):
                A(f"v_pk_mul_f32 v[{t+2*h}:{t+2*h+1}], v[{G+2*h}:{G+2*h+1}], s[{sE+2}:{sE+3}]")
            for i in range(4):
                A(f"v_exp_f32 v{t+i}, v{t+i}")
            for h in range(2):
                A(f"v_pk_add_f32 v[{t+2*h}:{t+2*h+1}], v[{t+2*h}:{t+2*h+1}], 1.0 op_sel_hi:[1,0]")
            for i in range(4):
                A(f"v_rcp_f32 v{t+i}, v{t+i}")
            for h in range(2):
                A(f"v_pk_mul_f32 v[{t+2*h}:{t+2*h+1}], v[{t+2*h}:{t+2*h+1}], v[{G+2*h}:{G+2*h+1}]")
            if faithful:
                for h in range(2):
                    A(f"v_cvt_pk_bf16_f32 v{t+4+h}, v{t+2*h}, v{t+2*h+1}")
                for h in range(2):
                    A(f"v_lshlrev_b32 v{t+2*h}, 16, v{t+4+h}")
                    A(f"v_and_b32 v{t+2*h+1}, s{sE+4}, v{t+4+h}")
            for h in range(2):
                A(f"v_pk_mul_f32 v[{t+2*h}:{t+2*h+1}], v[{t+2*h}:{t+2*h+1}], v[{U+2*h}:{U+2*h+1}]")
            A(f"v_cvt_pk_bf16_f32 v{t+6}, v{t}, v{t+1}")
            A(f"v_cvt_pk_bf16_f32 v{t+7}, v{t+2}, v{t+3}")
            A(f"s_mov_b32 s{sE+5}, {mb * 112 * 1024}")
            A(f"buffer_store_dwordx2 v[{t+6}:{t+7}], v{vE}, s[{sO}:{sO+3}], s{sE+5} offen")


def epi_gemm2(A, e):
    g = e
    acc, FBW, MBW, MT, NW = g['acc'], g['FBW'], g['MBW'], g['MT'], g['NW']
    sO, sP, sT0, sT1, sMT, sNT, sWM, sWN, vLane, vE, vE2, sE, sX, sW = [g[k] for k in
        "sO sP sT0 sT1 sMT sNT sWM sWN vLane vE vE2 sE sX sW".split()]
    srd(A, sO, sP + 6, sP + 7, 2048 * 1024 * 2)
    srd_off(A, sX, sP + 4, sP + 5, WS_X1, 2048 * 1024 * 2)
    srd_off(A, sW, sP + 4, sP + 5, WS_MOD, 2 * 6144 * 4)
    A(f"s_mul_i32 s{sT0}, s{sNT}, {NW}")
    A(f"s_mul_i32 s{sE}, s{sWN}, {FBW * 16}")
    A(f"s_add_u32 s{sT0}, s{sT0}, s{sE}")
    A(f"s_mul_i32 s{sT1}, s{sMT}, {MT}")
    A(f"s_mul_i32 s{sE}, s{sWM}, {MBW * 16}")
    A(f"s_add_u32 s{sT1}, s{sT1}, s{sE}")
    A(f"s_mov_b32 s{sE+4}, 0xffff0000")
    A(f"v_lshrrev_b32 v{vE}, 4, v{vLane}")
    A(f"v_lshlrev_b32 v{vE}, 2, v{vE}")
    A(f"v_add_u32 v{vE}, s{sT0}, v{vE}")
    A(f"v_and_b32 v{vE+1}, 15, v{vLane}")
    A(f"v_add_u32 v{vE+1}, s{sT1}, v{vE+1}")
    A(f"v_lshlrev_b32 v{vE+1}, 11, v{vE+1}")
    A(f"v_lshl_add_u32 v{vE+1}, v{vE}, 1, v{vE+1}")
    A(f"v_lshlrev_b32 v{vE}, 2, v{vE}")
    A(f"v_add_u32 v{vE}, {5 * 4096}, v{vE}")
    gbr = vE2
    xr = vE2 + FBW * 4
    gb2 = xr + FBW * MBW * 2
    A(f"s_mov_b32 s{sE}, 24576")
    for fb in range(FBW):
        A(f"buffer_load_dwordx4 v[{gbr+4*fb}:{gbr+4*fb+3}], v{vE}, s[{sW}:{sW+3}], 0 offen offset:{fb * 64}")
        A(f"buffer_load_dwordx4 v[{gb2+4*fb}:{gb2+4*fb+3}], v{vE}, s[{sW}:{sW+3}], s{sE} offen offset:{fb * 64}")
    for fb in range(FBW):
        for mb in range(MBW):
            r = xr + (fb * MBW + mb) * 2
            A(f"s_mov_b32 s{sE}, {mb * 16 * 2048}")
            A(f"buffer_load_dwordx2 v[{r}:{r+1}], v{vE+1}, s[{sX}:{sX+3}], s{sE} offen offset:{fb * 32}")
    A("s_waitcnt vmcnt(0)")
    t = vE + 2
    for i in range(0, FBW * 4, 2):
        A(f"v_pk_add_f32 v[{gbr+i}:{gbr+i+1}], v[{gbr+i}:{gbr+i+1}], v[{gb2+i}:{gb2+i+1}]")
        A(f"v_cvt_pk_bf16_f32 v{t}, v{gbr+i}, v{gbr+i+1}")
        A(f"v_lshlrev_b32 v{gbr+i}, 16, v{t}")
        A(f"v_and_b32 v{gbr+i+1}, s{sE+4}, v{t}")
    for fb in range(FBW):
        for mb in range(MBW):
            a_ = acc(0, fb, mb)
            r = xr + (fb * MBW + mb) * 2
            for h in range(2):
                A(f"v_cvt_pk_bf16_f32 v{t}, v{a_+2*h}, v{a_+2*h+1}")
                A(f"v_lshlrev_b32 v{a_+2*h}, 16, v{t}")
                A(f"v_and_b32 v{a_+2*h+1}, s{sE+4}, v{t}")
                A(f"v_pk_mul_f32 v[{a_+2*h}:{a_+2*h+1}], v[{a_+2*h}:{a_+2*h+1}], v[{gbr+4*fb+2*h}:{gbr+4*fb+2*h+1}]")
                A(f"v_cvt_pk_bf16_f32 v{t}, v{a_+2*h}, v{a_+2*h+1}")
                A(f"v_lshlrev_b32 v{a_+2*h}, 16, v{t}")
                A(f"v_and_b32 v{a_+2*h+1}, s{sE+4}, v{t}")
                A(f"v_lshlrev_b32 v{t}, 16, v{r+h}")
                A(f"v_and_b32 v{t+1}, s{sE+4}, v{r+h}")
                A(f"v_add_f32 v{a_+2*h}, v{a_+2*h}, v{t}")
                A(f"v_add_f32 v{a_+2*h+1}, v{a_+2*h+1}, v{t+1}")
                A(f"v_cvt_pk_bf16_f32 v{r+h}, v{a_+2*h}, v{a_+2*h+1}")
            A(f"s_mov_b32 s{sE}, {mb * 16 * 2048}")
            A(f"buffer_store_dwordx2 v[{r}:{r+1}], v{vE+1}, s[{sO}:{sO+3}], s{sE} offen offset:{fb * 32}")


def gen_prefetch(A, name="pf_kernel"):
    A.begin_kernel(name)
    Lend = A.newlabel("Lend")
    A("s_cmp_ge_u32 s2, 256"); A(f"s_cbranch_scc1 {Lend}")
    A(f"s_load_dwordx4 s[32:35], s[0:1], {KA['w1']}")
    A(f"s_load_dwordx2 s[36:37], s[0:1], {KA['w2']}")
    A("s_waitcnt lgkmcnt(0)")
    srd(A, 4, 32, 33, 7340032); srd(A, 8, 34, 35, 7340032); srd(A, 12, 36, 37, 7340032)
    A("s_mul_i32 s16, s2, 28672")
    A("v_lshlrev_b32 v1, 4, v0")
    A("v_add_u32 v1, s16, v1")
    r = 4
    for sr in (4, 8, 12):
        for j in range(7):
            A(f"s_mov_b32 s17, {j * 4096}")
            A(f"buffer_load_dwordx4 v[{r}:{r+3}], v1, s[{sr}:{sr+3}], s17 offen")
            r += 4
    A("s_waitcnt vmcnt(0)")
    A.label(Lend); A("s_endpgm")
    A.end_kernel(name, r, 0, 48, 256, 256, 0)


GEMM1 = dict(name="gemm1_kernel", MT=128, WM=2, WN=2, NSUB=2, NW=224, K=1024, RSG=7168, KS=1, R=4, PD=1, LAG=0,
             fs=2, fbits=1, wptr=[KA['w1'], KA['w3']], act_off=WS_H2, xm_bits=1, qm_bits=3, epilogue=epi_gemm1,
             etemps=16)
GEMM2 = dict(name="gemm2_kernel", MT=128, WM=2, WN=2, NSUB=1, NW=64, K=3584, RSG=2048, KS=2, R=6, PD=2, LAG=1,
             fs=1, fbits=2, wptr=[KA['w2']], act_off=WS_HH, xm_bits=2, qm_bits=2, epilogue=epi_gemm2,
             etemps=40, dma_g0=0, NSET=4)

if __name__ == "__main__":
    import importlib
    A = Asm()
    which = sys.argv[2].split(",") if len(sys.argv) > 2 else ["kv", "conv", "ln", "g1", "g2"]
    try:
        import gen_front
    except ImportError:
        gen_front = None
    opts = {}
    for kv in sys.argv[3:]:
        k_, v_ = kv.split("=")
        opts[k_] = int(v_)
    GEMM1.update(opts); GEMM2.update(opts)
    if gen_front and opts.get("fstamp"): gen_front.STAMP[0] = opts.get("fstamp")
    if opts.get('rt'):
        RT[0] = 1
        import gen as _g; _g.RT[0] = 1
    for w in which:
        if w == "conv": gen_front.gen_conv(A, prefetch=(opts.get('pf1', 1), opts.get('pf1', 1), opts.get('pf2', 0)))
        if w == "kv": gen_front.gen_kv(A, prefetch=(opts.get('pk1', 0), opts.get('pk1', 0), opts.get('pk2', 0)))
        if w == "fa":
            import gen_a
            gen_a.gen_front_a(A, prefetch=(opts.get('pf1', 1), opts.get('pf1', 1), opts.get('pf2', 0)), nearly=opts.get('nearly', 0), pfm=opts.get('pfm', 1))
        if w == "all":
            import gen2
            gen2.gen_all(A, name=(NAME + "_kernel") if opts.get('single') else "all_kernel", opts=opts)
        if w == "b":
            import gen2
            gen2.gen_b(A, opts=opts)
        if w == "ln": gen_front.gen_ln(A, pf2=opts.get('pl2', 1))
        if w == "g1": gen_gemm(A, GEMM1)
        if w == "g2": gen_gemm(A, GEMM2)
        if w == "pf": gen_prefetch(A)
        if w.startswith("nop"):
            A.begin_kernel(w + "_kernel"); A("s_endpgm"); A.end_kernel(w + "_kernel", 8, 0, 16, 256, 256, 0)
    open(sys.argv[1], "w").write(A.text())
```

```python
from gen import *
from gen_front import MASK, rnd2, unpack2, stamp, stamp_out, STAMP

POLL_MAX = 200000


TMP = [38]

def nonce_write(A, sdbg, vt):
    L = A.newlabel("Lnw")
    A("s_cmp_lg_u32 s2, 0"); A(f"s_cbranch_scc1 {L}")
    A(f"s_memrealtime s[{TMP[0]}:{TMP[0]+1}]")
    A("s_waitcnt lgkmcnt(0)")
    A(f"s_lshl_b32 s{TMP[0]}, s{TMP[0]}, 3"); A(f"s_or_b32 s{TMP[0]}, s{TMP[0]}, 8")
    A(f"v_mov_b32 v{vt}, 0"); A(f"v_mov_b32 v{vt+1}, s{TMP[0]}")
    A("v_cmp_eq_u32 vcc, 0, v0")
    A(f"s_and_saveexec_b64 s[{TMP[0]}:{TMP[0]+1}], vcc")
    A(f"s_cbranch_execz {L}_r")
    A(f"buffer_store_dword v{vt+1}, v{vt}, s[{sdbg}:{sdbg+3}], 0 offen sc1")
    A.label(f"{L}_r")
    A(f"s_mov_b64 exec, s[{TMP[0]}:{TMP[0]+1}]")
    A.label(L)


def nonce_read(A, sdbg, snonce, vt, scnt):
    L = A.newlabel("Lnr"); Ld = A.newlabel("Lnd")
    A(f"s_mov_b32 s{scnt}, {POLL_MAX}")
    A(f"v_mov_b32 v{vt}, 0")
    A.label(L)
    A(f"buffer_load_dword v{vt+1}, v{vt}, s[{sdbg}:{sdbg+3}], 0 offen sc1")
    A("s_waitcnt vmcnt(0)")
    A(f"v_readfirstlane_b32 s{snonce}, v{vt+1}")
    A("s_nop 3")
    A(f"s_cmp_lg_u32 s{snonce}, 0")
    A(f"s_cbranch_scc1 {Ld}")
    A(f"s_sub_u32 s{scnt}, s{scnt}, 1"); A(f"s_cmp_lg_u32 s{scnt}, 0")
    A("s_sleep 1")
    A(f"s_cbranch_scc1 {L}")
    A.label(Ld)


def publish_flag(A, sflag, snonce, val, swave, vt):
    L = A.newlabel("Lpub")
    A("s_waitcnt vmcnt(0)")
    A("s_barrier")
    A(f"s_cmp_lg_u32 s{swave}, 0"); A(f"s_cbranch_scc1 {L}")
    A(f"s_lshl_b32 s{TMP[0]}, s2, 7"); A(f"s_add_u32 s{TMP[0]+1}, s{snonce}, {val}")
    A(f"v_mov_b32 v{vt}, s{TMP[0]}"); A(f"v_mov_b32 v{vt+1}, s{TMP[0]+1}")
    A("s_mov_b64 exec, 1")
    A(f"buffer_store_dword v{vt+1}, v{vt}, s[{sflag}:{sflag+3}], 0 offen sc1")
    A("s_mov_b64 exec, -1")
    A.label(L)


def poll_flags(A, sflag, snonce, vaddr, val, vt, scnt):
    L = A.newlabel("Lpoll"); Ld = A.newlabel("Lpd")
    A(f"s_mov_b32 s{scnt}, {POLL_MAX}")
    A(f"s_add_u32 s{TMP[0]}, s{snonce}, {val}")
    A.label(L)
    A(f"buffer_load_dword v{vt}, v{vaddr}, s[{sflag}:{sflag+3}], 0 offen sc1")
    A("s_waitcnt vmcnt(0)")
    A(f"v_subrev_u32 v{vt}, s{TMP[0]}, v{vt}")
    A(f"v_cmp_gt_u32 vcc, {8 - val}, v{vt}")
    A("s_nop 1")
    A("s_cmp_eq_u64 vcc, -1")
    A(f"s_cbranch_scc1 {Ld}")
    A(f"s_sub_u32 s{scnt}, s{scnt}, 1"); A(f"s_cmp_lg_u32 s{scnt}, 0")
    A("s_sleep 1")
    A(f"s_cbranch_scc1 {L}")
    A.label(Ld)


def gen_front_a(A, name="fronta_kernel", prefetch=(1, 1, 0), nearly=0, pfm=1, merged=False, hook_x=None):
    CSZ = 4416
    TCH = 4 * CSZ
    RKV = 4 * TCH
    RCH = 8192
    SIL = RKV + 4 * RCH
    GRED = SIL + 2048
    LDS = GRED + 8192
    OUTS = 4096 + 32
    CHS = 128 + 16
    KVB = RKV
    if not merged:
        A.begin_kernel(name)
        Lend = A.newlabel("Lend")
        A("s_cmp_ge_u32 s2, 256"); A(f"s_cbranch_scc1 {Lend}")
    stamp(A, 0)
    A(f"s_load_dwordx4 s[44:47], s[0:1], {KA['k']}")
    A(f"s_load_dwordx4 s[48:51], s[0:1], {KA['shift']}")
    A(f"s_load_dwordx2 s[52:53], s[0:1], {KA['ssmD']}")
    A(f"s_load_dwordx4 s[56:59], s[0:1], {KA['w1']}")
    A(f"s_load_dwordx4 s[60:63], s[0:1], {KA['w2']}")
    A(f"s_load_dwordx2 s[64:65], s[0:1], {KA['wmod']}")
    A(f"s_load_dwordx4 s[68:71], s[0:1], {KA['dbg']}")
    A("v_lshrrev_b32 v1, 6, v0"); A("v_and_b32 v2, 63, v0"); A("s_nop 0"); A("v_readfirstlane_b32 s16, v1")
    A(f"s_mov_b32 {MASK}, 0xffff0000")
    A("s_and_b32 s41, s2, 7")
    A("s_lshr_b32 s42, s2, 3")
    A("s_lshl_b32 s17, s41, 7"); A("s_lshl_b32 s18, s42, 2"); A("s_add_u32 s17, s17, s18")
    A("v_and_b32 v248, 15, v0")
    A("v_lshrrev_b32 v249, 4, v0")
    A("s_waitcnt lgkmcnt(0)")
    srd(A, 4, 44, 45, 4 << 20)
    srd(A, 8, 46, 47, 4 << 20)
    srd(A, 24, 48, 49, 8192)
    srd_off(A, 20, 70, 71, WS_RKV, 1024 * 5120)
    srd(A, 72, 68, 69, 256)
    srd_off(A, 28, 70, 71, WS_FLAG, 256 * 128)
    A("s_mov_b64 s[32:33], s[28:29]"); A("s_mov_b64 s[34:35], s[30:31]")
    nonce_write(A, 72, 6)
    A("s_lshl_b32 s19, s42, 17"); A("s_lshl_b32 s18, s41, 8"); A("s_add_u32 s19, s19, s18")
    A("v_lshlrev_b32 v3, 13, v249"); A("v_lshl_add_u32 v3, v248, 4, v3"); A("v_add_u32 v3, s19, v3")
    KR, VR, WR = 8, 36, 52
    for i in range(-3, 4):
        if i == 0: vo = 3
        else:
            A(f"v_add_u32 v4, {i * 2048}, v3") if i > 0 else A(f"v_subrev_u32 v4, {-i * 2048}, v3")
            vo = 4
        r = KR + 4 * (i + 3)
        A(f"buffer_load_dwordx4 v[{r}:{r+3}], v{vo}, s[4:7], 0 offen")
        if i >= 0:
            r = VR + 4 * i
            A(f"buffer_load_dwordx4 v[{r}:{r+3}], v{vo}, s[8:11], 0 offen")
    A("s_lshl_b32 s18, s41, 10"); A("v_lshlrev_b32 v4, 6, v248"); A("v_add_u32 v4, s18, v4")
    for q in range(4):
        A(f"buffer_load_dwordx4 v[{WR + 4*q}:{WR + 4*q + 3}], v4, s[24:27], 0 offen offset:{16 * q}")
    A("s_add_u32 s18, s17, s16"); A("s_lshl_b32 s18, s18, 12")
    A("s_add_u32 s12, s50, s18"); A("s_addc_u32 s13, s51, 0"); A("s_and_b32 s13, s13, 0xffff")
    A("s_mov_b32 s14, 4096"); A("s_mov_b32 s15, 0x00020000")
    A("s_lshl_b32 s18, s17, 1")
    A("s_add_u32 s18, s52, s18"); A("s_addc_u32 s19, s53, 0")
    A("s_load_dwordx2 s[76:77], s[18:19], 0")
    ER = 200
    A("v_lshlrev_b32 v5, 4, v2")
    for j in range(4):
        for e in range(3):
            r = ER + j * 12 + e * 4
            A(f"buffer_load_dwordx4 v[{r}:{r+3}], v5, s[12:15], 0 offen offset:{j * 1024 + e * 4}")
    A("v_mov_b32 v6, 0")
    A("buffer_load_dwordx2 v[250:251], v6, s[12:15], 0 offen")
    A("s_waitcnt vmcnt(13)")
    if not merged: stamp(A, 1)
    A("v_mov_b32 v6, 0")
    A("buffer_load_dword v255, v6, s[72:75], 0 offen sc1")
    if pfm:
        srd(A, 28, 64, 65, 1024 * 12288)
        A(f"s_mul_i32 s18, s2, {12 * 4096}")
        A("v_lshlrev_b32 v6, 4, v0"); A("v_add_u32 v6, s18, v6")
        for j in range(12):
            A(f"s_mov_b32 s18, {j * 4096}")
            A(f"buffer_load_dwordx4 a[{112 + 4*j}:{115 + 4*j}], v6, s[28:31], s18 offen")
    WF = 68
    for e in range(8):
        for j in range(4):
            src = WR + 2 * e + (j >> 1)
            dst = WF + (j * 4 + (e >> 1)) * 2 + (e & 1)
            if j & 1: A(f"v_and_b32 v{dst}, {MASK}, v{src}")
            else: A(f"v_lshlrev_b32 v{dst}, 16, v{src}")
    KF = 100
    for i in range(7):
        for p in range(4):
            unpack2(A, KF + i * 8 + 2 * p, KR + 4 * i + p)
    KVF = 156
    for i in range(4):
        for p in range(4):
            d = KVF + i * 8 + 2 * p
            P, Q, TT = 188 + 4 * (p & 1), 190 + 4 * (p & 1), 196 + (p & 1)
            kk = lambda row: KF + row * 8 + 2 * p
            ww = lambda j: WF + (j * 4 + p) * 2
            A(f"v_pk_mul_f32 v[{d}:{d+1}], v[{kk(i)}:{kk(i)+1}], v[{ww(3)}:{ww(3)+1}]")
            rnd2(A, d, d + 1, TT)
            for j in (2, 1, 0):
                A(f"v_pk_mul_f32 v[{P}:{P+1}], v[{kk(i + 3 - j)}:{kk(i + 3 - j)+1}], v[{ww(j)}:{ww(j)+1}]")
                rnd2(A, P, P + 1, TT)
                A(f"v_pk_add_f32 v[{d}:{d+1}], v[{d}:{d+1}], v[{P}:{P+1}]")
                rnd2(A, d, d + 1, TT)
            unpack2(A, Q, VR + 4 * i + p)
            A(f"v_pk_mul_f32 v[{d}:{d+1}], v[{d}:{d+1}], v[{Q}:{Q+1}]")
    A(f"v_mul_u32_u24 v4, {8 * CHS}, v248")
    A("v_lshlrev_b32 v6, 3, v249"); A("v_sub_u32 v4, v4, v6"); A(f"v_add_u32 v4, {KVB + 120}, v4")
    for e in range(8):
        A(f"v_cvt_pk_bf16_f32 v{8 + 2*e}, v{KVF + 3*8 + e}, v{KVF + 2*8 + e}")
        A(f"v_cvt_pk_bf16_f32 v{9 + 2*e}, v{KVF + 1*8 + e}, v{KVF + 0*8 + e}")
        A(f"ds_write_b64 v4, v[{8 + 2*e}:{9 + 2*e}] offset:{e * CHS}")
    A("s_waitcnt lgkmcnt(0)")
    A("s_barrier")
    A("v_lshrrev_b32 v4, 3, v0"); A("v_and_b32 v3, 7, v0")
    A(f"v_mul_u32_u24 v6, {CHS}, v4"); A("v_lshl_add_u32 v6, v3, 4, v6"); A(f"v_add_u32 v6, {KVB}, v6")
    A("v_mul_u32_u24 v7, 5120, v4"); A("v_lshl_add_u32 v7, v3, 4, v7")
    A(f"s_mul_i32 s18, s41, {128 * 5120}")
    A("s_sub_u32 s19, 31, s42"); A("s_mul_i32 s19, s19, 160"); A("s_add_u32 s18, s18, s19")
    A("v_add_u32 v7, s18, v7")
    for j in range(4):
        A(f"ds_read_b128 v[{8 + 4*j}:{11 + 4*j}], v6 offset:{j * 32 * CHS}")
    for j in range(4):
        A(f"s_waitcnt lgkmcnt({3 - j})")
        A(f"s_mov_b32 s18, {j * 32 * 5120}")
        A(f"buffer_store_dwordx4 v[{8 + 4*j}:{11 + 4*j}], v7, s[20:23], s18 offen sc1")
    Lgot = A.newlabel("Lgot")
    A("s_waitcnt vmcnt(0)")
    A("v_readfirstlane_b32 s93, v255")
    A("s_nop 3")
    A("s_cmp_lg_u32 s93, 0"); A(f"s_cbranch_scc1 {Lgot}")
    nonce_read(A, 72, 93, 24, 55)
    A.label(Lgot)
    publish_flag(A, 32, 93, 1, 16, 24)
    if not merged: stamp(A, 2)
    GV = 112
    A("s_cmp_ge_u32 s2, 96"); A("s_cselect_b32 s43, 1, 0")
    A("s_mul_i32 s18, s43, 96"); A("s_sub_u32 s54, s2, s18")
    srd(A, 24, 62, 63, 2048)
    srd(A, 28, 64, 65, 1024 * 12288)
    A("s_cmp_ge_u32 s2, 192"); A("s_cselect_b32 s30, 0, s30"); A("s_cselect_b32 s26, 0, s26")
    A("s_lshl_b32 s18, s43, 10"); A("v_lshlrev_b32 v6, 2, v0"); A("v_add_u32 v6, s18, v6")
    A("buffer_load_dword v252, v6, s[24:27], 0 offen")
    A("v_lshrrev_b32 v125, 3, v0"); A("v_mul_u32_u24 v125, 12288, v125")
    A("v_and_b32 v7, 7, v0"); A("v_lshl_add_u32 v125, v7, 4, v125")
    A("s_lshl_b32 s18, s54, 7"); A(f"s_mul_i32 s19, s43, {512 * 12288}"); A("s_add_u32 s18, s18, s19")
    A("v_add_u32 v125, s18, v125")
    gvl = []
    for j in range(16):
        gvl.append([f"s_mov_b32 s55, {j * 32 * 12288}",
                    f"buffer_load_dwordx4 a[{GV + 4*j}:{GV + 4*j + 3}], v125, s[28:31], s55 offen"])
    pfl = []
    for bi, lo in enumerate((56, 58, 60)):
        npc = prefetch[bi]
        if not npc: continue
        if npc == 1: npc = 7
        A(f"s_mul_i32 s18, s2, {npc * 4096}")
        A(f"v_lshlrev_b32 v{120 + bi}, 4, v0"); A(f"v_add_u32 v{120 + bi}, s18, v{120 + bi}")
        srd(A, 80 + 4 * (bi & 1), lo, lo + 1, 7340032)
        for j in range(npc):
            n = len(pfl)
            pfl.append([f"s_mov_b32 s55, {j * 4096}",
                        f"buffer_load_dwordx4 v[{128 + 4 * (n % 8)}:{131 + 4 * (n % 8)}], v{120 + bi}, s[{80 + 4*(bi & 1)}:{83 + 4*(bi & 1)}], s55 offen"])
    for x in pfl[:nearly]:
        for y in x: A(y)
    pfl = pfl[nearly:]
    A(f"s_mul_i32 s18, s16, {TCH}")
    A("v_add_u32 v6, s18, v5")
    W = 100
    for j in range(4):
        e0, e1, e2 = ER + j * 12, ER + j * 12 + 4, ER + j * 12 + 8
        off = 128 + j * 1024
        Wj = W + (j & 1) * 8
        for q in range(4):
            A(f"v_alignbit_b32 v{Wj + q}, v{e1 + q}, v{e0 + q}, 16")
            A(f"v_alignbit_b32 v{Wj + 4 + q}, v{e2 + q}, v{e1 + q}, 16")
        A(f"ds_write_b128 v6, v[{e0}:{e0+3}] offset:{off}")
        A(f"ds_write_b128 v6, v[{Wj}:{Wj+3}] offset:{off + CSZ}")
        A(f"ds_write_b128 v6, v[{e1}:{e1+3}] offset:{off + 2 * CSZ}")
        A(f"ds_write_b128 v6, v[{Wj+4}:{Wj+7}] offset:{off + 3 * CSZ}")
    Z = 40
    for i in range(16): A(f"v_mov_b32 v{Z + i}, 0")
    A("v_cmp_eq_u32 vcc, 7, v2")
    A("v_lshlrev_b32 v116, 16, v250")
    A("v_alignbit_b32 v117, v251, v250, 16")
    A(f"v_cndmask_b32 v{Z + 7}, 0, v116, vcc")
    A(f"v_cndmask_b32 v{Z + 11}, 0, v250, vcc")
    A(f"v_cndmask_b32 v{Z + 14}, 0, v116, vcc")
    A(f"v_cndmask_b32 v{Z + 15}, 0, v117, vcc")
    A("v_cmp_gt_u32 vcc, 8, v2")
    A("s_and_saveexec_b64 s[22:23], vcc")
    for c in range(4):
        A(f"ds_write_b128 v6, v[{Z + 4*c}:{Z + 4*c + 3}] offset:{c * CSZ}")
    A("s_mov_b64 exec, s[22:23]")
    srd_off(A, 20, 70, 71, WS_RKV, 1024 * 5120)
    A(f"s_mul_i32 s18, s16, {RCH}"); A(f"s_add_u32 s18, s18, {RKV}")
    A("v_add_u32 v7, s18, v5")
    for j in range(3):
        A(f"ds_write_b128 v7, v[{Z}:{Z+3}] offset:{5120 + j * 1024}")
    vTB, vKB = 3, 4
    A("v_and_b32 v253, 15, v2"); A("v_lshrrev_b32 v254, 4, v2")
    A("v_add_u32 v1, 1, v253"); A("v_and_b32 v1, 3, v1")
    A(f"v_mul_u32_u24 v{vTB}, {CSZ - 2}, v1")
    A(f"v_lshl_add_u32 v{vTB}, v253, 1, v{vTB}")
    A(f"v_lshl_add_u32 v{vTB}, v254, 4, v{vTB}")
    A(f"s_mul_i32 s18, s16, {TCH}"); A(f"s_add_u32 s18, s18, 2")
    A(f"v_add_u32 v{vTB}, s18, v{vTB}")
    A("v_sub_u32 v1, 15, v253"); A(f"v_mul_u32_u24 v{vKB}, 160, v1")
    A(f"v_lshl_add_u32 v{vKB}, v254, 4, v{vKB}")
    A(f"s_mul_i32 s18, s16, {RCH}"); A(f"s_add_u32 s18, s18, {RKV}")
    A(f"v_add_u32 v{vKB}, s18, v{vKB}")
    A("v_and_b32 v1, 31, v2"); A("v_lshlrev_b32 v1, 3, v1"); A("v_add_u32 v1, s41, v1"); A("v_lshlrev_b32 v1, 7, v1")
    poll_flags(A, 32, 93, 1, 1, 6, 55)
    if not merged: stamp(A, 3)
    A("s_add_u32 s18, s17, s16"); A("s_mul_i32 s18, s18, 5120")
    for j in range(5):
        A(f"s_add_u32 s19, s18, {j * 1024}")
        A(f"buffer_load_dwordx4 v[{56 + 4*j}:{59 + 4*j}], v5, s[20:23], s19 offen sc1")
    ACC = 8
    for i in range(32): A(f"v_mov_b32 v{ACC + i}, 0")
    for j in range(5):
        A(f"s_waitcnt vmcnt({4 - j})")
        A(f"ds_write_b128 v7, v[{56 + 4*j}:{59 + 4*j}] offset:{j * 1024}")
    npre = max(0, len(pfl) - 16)
    for x in pfl[:npre]:
        for y in x: A(y)
    pfl = pfl[npre:]
    A("s_waitcnt lgkmcnt(0)")
    NR = 10
    def tf(stream, tau): return stream * NR * 4 + ((tau + 2) % NR) * 4
    KVA = 2 * NR * 4
    def kf(p, which, kb): return KVA + p * 16 + (which * 2 + kb) * 4
    NAG = KVA + 32
    def rd_t(stream, tau):
        r = tf(stream, tau)
        off = 32 * (tau + 2)
        return [f"ds_read_b64 a[{r}:{r+1}], v{vTB} offset:{off}", f"ds_read_b64 a[{r+2}:{r+3}], v{vTB} offset:{off + 8}"]
    def rd_kv(p, j):
        res = []
        for which in range(2):
            dm = j + 16 * which
            for kb in range(2):
                r = kf(p, which, kb)
                res.append(f"ds_read_b128 a[{r}:{r+3}], v{vKB} offset:{160 * dm + 64 * (1 - kb)}")
        return res
    def reads_for(j, first=False):
        res = rd_kv(j & 1, j)
        for st in range(2):
            d = j + 16 * st
            for tau in range(4 * d - (2 if first else 0), 4 * d + 4):
                res += rd_t(st, tau)
        return res
    for x in reads_for(0, True): A(x)
    for j in range(16):
        A("s_waitcnt lgkmcnt(0)")
        mf = []
        p = j & 1
        for kb in range(2):
            for mb in range(4):
                t_lo = tf(0, 4 * j + mb - 2 * kb); t_hi = tf(1, 4 * (j + 16) + mb - 2 * kb)
                a1 = ACC + (mb * 2 + 1) * 4; a0 = ACC + (mb * 2) * 4
                k0 = kf(p, 0, kb); k1 = kf(p, 1, kb)
                mf.append(f"v_mfma_f32_16x16x32_bf16 v[{a1}:{a1+3}], a[{t_lo}:{t_lo+3}], a[{k0}:{k0+3}], v[{a1}:{a1+3}]")
                mf.append(f"v_mfma_f32_16x16x32_bf16 v[{a0}:{a0+3}], a[{t_lo}:{t_lo+3}], a[{k1}:{k1+3}], v[{a0}:{a0+3}]")
                mf.append(f"v_mfma_f32_16x16x32_bf16 v[{a1}:{a1+3}], a[{t_hi}:{t_hi+3}], a[{k1}:{k1+3}], v[{a1}:{a1+3}]")
        side = {}
        if j < 15:
            for i, x in enumerate(reads_for(j + 1)):
                side.setdefault(i, []).append(x)
        side.setdefault(20, []).extend(gvl[j])
        if j < len(pfl):
            side.setdefault(22, []).extend(pfl[j])
        for x in interleave(mf, side): A(x)
    A("s_nop 7"); A("s_nop 7")
    if not merged: stamp(A, 4)
    if hook_x: hook_x(A)
    if not merged: A("s_barrier")
    A("v_mul_u32_u24 v1, 24, v254")
    A(f"v_sub_u32 v5, v{vKB}, v1"); A("v_add_u32 v5, 24, v5")
    KVR = 48
    for mb in range(4):
        for nb in range(2):
            r = KVR + (mb * 2 + nb) * 2
            A(f"ds_read_b64 v[{r}:{r+1}], v5 offset:{2560 * (1 - nb) + 32 * (3 - mb)}")
    A("s_lshr_b32 s18, s16, 1"); A("s_cmp_eq_u32 s18, 0"); A("s_cselect_b32 s78, s76, s77")
    A("s_and_b32 s18, s16, 1")
    A("s_lshl_b32 s19, s78, 16"); A("s_and_b32 s78, s78, 0xffff0000"); A("s_cmp_eq_u32 s18, 0"); A("s_cselect_b32 s78, s19, s78")
    A("s_mov_b32 s79, s78")
    A("v_lshlrev_b32 v1, 7, v253"); A("v_lshl_add_u32 v1, v254, 3, v1")
    A(f"s_mul_i32 s18, s16, {TCH if merged else OUTS}"); A("v_add_u32 v1, s18, v1")
    A("s_waitcnt lgkmcnt(0)")
    for mb in range(4):
        for nb in range(2):
            a_ = ACC + (mb * 2 + nb) * 4
            r = KVR + (mb * 2 + nb) * 2
            u = 64 + ((mb * 2 + nb) & 1) * 8
            rnd2(A, a_, a_ + 1, u + 4); rnd2(A, a_ + 2, a_ + 3, u + 5)
            A(f"v_and_b32 v{u}, {MASK}, v{r+1}"); A(f"v_lshlrev_b32 v{u+1}, 16, v{r+1}")
            A(f"v_and_b32 v{u+2}, {MASK}, v{r}"); A(f"v_lshlrev_b32 v{u+3}, 16, v{r}")
            A(f"v_pk_mul_f32 v[{u}:{u+1}], v[{u}:{u+1}], s[78:79]")
            A(f"v_pk_mul_f32 v[{u+2}:{u+3}], v[{u+2}:{u+3}], s[78:79]")
            rnd2(A, u, u + 1, u + 4); rnd2(A, u + 2, u + 3, u + 5)
            A(f"v_pk_add_f32 v[{a_}:{a_+1}], v[{a_}:{a_+1}], v[{u}:{u+1}]")
            A(f"v_pk_add_f32 v[{a_+2}:{a_+3}], v[{a_+2}:{a_+3}], v[{u+2}:{u+3}]")
            A(f"v_cvt_pk_bf16_f32 v{u+6}, v{a_}, v{a_+1}")
            A(f"v_cvt_pk_bf16_f32 v{u+7}, v{a_+2}, v{a_+3}")
            A(f"ds_write_b64 v1, v[{u+6}:{u+7}] offset:{2048 * nb + 32 * mb}")
    if merged:
        srd_off(A, 4, 70, 71, WS_YP, 4 << 20)
        A(f"s_mul_i32 s18, s16, {TCH}"); A("v_lshlrev_b32 v5, 4, v2"); A("v_add_u32 v1, s18, v5")
        A("s_waitcnt lgkmcnt(0)")
        for j in range(4):
            A(f"ds_read_b128 v[{48 + 4*j}:{51 + 4*j}], v1 offset:{j * 1024}")
        A("s_add_u32 s18, s17, s16"); A("s_lshl_b32 s18, s18, 12")
        for j in range(4):
            A(f"s_waitcnt lgkmcnt({3 - j})")
            A(f"buffer_store_dwordx4 v[{48 + 4*j}:{51 + 4*j}], v5, s[4:7], s18 offen offset:{j * 1024} sc1")
    Lns = A.newlabel("Lns")
    A("s_cmp_ge_u32 s2, 192"); A(f"s_cbranch_scc1 {Lns}")
    unpack2(A, 80, 252)
    for i in range(2): A(f"v_mul_f32 v{82 + i}, 0xbfb8aa3b, v{80 + i}")
    for i in range(2): A(f"v_exp_f32 v{82 + i}, v{82 + i}")
    A("s_nop 0")
    for i in range(2): A(f"v_add_f32 v{82 + i}, 1.0, v{82 + i}")
    for i in range(2): A(f"v_rcp_f32 v{82 + i}, v{82 + i}")
    A("s_nop 0")
    for i in range(2): A(f"v_mul_f32 v{82 + i}, v{82 + i}, v{80 + i}")
    rnd2(A, 82, 83, 84)
    A("v_lshlrev_b32 v80, 1, v0"); A("v_and_b32 v81, 31, v80"); A("v_lshlrev_b32 v81, 6, v81")
    A("v_lshrrev_b32 v80, 5, v80"); A("v_lshl_add_u32 v81, v80, 2, v81"); A(f"v_add_u32 v81, {SIL}, v81")
    for i in range(2): A(f"ds_write_b32 v81, v{82 + i} offset:{i * 64}")
    A.label(Lns)
    A("s_waitcnt lgkmcnt(0)")
    A("s_barrier")
    if not merged:
        srd_off(A, 4, 70, 71, WS_YP, 4 << 20)
        A("v_lshlrev_b32 v1, 3, v0")
        for j in range(2):
            for c in range(4):
                r = 48 + (j * 4 + c) * 2
                A(f"ds_read_b64 v[{r}:{r+1}], v1 offset:{c * OUTS + j * 2048}")
        A("v_lshlrev_b32 v5, 13, v0")
        A("s_lshl_b32 s18, s17, 1"); A("v_add_u32 v5, s18, v5")
        A("s_mov_b32 s18, 0x05040100"); A("s_mov_b32 s19, 0x07060302")
        A("s_waitcnt lgkmcnt(0)")
        for j in range(2):
            b = 48 + j * 8
            o = 64 + j * 8
            for rr in range(4):
                sel = "s18" if rr % 2 == 0 else "s19"
                dw = rr >> 1
                A(f"v_perm_b32 v{o + 2*rr}, v{b + 2 + dw}, v{b + dw}, {sel}")
                A(f"v_perm_b32 v{o + 2*rr + 1}, v{b + 6 + dw}, v{b + 4 + dw}, {sel}")
            for rr in range(4):
                A(f"s_mov_b32 s20, {j * 1024 * 2048 + (rr >> 1) * 4096}")
                A(f"buffer_store_dwordx2 v[{o + 2*rr}:{o + 2*rr + 1}], v5, s[4:7], s20 offen offset:{(rr & 1) * 2048}{' sc1' if merged else ''}")
    if not merged: stamp(A, 5)
    Lfin = A.newlabel("Lfin")
    A("s_cmp_ge_u32 s2, 192"); A(f"s_cbranch_scc1 {Lfin}")
    A("v_lshrrev_b32 v1, 3, v0"); A("v_lshlrev_b32 v1, 6, v1"); A(f"v_add_u32 v1, {SIL}, v1")
    SV = 80
    for q in range(4):
        A(f"ds_read_b128 v[{SV + 4*q}:{SV + 4*q + 3}], v1 offset:{16 * q}")
    GA_ = 96
    for i in range(8): A(f"v_mov_b32 v{GA_ + i}, 0")
    A("s_waitcnt vmcnt(0) lgkmcnt(0)")
    for j in range(16):
        sj = SV + j
        base = sj & ~1
        sel = "op_sel:[0,0,0] op_sel_hi:[1,0,1]" if sj % 2 == 0 else "op_sel:[0,1,0] op_sel_hi:[1,1,1]"
        for q in range(4):
            A(f"v_accvgpr_read_b32 v{112 + q}, a{GV + 4 * j + q}")
        for q in range(4):
            unpack2(A, 104 + 2 * q, 112 + q)
        for q in range(4):
            u = 104 + 2 * q
            A(f"v_pk_fma_f32 v[{GA_ + 2*q}:{GA_ + 2*q + 1}], v[{u}:{u+1}], v[{base}:{base+1}], v[{GA_ + 2*q}:{GA_ + 2*q + 1}] {sel}")
    A("v_lshlrev_b32 v1, 5, v0"); A(f"v_add_u32 v1, {GRED}, v1")
    A(f"ds_write_b128 v1, v[{GA_}:{GA_+3}]")
    A(f"ds_write_b128 v1, v[{GA_+4}:{GA_+7}] offset:16")
    A("s_waitcnt lgkmcnt(0)")
    A("s_barrier")
    A("s_cmp_lg_u32 s16, 0"); A(f"s_cbranch_scc1 {Lfin}")
    A("v_lshlrev_b32 v1, 2, v2"); A(f"v_add_u32 v6, {GRED}, v1")
    for rg in range(32):
        A(f"ds_read_b32 v{80 + rg}, v6 offset:{rg * 256}")
    A("s_waitcnt lgkmcnt(0)")
    for st in (16, 8, 4, 2, 1):
        for i in range(st):
            A(f"v_add_f32 v{80 + i}, v{80 + i}, v{80 + i + st}")
    srd_off(A, 8, 70, 71, WS_MOD, 2 * 6144 * 4)
    A("s_lshl_b32 s18, s54, 8"); A("s_mul_i32 s19, s43, 24576"); A("s_add_u32 s18, s18, s19")
    A("v_add_u32 v1, s18, v1")
    A(f"buffer_store_dword v80, v1, s[8:11], 0 offen{' sc1' if merged else ''}")
    A.label(Lfin)
    if merged: return
    rt_out(A, Lend, 16)
    A.label(Lend); A("s_endpgm")
    A.end_kernel(name, 256, 176, 102, 256, 256, LDS)
```

```python
import sys, math

NAME = "adaLN_cond__ssm_conv_h3__glu_gated_swiglu__prompt"

WS_MOD = 0
WS_YP = 1 << 20
WS_X1 = WS_YP + (4 << 20)
WS_H2 = WS_X1 + (4 << 20)
WS_HH = WS_H2 + (4 << 20)
WS_RKV = WS_HH + 2048 * 3584 * 2
WS_FLAG = WS_RKV + 1024 * 5120
WS_END = WS_FLAG + 768 * 128

KA = dict(q=0, k=8, v=16, shift=24, ssmk=32, ssmD=40, bx=48, w1=56, w3=64, w2=72, c=80, wmod=88, out=96, dbg=104, ws=112)


RT = [0]

WS_DBG = 200 << 20

def rt_out(A, Lend, swave):
    if not RT[0]: return
    A("s_waitcnt vmcnt(0) lgkmcnt(0)")
    A("s_memrealtime s[38:39]")
    A(f"s_load_dwordx2 s[36:37], s[0:1], {KA['ws']}")
    A("s_waitcnt lgkmcnt(0)")
    srd_off(A, 8, 36, 37, WS_DBG + 512 * len(A.launch), 512)
    A(f"s_and_b32 s36, s2, 31"); A(f"s_add_u32 s36, s36, s{swave}"); A("s_cmp_lg_u32 s36, 0"); A(f"s_cbranch_scc1 {Lend}")
    A("s_lshr_b32 s36, s2, 5"); A("s_lshl_b32 s36, s36, 5")
    A("s_mov_b64 exec, 1")
    A("v_mov_b32 v0, s36"); A("v_mov_b32 v2, s100"); A("v_mov_b32 v3, s38")
    A("buffer_store_dwordx2 v[2:3], v0, s[8:11], 0 offen")
    for i in range(6):
        A(f"v_mov_b32 v2, s{94 + i}")
        A(f"buffer_store_dword v2, v0, s[8:11], 0 offen offset:{8 + 4 * i}")


class Asm:
    def __init__(self):
        self.lines = []
        self.launch = []
        self.kd = []
        self.uid = 0

    def __call__(self, s):
        self.lines.append("    " + s)

    def label(self, l):
        self.lines.append(l + ":")

    def newlabel(self, p="L"):
        self.uid += 1
        return f"{p}_{self.uid}"

    def begin_kernel(self, name):
        self.lines.append(f".globl {name}")
        self.lines.append(".p2align 8")
        self.lines.append(f".type {name},@function")
        self.lines.append(f"{name}:")
        if RT[0]:
            self("s_memrealtime s[100:101]")
            self("v_lshrrev_b32 v255, 6, v0") if False else None

    def end_kernel(self, name, nvgpr, nagpr, nsgpr, grid, block, lds):
        acc_off = (nvgpr + 3) // 4 * 4
        nfv = acc_off + nagpr if nagpr else nvgpr
        self.kd.append(f""".p2align 6
.amdhsa_kernel {name}
  .amdhsa_next_free_vgpr {nfv}
  .amdhsa_next_free_sgpr {nsgpr}
  .amdhsa_accum_offset {acc_off}
  .amdhsa_group_segment_fixed_size 0
  .amdhsa_kernarg_size 120
  .amdhsa_user_sgpr_count 2
  .amdhsa_user_sgpr_kernarg_segment_ptr 1
  .amdhsa_system_sgpr_workgroup_id_x 1
  .amdhsa_float_denorm_mode_32 3
.end_amdhsa_kernel""")
        if name == NAME + "_kernel":
            self.launch.append(f"; @launch grid=({grid},1,1) block=({block},1,1) lds={lds}")
        else:
            self.launch.append(f"; @launch kernel={name} grid=({grid},1,1) block=({block},1,1) lds={lds}")

    def text(self):
        out = list(self.launch)
        out.append('.amdgcn_target "amdgcn-amd-amdhsa--gfx950"')
        out.append(".text")
        out += self.lines
        out.append('.section .rodata,"a"')
        out += self.kd
        return "\n".join(out) + "\n"


def srd(A, d, lo, hi, nbytes):
    A(f"s_mov_b32 s{d}, s{lo}")
    A(f"s_and_b32 s{d+1}, s{hi}, 0xffff")
    A(f"s_mov_b32 s{d+2}, {nbytes}")
    A(f"s_mov_b32 s{d+3}, 0x00020000")


def srd_off(A, d, lo, hi, off, nbytes):
    A(f"s_add_u32 s{d}, s{lo}, {off}")
    A(f"s_addc_u32 s{d+1}, s{hi}, 0")
    A(f"s_and_b32 s{d+1}, s{d+1}, 0xffff")
    A(f"s_mov_b32 s{d+2}, {nbytes}")
    A(f"s_mov_b32 s{d+3}, 0x00020000")


def interleave(main, side_at):
    out = []
    for i, m in enumerate(main):
        out.append(m)
        out += side_at.get(i, [])
    return out


def gen_gemm(A, cfg):
    name = cfg['name']
    MT, WM, WN = cfg['MT'], cfg['WM'], cfg['WN']
    NSUB, NW = cfg['NSUB'], cfg['NW']
    K, RSG = cfg['K'], cfg['RSG']
    KS, R, PD, LAG = cfg['KS'], cfg['R'], cfg['PD'], cfg['LAG']
    fs, fbits = cfg['fs'], cfg['fbits']
    fm = (1 << fbits) - 1
    KBT = K // 32
    S = KBT
    T = S // KS
    RS = NW * 2
    CPR = RS // 16
    WT_BYTES = 32 * RS
    assert WT_BYTES % 1024 == 0
    ipt = WT_BYTES // 1024
    ACT_BYTES = MT * 64
    SUB_BYTES = ACT_BYTES + NSUB * WT_BYTES
    SLOT = KS * SUB_BYTES
    LDS = R * SLOT
    assert LDS <= 163840, LDS
    NWAVE = 4
    assert WM * WN == NWAVE
    MBW = MT // 16 // WM
    FBW = NW // 16 // WN
    nA = MT // 16 // NWAVE
    assert (NSUB * ipt) % NWAVE == 0
    nW = NSUB * ipt // NWAVE
    wps = NWAVE // NSUB
    assert ipt % nW == 0 or True
    n_dma = KS * (nA + nW)
    NCLS = min(1 << fbits, FBW)
    for b in range(NW // 16):
        for k0 in (0, 8, 16, 24):
            segs = set(((k * RS + 32 * (b ^ ((k >> fs) & fm))) // 32) % 8 for k in range(k0, k0 + 8))
            assert len(segs) == 8, (b, k0, segs)
    assert fs + fbits <= 4
    NACC = NSUB * FBW * MBW * 4
    def acc(sub, fb, mb):
        return ((sub * FBW + fb) * MBW + mb) * 4
    vn = [NACC]
    def valloc(n=1):
        r = vn[0]; vn[0] += n; return r
    vLane = valloc()
    if vn[0] % 2: valloc()
    ubase = vn[0]
    vT0 = valloc(); vT1 = valloc(); vT2 = valloc(); vT3 = valloc()
    vWoff = valloc(nW); vAoff = valloc(nA)
    vX0 = valloc(); vW0 = valloc(NCLS)
    vXc = valloc(); vWc = valloc(NCLS)
    loop_end = vn[0]
    vn[0] = ubase
    vE = valloc(8)
    vE2 = valloc(cfg.get('etemps', 16))
    NV = max(vn[0], loop_end)
    assert NV <= 256, NV
    NSET = cfg.get("NSET", PD + 1)
    SETSZ = (NSUB * FBW + MBW) * 4
    def wfrag(p, sub, fb): return p * SETSZ + (sub * FBW + fb) * 4
    def xfrag(p, mb): return p * SETSZ + (NSUB * FBW + mb) * 4
    NA_ = NSET * SETSZ
    assert NA_ <= 256
    sW, sX, sO = 4, 8, 12
    sWave, sKW, sKX, sCnt, sWB, sAB, sRd, sWr, sT0, sT1, sMT, sNT, sWM, sWN, sKXe, sTK = range(16, 32)
    sP = 32
    sE = 48

    A.begin_kernel(name)
    Lend = A.newlabel("Lend")
    A(f"s_cmp_ge_u32 s2, 256")
    A(f"s_cbranch_scc1 {Lend}")
    wk = cfg['wptr']
    if cfg.get('stamp'): A("s_memtime s[56:57]"); A("s_memrealtime s[64:65]")
    A(f"s_load_dwordx2 s[{sP}:{sP+1}], s[0:1], {wk[0]}")
    A(f"s_load_dwordx2 s[{sP+2}:{sP+3}], s[0:1], {wk[-1]}")
    A(f"s_load_dwordx2 s[{sP+4}:{sP+5}], s[0:1], {KA['ws']}")
    A(f"s_load_dwordx2 s[{sP+6}:{sP+7}], s[0:1], {KA['out']}")
    A(f"v_lshrrev_b32 v{vT0}, 6, v0")
    A(f"v_and_b32 v{vLane}, 63, v0")
    A(f"s_nop 0")
    A(f"v_readfirstlane_b32 s{sWave}, v{vT0}")
    xm_bits, = (cfg['xm_bits'],)
    qm_bits = cfg['qm_bits']
    A(f"s_and_b32 s{sT0}, s2, 7")
    A(f"s_lshr_b32 s{sT1}, s2, 3")
    A(f"s_and_b32 s{sMT}, s{sT0}, {(1 << xm_bits) - 1}")
    A(f"s_lshl_b32 s{sMT}, s{sMT}, {qm_bits}")
    A(f"s_and_b32 s{sTK}, s{sT1}, {(1 << qm_bits) - 1}")
    A(f"s_add_u32 s{sMT}, s{sMT}, s{sTK}")
    A(f"s_lshr_b32 s{sNT}, s{sT0}, {xm_bits}")
    A(f"s_lshl_b32 s{sNT}, s{sNT}, {5 - qm_bits}")
    A(f"s_lshr_b32 s{sTK}, s{sT1}, {qm_bits}")
    A(f"s_add_u32 s{sNT}, s{sNT}, s{sTK}")
    A(f"s_lshr_b32 s{sWM}, s{sWave}, {int(math.log2(WN))}")
    A(f"s_and_b32 s{sWN}, s{sWave}, {WN - 1}")
    A(f"s_waitcnt lgkmcnt(0)")
    if NSUB == 2:
        A(f"s_cmp_ge_u32 s{sWave}, {wps}")
        A(f"s_cselect_b32 s{sT0}, s{sP+2}, s{sP}")
        A(f"s_cselect_b32 s{sT1}, s{sP+3}, s{sP+1}")
        srd(A, sW, sT0, sT1, K * RSG)
    else:
        srd(A, sW, sP, sP + 1, K * RSG)
    srd_off(A, sX, sP + 4, sP + 5, cfg['act_off'], 2048 * K * 2)
    A(f"s_and_b32 s{sT0}, s{sWave}, {wps - 1}")
    A(f"s_mul_i32 s{sT0}, s{sT0}, {nW * 64}")
    A(f"s_mul_i32 s{sT1}, s{sNT}, {RS}")
    magic = (65536 + CPR - 1) // CPR
    for Q in range(ipt * 64):
        assert (Q * magic) >> 16 == Q // CPR
    for j in range(nW):
        A(f"v_add_u32 v{vT0}, s{sT0}, v{vLane}")
        if j: A(f"v_add_u32 v{vT0}, {j * 64}, v{vT0}")
        A(f"v_mul_u32_u24 v{vT1}, {magic}, v{vT0}")
        A(f"v_lshrrev_b32 v{vT1}, 16, v{vT1}")
        A(f"v_mul_u32_u24 v{vT2}, {CPR}, v{vT1}")
        A(f"v_sub_u32 v{vT2}, v{vT0}, v{vT2}")
        A(f"v_lshrrev_b32 v{vT3}, {fs}, v{vT1}")
        A(f"v_and_b32 v{vT3}, {fm}, v{vT3}")
        A(f"v_lshlrev_b32 v{vT3}, 1, v{vT3}")
        A(f"v_xor_b32 v{vT2}, v{vT2}, v{vT3}")
        A(f"v_lshlrev_b32 v{vT2}, 4, v{vT2}")
        A(f"v_mul_u32_u24 v{vT1}, {RSG}, v{vT1}")
        A(f"v_add3_u32 v{vWoff + j}, v{vT1}, v{vT2}, s{sT1}")
    A(f"s_mul_i32 s{sT0}, s{sMT}, {MT // 16}")
    A(f"s_mul_i32 s{sT1}, s{sWave}, {nA}")
    A(f"s_add_u32 s{sT0}, s{sT0}, s{sT1}")
    A(f"s_mul_i32 s{sT0}, s{sT0}, {KBT * 1024}")
    A(f"v_lshlrev_b32 v{vT0}, 4, v{vLane}")
    for j in range(nA):
        A(f"v_add_u32 v{vAoff + j}, s{sT0}, v{vT0}")
        if j: A(f"v_add_u32 v{vAoff + j}, {j * KBT * 1024}, v{vAoff + j}")
    A(f"s_mul_i32 s{sWB}, s{sWave}, {nW * 1024}")
    A(f"s_add_u32 s{sWB}, s{sWB}, {ACT_BYTES}")
    A(f"s_mul_i32 s{sAB}, s{sWave}, {nA * 1024}")
    A(f"s_mul_i32 s{sT0}, s{sWM}, {MBW * 1024}")
    A(f"v_lshl_add_u32 v{vX0}, v{vLane}, 4, s{sT0}")
    A(f"v_lshrrev_b32 v{vT0}, 2, v{vLane}")
    A(f"v_and_b32 v{vT1}, 3, v{vLane}")
    A(f"v_mul_u32_u24 v{vT2}, {RS}, v{vT0}")
    A(f"v_lshl_add_u32 v{vT2}, v{vT1}, 3, v{vT2}")
    A(f"v_add_u32 v{vT2}, {ACT_BYTES}, v{vT2}")
    A(f"v_lshrrev_b32 v{vT3}, {fs}, v{vT0}")
    A(f"v_and_b32 v{vT3}, {fm}, v{vT3}")
    A(f"s_mul_i32 s{sT0}, s{sWN}, {FBW}")
    for c in range(NCLS):
        A(f"s_add_u32 s{sT1}, s{sT0}, {c}")
        A(f"v_xor_b32 v{vT1}, s{sT1}, v{vT3}")
        A(f"v_lshl_add_u32 v{vW0 + c}, v{vT1}, 5, v{vT2}")

    def dma_instrs(u, slot_s, slot_const, kW_s, kX_s):
        res = []
        for j in range(nA):
            cst = slot_const + u * SUB_BYTES + j * 1024
            if slot_s is None:
                m0 = [f"s_add_u32 m0, s{sAB}, {cst}"]
            else:
                m0 = [f"s_add_u32 s{sTK}, s{sAB}, s{slot_s}", f"s_add_u32 m0, s{sTK}, {cst}"]
            res.append((m0, f"buffer_load_dwordx4 v{vAoff + j}, s[{sX}:{sX+3}], s{kX_s} offen lds"))
        for j in range(nW):
            cst = slot_const + u * SUB_BYTES + j * 1024
            if slot_s is None:
                m0 = [f"s_add_u32 m0, s{sWB}, {cst}"]
            else:
                m0 = [f"s_add_u32 s{sTK}, s{sWB}, s{slot_s}", f"s_add_u32 m0, s{sTK}, {cst}"]
            res.append((m0, f"buffer_load_dwordx4 v{vWoff + j}, s[{sW}:{sW+3}], s{kW_s} offen lds"))
        return res

    def ds_reads(p, u, vX, vW, extra=0):
        res = []
        for mb in range(MBW):
            r = xfrag(p, mb)
            res.append(f"ds_read_b128 a[{r}:{r+3}], v{vX} offset:{extra + u * SUB_BYTES + mb * 1024}")
        for sub in range(NSUB):
            for fb in range(FBW):
                cls = fb % NCLS
                r = wfrag(p, sub, fb)
                off = extra + u * SUB_BYTES + sub * WT_BYTES + 32 * (fb - cls)
                assert off + 16 * RS < 65536
                res.append(f"ds_read_b64_tr_b16 a[{r}:{r+1}], v{vW + cls} offset:{off}")
                res.append(f"ds_read_b64_tr_b16 a[{r+2}:{r+3}], v{vW + cls} offset:{off + 16 * RS}")
        return res

    t0 = (PD - 1) // KS
    assert t0 <= LAG
    n_pro = t0 + R - LAG
    for st in range(n_pro):
        for u in range(KS):
            A(f"s_mov_b32 s{sT0}, {(st * KS + u) * 32 * RSG}")
            A(f"s_mov_b32 s{sT1}, {(st * KS + u) * 1024}")
            for m0, d in dma_instrs(u, None, (st % R) * SLOT, sT0, sT1):
                for x in m0: A(x)
                A("s_nop 0")
                A(d)
    A(f"s_mov_b32 s{sKW}, {n_pro * KS * 32 * RSG}")
    A(f"s_mov_b32 s{sKX}, {n_pro * KS * 1024}")
    for i in range(NACC):
        A(f"v_mov_b32 v{i}, 0")
    nst = t0 + 1
    A(f"s_waitcnt vmcnt({n_dma * (n_pro - nst)})")
    A("s_barrier")
    for s in range(PD):
        st, u = s // KS, s % KS
        if st == 0:
            for x in ds_reads(s % NSET, u, vX0, vW0): A(x)
        else:
            A(f"v_add_u32 v{vXc}, {st * SLOT}, v{vX0}")
            for c in range(NCLS): A(f"v_add_u32 v{vWc + c}, {st * SLOT}, v{vW0 + c}")
            for x in ds_reads(s % NSET, u, vXc, vWc): A(x)
    A(f"s_mov_b32 s{sRd}, {t0 * SLOT}")
    A(f"v_add_u32 v{vXc}, {t0 * SLOT}, v{vX0}")
    for c in range(NCLS): A(f"v_add_u32 v{vWc + c}, {t0 * SLOT}, v{vW0 + c}")
    UN = KS * NSET // math.gcd(KS, NSET)
    assert S % UN == 0, (S, UN)
    A(f"s_mov_b32 s{sCnt}, {S // UN}")
    if cfg.get('stamp'): A("s_waitcnt lgkmcnt(0)"); A("s_memtime s[58:59]"); A("s_waitcnt lgkmcnt(0)")
    Lloop = A.newlabel("Lloop")
    A.label(Lloop)
    nDS = MBW + 2 * NSUB * FBW
    for s in range(UN):
        p = s % NSET
        pr = (s + PD) % NSET
        ph = (s + PD) % KS
        pre = []
        if ph == 0:
            lg = 0 if LAG == 0 else min(15, nDS * (PD - 1))
            pre.append(f"s_waitcnt vmcnt({n_dma * (R - LAG - 2)}) lgkmcnt({lg})")
            pre.append("s_barrier")
            if LAG == 0:
                pre.append(f"s_mov_b32 s{sWr}, s{sRd}")
            else:
                pre.append(f"s_sub_u32 s{sWr}, s{sRd}, {SLOT}")
                pre.append(f"s_cmp_eq_u32 s{sRd}, 0")
                pre.append(f"s_cselect_b32 s{sWr}, {(R - 1) * SLOT}, s{sWr}")
            pre.append(f"s_add_u32 s{sRd}, s{sRd}, {SLOT}")
            pre.append(f"s_cmp_eq_u32 s{sRd}, {R * SLOT}")
            pre.append(f"s_cselect_b32 s{sRd}, 0, s{sRd}")
            pre.append(f"v_add_u32 v{vXc}, s{sRd}, v{vX0}")
            for c in range(NCLS): pre.append(f"v_add_u32 v{vWc + c}, s{sRd}, v{vW0 + c}")
        else:
            pre.append(f"s_waitcnt lgkmcnt({min(15, nDS * (PD - 1))})")
        pre2 = []
        if ph:
            pre2.append(f"s_add_u32 s{sT0}, s{sKW}, {ph * 32 * RSG}")
            pre2.append(f"s_add_u32 s{sT1}, s{sKX}, {ph * 1024}")
        else:
            pre2.append(f"s_mov_b32 s{sT0}, s{sKW}")
            pre2.append(f"s_mov_b32 s{sT1}, s{sKX}")
        pre2.append(f"s_cmp_ge_u32 s{sT1}, {KBT * 1024}")
        pre2.append(f"s_cselect_b32 s{sT1}, 0x40000000, s{sT1}")
        if ph == KS - 1:
            pre2.append(f"s_add_u32 s{sKW}, s{sKW}, {KS * 32 * RSG}")
            pre2.append(f"s_add_u32 s{sKX}, s{sKX}, {KS * 1024}")
        mf = []
        for sub in range(NSUB):
            for fb in range(FBW):
                for mb in range(MBW):
                    a_ = acc(sub, fb, mb); w = wfrag(p, sub, fb); x = xfrag(p, mb)
                    mf.append(f"v_mfma_f32_16x16x32_bf16 v[{a_}:{a_+3}], a[{w}:{w+3}], a[{x}:{x+3}], v[{a_}:{a_+3}]")
        M = len(mf)
        ds = ds_reads(pr, ph, vXc, vWc)
        dm = dma_instrs(ph, sWr, 0, sT0, sT1)
        if cfg.get('no_ds'): ds = []
        if cfg.get('no_dma'): dm = []
        if cfg.get('no_dma_a'): dm = dm[nA:] + dm[nA:nA + nA]
        if cfg.get('no_dma_w'): dm = (dm[:nA] * 16)[:nA + nW]
        if cfg.get('no_mfma'): mf = ["s_nop 0"] * M
        if cfg.get('no_bar'): pre = [x for x in pre if x != "s_barrier"]
        side = {}
        def put(g, ins):
            side.setdefault(min(g, M - 1), []).extend(ins)
        dsr = cfg.get('ds_rate', 1)
        for i, d in enumerate(ds):
            put(i // dsr, [d])
        put(0, pre2)
        g0 = cfg.get('dma_g0', 2)
        span = max(1, (M - g0 - 2) // max(1, len(dm)))
        for i, (m0, d) in enumerate(dm):
            g = g0 + i * span
            put(g, m0)
            if g + 1 <= M - 1:
                put(g + 1, [d])
            else:
                put(g, ["s_nop 0", d])
        for x in pre: A(x)
        for x in interleave(mf, side): A(x)
    A(f"s_sub_u32 s{sCnt}, s{sCnt}, 1")
    A(f"s_cmp_lg_u32 s{sCnt}, 0")
    A(f"s_cbranch_scc1 {Lloop}")
    A("s_waitcnt vmcnt(0) lgkmcnt(0)")
    A("s_nop 7")
    A("s_nop 7")
    env = dict(locals())
    if cfg.get('stamp'): A("s_memtime s[60:61]"); A("s_waitcnt lgkmcnt(0)")
    cfg['epilogue'](A, env)
    if cfg.get('stamp'):
        A("s_waitcnt vmcnt(0)")
        A("s_memtime s[62:63]")
        A("s_memrealtime s[66:67]")
        A(f"s_load_dwordx2 s[{sP}:{sP+1}], s[0:1], {KA['dbg']}")
        A("s_waitcnt lgkmcnt(0)")
        srd(A, sO, sP, sP + 1, 256)
        A("s_sub_u32 s58, s58, s56"); A("s_sub_u32 s60, s60, s56"); A("s_sub_u32 s62, s62, s56")
        A("v_mov_b32 v0, s58"); A("v_mov_b32 v1, s60"); A("v_mov_b32 v2, s62"); A("s_sub_u32 s66, s66, s64"); A("v_mov_b32 v3, s66")
        A(f"s_and_b32 s{sT0}, s2, 63")
        A(f"s_add_u32 s{sT0}, s{sT0}, s{sWave}")
        A(f"s_cmp_lg_u32 s{sT0}, 0")
        A(f"s_cbranch_scc1 {Lend}")
        A(f"s_lshr_b32 s{sT0}, s2, 6")
        A(f"s_lshl_b32 s{sT0}, s{sT0}, 4")
        A(f"v_mov_b32 v4, s{sT0}")
        A(f"buffer_store_dwordx4 v[0:3], v4, s[{sO}:{sO+3}], 0 offen")
    rt_out(A, Lend, sWave)
    A.label(Lend)
    A("s_endpgm")
    A.end_kernel(name, NV, NA_, 102, 256, 256, LDS)


def epi_gemm1(A, e):
    g = e
    acc, FBW, MBW = g['acc'], g['FBW'], g['MBW']
    sO, sP, sT0, sT1, sMT, sNT, sWM, sWN, vLane, vE, vE2, sE = [g[k] for k in
        "sO sP sT0 sT1 sMT sNT sWM sWN vLane vE vE2 sE".split()]
    faithful = g['cfg'].get('faithful', True)
    srd_off(A, sO, sP + 4, sP + 5, WS_HH, 2048 * 3584 * 2)
    A(f"s_mul_i32 s{sT0}, s{sNT}, 14")
    A(f"s_mul_i32 s{sT1}, s{sWN}, 7")
    A(f"s_add_u32 s{sT0}, s{sT0}, s{sT1}")
    A(f"s_lshl_b32 s{sT1}, s{sMT}, 3")
    A(f"s_lshl_b32 s{sE}, s{sWM}, 2")
    A(f"s_add_u32 s{sT1}, s{sT1}, s{sE}")
    A(f"s_mul_i32 s{sT1}, s{sT1}, {112 * 1024}")
    A(f"s_mov_b32 s{sE+2}, 0xbfb8aa3b")
    A(f"s_mov_b32 s{sE+3}, 0xbfb8aa3b")
    A(f"s_mov_b32 s{sE+4}, 0xffff0000")
    for fb in range(FBW):
        A(f"s_add_u32 s{sE}, s{sT0}, {fb}")
        A(f"s_lshr_b32 s{sE+1}, s{sE}, 1")
        A(f"s_lshl_b32 s{sE+1}, s{sE+1}, 10")
        A(f"s_and_b32 s{sE}, s{sE}, 1")
        A(f"s_lshl_b32 s{sE}, s{sE}, 3")
        A(f"s_add_u32 s{sE}, s{sE}, s{sE+1}")
        A(f"s_add_u32 s{sE}, s{sE}, s{sT1}")
        A(f"v_lshl_add_u32 v{vE}, v{vLane}, 4, s{sE}")
        for mb in range(MBW):
            G = acc(0, fb, mb); U = acc(1, fb, mb)
            t = vE2 + (mb % 2) * 8
            if faithful:
                for h in range(2):
                    A(f"v_cvt_pk_bf16_f32 v{t}, v{G+2*h}, v{G+2*h+1}")
                    A(f"v_cvt_pk_bf16_f32 v{t+1}, v{U+2*h}, v{U+2*h+1}")
                    A(f"v_lshlrev_b32 v{G+2*h}, 16, v{t}")
                    A(f"v_and_b32 v{G+2*h+1}, s{sE+4}, v{t}")
                    A(f"v_lshlrev_b32 v{U+2*h}, 16, v{t+1}")
                    A(f"v_and_b32 v{U+2*h+1}, s{sE+4}, v{t+1}")
            for h in range(2):
                A(f"v_pk_mul_f32 v[{t+2*h}:{t+2*h+1}], v[{G+2*h}:{G+2*h+1}], s[{sE+2}:{sE+3}]")
            for i in range(4):
                A(f"v_exp_f32 v{t+i}, v{t+i}")
            for h in range(2):
                A(f"v_pk_add_f32 v[{t+2*h}:{t+2*h+1}], v[{t+2*h}:{t+2*h+1}], 1.0 op_sel_hi:[1,0]")
            for i in range(4):
                A(f"v_rcp_f32 v{t+i}, v{t+i}")
            for h in range(2):
                A(f"v_pk_mul_f32 v[{t+2*h}:{t+2*h+1}], v[{t+2*h}:{t+2*h+1}], v[{G+2*h}:{G+2*h+1}]")
            if faithful:
                for h in range(2):
                    A(f"v_cvt_pk_bf16_f32 v{t+4+h}, v{t+2*h}, v{t+2*h+1}")
                for h in range(2):
                    A(f"v_lshlrev_b32 v{t+2*h}, 16, v{t+4+h}")
                    A(f"v_and_b32 v{t+2*h+1}, s{sE+4}, v{t+4+h}")
            for h in range(2):
                A(f"v_pk_mul_f32 v[{t+2*h}:{t+2*h+1}], v[{t+2*h}:{t+2*h+1}], v[{U+2*h}:{U+2*h+1}]")
            A(f"v_cvt_pk_bf16_f32 v{t+6}, v{t}, v{t+1}")
            A(f"v_cvt_pk_bf16_f32 v{t+7}, v{t+2}, v{t+3}")
            A(f"s_mov_b32 s{sE+5}, {mb * 112 * 1024}")
            A(f"buffer_store_dwordx2 v[{t+6}:{t+7}], v{vE}, s[{sO}:{sO+3}], s{sE+5} offen")


def epi_gemm2(A, e):
    g = e
    acc, FBW, MBW, MT, NW = g['acc'], g['FBW'], g['MBW'], g['MT'], g['NW']
    sO, sP, sT0, sT1, sMT, sNT, sWM, sWN, vLane, vE, vE2, sE, sX, sW = [g[k] for k in
        "sO sP sT0 sT1 sMT sNT sWM sWN vLane vE vE2 sE sX sW".split()]
    srd(A, sO, sP + 6, sP + 7, 2048 * 1024 * 2)
    srd_off(A, sX, sP + 4, sP + 5, WS_X1, 2048 * 1024 * 2)
    srd_off(A, sW, sP + 4, sP + 5, WS_MOD, 2 * 6144 * 4)
    A(f"s_mul_i32 s{sT0}, s{sNT}, {NW}")
    A(f"s_mul_i32 s{sE}, s{sWN}, {FBW * 16}")
    A(f"s_add_u32 s{sT0}, s{sT0}, s{sE}")
    A(f"s_mul_i32 s{sT1}, s{sMT}, {MT}")
    A(f"s_mul_i32 s{sE}, s{sWM}, {MBW * 16}")
    A(f"s_add_u32 s{sT1}, s{sT1}, s{sE}")
    A(f"s_mov_b32 s{sE+4}, 0xffff0000")
    A(f"v_lshrrev_b32 v{vE}, 4, v{vLane}")
    A(f"v_lshlrev_b32 v{vE}, 2, v{vE}")
    A(f"v_add_u32 v{vE}, s{sT0}, v{vE}")
    A(f"v_and_b32 v{vE+1}, 15, v{vLane}")
    A(f"v_add_u32 v{vE+1}, s{sT1}, v{vE+1}")
    A(f"v_lshlrev_b32 v{vE+1}, 11, v{vE+1}")
    A(f"v_lshl_add_u32 v{vE+1}, v{vE}, 1, v{vE+1}")
    A(f"v_lshlrev_b32 v{vE}, 2, v{vE}")
    A(f"v_add_u32 v{vE}, {5 * 4096}, v{vE}")
    gbr = vE2
    xr = vE2 + FBW * 4
    gb2 = xr + FBW * MBW * 2
    A(f"s_mov_b32 s{sE}, 24576")
    for fb in range(FBW):
        A(f"buffer_load_dwordx4 v[{gbr+4*fb}:{gbr+4*fb+3}], v{vE}, s[{sW}:{sW+3}], 0 offen offset:{fb * 64}")
        A(f"buffer_load_dwordx4 v[{gb2+4*fb}:{gb2+4*fb+3}], v{vE}, s[{sW}:{sW+3}], s{sE} offen offset:{fb * 64}")
    for fb in range(FBW):
        for mb in range(MBW):
            r = xr + (fb * MBW + mb) * 2
            A(f"s_mov_b32 s{sE}, {mb * 16 * 2048}")
            A(f"buffer_load_dwordx2 v[{r}:{r+1}], v{vE+1}, s[{sX}:{sX+3}], s{sE} offen offset:{fb * 32}")
    A("s_waitcnt vmcnt(0)")
    t = vE + 2
    for i in range(0, FBW * 4, 2):
        A(f"v_pk_add_f32 v[{gbr+i}:{gbr+i+1}], v[{gbr+i}:{gbr+i+1}], v[{gb2+i}:{gb2+i+1}]")
        A(f"v_cvt_pk_bf16_f32 v{t}, v{gbr+i}, v{gbr+i+1}")
        A(f"v_lshlrev_b32 v{gbr+i}, 16, v{t}")
        A(f"v_and_b32 v{gbr+i+1}, s{sE+4}, v{t}")
    for fb in range(FBW):
        for mb in range(MBW):
            a_ = acc(0, fb, mb)
            r = xr + (fb * MBW + mb) * 2
            for h in range(2):
                A(f"v_cvt_pk_bf16_f32 v{t}, v{a_+2*h}, v{a_+2*h+1}")
                A(f"v_lshlrev_b32 v{a_+2*h}, 16, v{t}")
                A(f"v_and_b32 v{a_+2*h+1}, s{sE+4}, v{t}")
                A(f"v_pk_mul_f32 v[{a_+2*h}:{a_+2*h+1}], v[{a_+2*h}:{a_+2*h+1}], v[{gbr+4*fb+2*h}:{gbr+4*fb+2*h+1}]")
                A(f"v_cvt_pk_bf16_f32 v{t}, v{a_+2*h}, v{a_+2*h+1}")
                A(f"v_lshlrev_b32 v{a_+2*h}, 16, v{t}")
                A(f"v_and_b32 v{a_+2*h+1}, s{sE+4}, v{t}")
                A(f"v_lshlrev_b32 v{t}, 16, v{r+h}")
                A(f"v_and_b32 v{t+1}, s{sE+4}, v{r+h}")
                A(f"v_add_f32 v{a_+2*h}, v{a_+2*h}, v{t}")
                A(f"v_add_f32 v{a_+2*h+1}, v{a_+2*h+1}, v{t+1}")
                A(f"v_cvt_pk_bf16_f32 v{r+h}, v{a_+2*h}, v{a_+2*h+1}")
            A(f"s_mov_b32 s{sE}, {mb * 16 * 2048}")
            A(f"buffer_store_dwordx2 v[{r}:{r+1}], v{vE+1}, s[{sO}:{sO+3}], s{sE} offen offset:{fb * 32}")


def gen_prefetch(A, name="pf_kernel"):
    A.begin_kernel(name)
    Lend = A.newlabel("Lend")
    A("s_cmp_ge_u32 s2, 256"); A(f"s_cbranch_scc1 {Lend}")
    A(f"s_load_dwordx4 s[32:35], s[0:1], {KA['w1']}")
    A(f"s_load_dwordx2 s[36:37], s[0:1], {KA['w2']}")
    A("s_waitcnt lgkmcnt(0)")
    srd(A, 4, 32, 33, 7340032); srd(A, 8, 34, 35, 7340032); srd(A, 12, 36, 37, 7340032)
    A("s_mul_i32 s16, s2, 28672")
    A("v_lshlrev_b32 v1, 4, v0")
    A("v_add_u32 v1, s16, v1")
    r = 4
    for sr in (4, 8, 12):
        for j in range(7):
            A(f"s_mov_b32 s17, {j * 4096}")
            A(f"buffer_load_dwordx4 v[{r}:{r+3}], v1, s[{sr}:{sr+3}], s17 offen")
            r += 4
    A("s_waitcnt vmcnt(0)")
    A.label(Lend); A("s_endpgm")
    A.end_kernel(name, r, 0, 48, 256, 256, 0)


GEMM1 = dict(name="gemm1_kernel", MT=128, WM=2, WN=2, NSUB=2, NW=224, K=1024, RSG=7168, KS=1, R=4, PD=1, LAG=0,
             fs=2, fbits=1, wptr=[KA['w1'], KA['w3']], act_off=WS_H2, xm_bits=1, qm_bits=3, epilogue=epi_gemm1,
             etemps=16)
GEMM2 = dict(name="gemm2_kernel", MT=128, WM=2, WN=2, NSUB=1, NW=64, K=3584, RSG=2048, KS=2, R=6, PD=2, LAG=1,
             fs=1, fbits=2, wptr=[KA['w2']], act_off=WS_HH, xm_bits=2, qm_bits=2, epilogue=epi_gemm2,
             etemps=40, dma_g0=0, NSET=4)

if __name__ == "__main__":
    import importlib
    A = Asm()
    which = sys.argv[2].split(",") if len(sys.argv) > 2 else ["kv", "conv", "ln", "g1", "g2"]
    try:
        import gen_front
    except ImportError:
        gen_front = None
    opts = {}
    for kv in sys.argv[3:]:
        k_, v_ = kv.split("=")
        opts[k_] = int(v_)
    GEMM1.update(opts); GEMM2.update(opts)
    if gen_front and opts.get("fstamp"): gen_front.STAMP[0] = opts.get("fstamp")
    if opts.get('rt'):
        RT[0] = 1
        import gen as _g; _g.RT[0] = 1
    for w in which:
        if w == "conv": gen_front.gen_conv(A, prefetch=(opts.get('pf1', 1), opts.get('pf1', 1), opts.get('pf2', 0)))
        if w == "kv": gen_front.gen_kv(A, prefetch=(opts.get('pk1', 0), opts.get('pk1', 0), opts.get('pk2', 0)))
        if w == "fa":
            import gen_a
            gen_a.gen_front_a(A, prefetch=(opts.get('pf1', 1), opts.get('pf1', 1), opts.get('pf2', 0)), nearly=opts.get('nearly', 0), pfm=opts.get('pfm', 1))
        if w == "g8":
            import gen8
            gen8.gen_g8test(A, opts)
        if w == "g28":
            import gen8
            gen8.gen_g28test(A, opts)
        if w == "all8":
            import gen_all8
            gen_all8.gen_all8(A, name=(NAME + "_kernel") if opts.get('single') else "all8_kernel", opts=opts)
        if w == "all":
            import gen2
            gen2.gen_all(A, name=(NAME + "_kernel") if opts.get('single') else "all_kernel", opts=opts)
        if w == "b":
            import gen2
            gen2.gen_b(A, opts=opts)
        if w == "ln": gen_front.gen_ln(A, pf2=opts.get('pl2', 1))
        if w == "g1": gen_gemm(A, GEMM1)
        if w == "g2": gen_gemm(A, GEMM2)
        if w == "pf": gen_prefetch(A)
        if w.startswith("nop"):
            A.begin_kernel(w + "_kernel"); A("s_endpgm"); A.end_kernel(w + "_kernel", 8, 0, 16, 256, 256, 0)
    open(sys.argv[1], "w").write(A.text())
```
